```python
import torch

def _softmax(x, axis=-1):
    return torch.softmax(x, dim=axis)
def _gelu(x):
    return torch.nn.functional.gelu(x, approximate="tanh")
def _silu(x):
    return torch.nn.functional.silu(x)
def _sigmoid(x):
    return torch.sigmoid(x)
def _layernorm(x, axis=-1, eps=1e-5):
    m = x.mean(dim=axis, keepdim=True)
    v = x.var(dim=axis, keepdim=True, unbiased=False)
    return (x - m) / torch.sqrt(v + eps)
def _scatter_add(tgt, idx, src, axis=0):
    return tgt.clone().index_add_(axis, idx, src)
def _segment_sum(src, seg, n):
    out = torch.zeros((n,) + src.shape[1:], dtype=src.dtype)
    return out.index_add_(0, seg, src)
def _pad(x, pw):
    flat = tuple(v for pair in reversed(pw) for v in pair)
    return torch.nn.functional.pad(x, flat)

kernel_name = 'parallel_sum__gqa_block_cached__glu_gated_bilinear__decode'

def setup_inputs():

    _w = (lambda a: (lambda t: t.to(torch.bfloat16) if t.is_floating_point() else t)(torch.as_tensor(a)))
    def _A_setup():
        B, Sq, D = 2, 1, 576
        Hq, Hkv, Sk, Dh = 32, 16, 4096, 128
        assert Hq % Hkv == 0, (Hq, Hkv)
        return {
            "x": _w((lambda *s: torch.randn(*s, dtype=torch.bfloat16) * 0.05)(B, Sq, D)),
            "k_cache": _w((lambda *s: torch.randn(*s, dtype=torch.bfloat16) * 1.6)(B, Hkv, Sk, Dh)),
            "v_cache": _w((lambda *s: torch.randn(*s, dtype=torch.bfloat16) * 0.8)(B, Hkv, Sk, Dh)),
            "wq": _w((lambda *s: torch.randn(*s, dtype=torch.bfloat16) * 1.6)(D, Hq * Dh) * (D ** -0.5)),
            "wo": _w((lambda *s: torch.randn(*s, dtype=torch.bfloat16) * 0.8)(Hq * Dh, D) * ((Hq * Dh) ** -0.5)),
        }
    _A_in = _A_setup()

    def _B_setup():
        B, S, D, F = 2, 1, 576, 4608
        return {
            "x": _w((lambda *s: torch.randn(*s, dtype=torch.bfloat16) * 0.05)(B, S, D)),
            "w_gate": _w((lambda *s: torch.randn(*s, dtype=torch.bfloat16) * 0.4)(D, F) * (D ** -0.5)),
            "w_up": _w((lambda *s: torch.randn(*s, dtype=torch.bfloat16) * 0.4)(D, F) * (D ** -0.5)),
            "w_down": _w((lambda *s: torch.randn(*s, dtype=torch.bfloat16) * 0.4)(F, D) * (F ** -0.5)),
        }
    _B_in = _B_setup()

    return {
        "A_x": _A_in["x"],
        "A_k_cache": _A_in["k_cache"],
        "A_v_cache": _A_in["v_cache"],
        "A_wq": _A_in["wq"],
        "A_wo": _A_in["wo"],
        "B_x": _B_in["x"],
        "B_w_gate": _B_in["w_gate"],
        "B_w_up": _B_in["w_up"],
        "B_w_down": _B_in["w_down"],
    }

def reference(A_x, A_k_cache, A_v_cache, A_wq, A_wo, B_x, B_w_gate, B_w_up, B_w_down):
    def _A_ref(x, k_cache, v_cache, wq, wo):
        B, Sq, D = x.shape
        Hq, Dh = 32, 128
        Hkv = k_cache.shape[1]
        rep = Hq // Hkv
        q = (lambda x, *d: x.permute(*d))((x @ wq).reshape(B, Sq, Hq, Dh), 0, 2, 1, 3)
        k = (lambda x, n, axis: torch.repeat_interleave(x, n, dim=axis))(k_cache, rep, axis=1)
        v = (lambda x, n, axis: torch.repeat_interleave(x, n, dim=axis))(v_cache, rep, axis=1)
        scores = torch.einsum("bhqd,bhkd->bhqk", q, k) * (Dh ** -0.5)
        p = _softmax(scores, axis=-1)
        o = torch.einsum("bhqk,bhkd->bhqd", p, v)
        return (lambda x, *d: x.permute(*d))(o, 0, 2, 1, 3).reshape(B, Sq, Hq * Dh) @ wo

    def _B_ref(x, w_gate, w_up, w_down):
        g = torch.einsum("bsd,df->bsf", x, w_gate)
        u = torch.einsum("bsd,df->bsf", x, w_up)
        h = g * u
        return torch.einsum("bsf,fd->bsd", h, w_down)

    x = A_x
    xn = _layernorm(x, axis=-1)
    return x + _A_ref(xn, A_k_cache, A_v_cache, A_wq, A_wo) + _B_ref(xn, B_w_gate, B_w_up, B_w_down)
```

```python
import re

TRANS = ("v_exp_f32", "v_log_f32", "v_rcp_f32", "v_rsq_f32", "v_sqrt_f32", "v_sin_f32", "v_cos_f32")

def parse_regs(tok):
    tok = tok.strip()
    neg = tok
    tok = tok.lstrip("-")
    m = re.fullmatch(r"abs\((.*)\)", tok)
    if m: tok = m.group(1)
    tok = tok.strip("|")
    m = re.fullmatch(r"([vsa])(\d+)", tok)
    if m: return [(m.group(1), int(m.group(2)))]
    m = re.fullmatch(r"([vsa])\[(\d+):(\d+)\]", tok)
    if m: return [(m.group(1), i) for i in range(int(m.group(2)), int(m.group(3)) + 1)]
    if tok == "vcc": return [("s", 106), ("s", 107)]
    if tok == "vcc_lo": return [("s", 106)]
    if tok == "vcc_hi": return [("s", 107)]
    if tok == "exec": return [("s", 126), ("s", 127)]
    if tok == "m0": return [("s", 124)]
    return []

class Ins:
    __slots__ = ("text", "op", "dst", "src", "cls", "dpp", "nops", "srcC", "srcAB", "store_data", "passes")
    def __init__(self, text):
        self.text = text
        t = text.split(";")[0].strip()
        self.op = t.split()[0] if t else ""
        rest = t[len(self.op):].strip()
        ops = []; depth = 0; cur = ""
        for ch in rest:
            if ch == "[": depth += 1
            if ch == "]": depth -= 1
            if ch == "," and depth == 0:
                ops.append(cur.strip()); cur = ""
            else: cur += ch
        if cur.strip(): ops.append(cur.strip())
        mods = ""
        if ops:
            parts = ops[-1].split(None, 1)
            if len(parts) == 2 and not ops[-1].startswith("hwreg"):
                ops[-1] = parts[0]; mods = parts[1]
        op = self.op
        self.dpp = ("_dpp" in op) or ("quad_perm" in mods) or ("row_" in mods)
        self.dst = []; self.src = []; self.srcC = []; self.srcAB = []; self.store_data = []; self.passes = 0
        self.nops = 1
        R = [parse_regs(o) for o in ops]
        if op == "s_nop":
            self.cls = "nop"; self.nops = int(ops[0], 0) + 1
        elif op.startswith("v_mfma"):
            self.cls = "mfma"
            self.dst = R[0]; self.srcAB = R[1] + R[2]; self.srcC = R[3]; self.src = R[1] + R[2] + R[3]
            self.passes = 8 if "32x32" in op else (2 if "4x4x4" in op else 4)
        elif op.startswith("v_cmp"):
            self.cls = "valu"; self.dst = R[0]; self.src = sum(R[1:], [])
        elif op.startswith("v_readfirstlane") or op.startswith("v_readlane"):
            self.cls = "readlane"; self.dst = R[0]; self.src = sum(R[1:], [])
        elif op.startswith("v_permlane"):
            self.cls = "permlane"; self.dst = R[0] + R[1]; self.src = R[0] + R[1]
        elif op.startswith("v_"):
            self.cls = "trans" if any(op.startswith(x) for x in TRANS) else "valu"
            self.dst = list(R[0]); self.src = sum(R[1:], [])
            if op.startswith(("v_add_co", "v_sub_co", "v_addc_co", "v_subb_co", "v_subrev_co")):
                self.dst = R[0] + R[1]; self.src = sum(R[2:], [])
            if op.startswith(("v_fmac", "v_mac", "v_bfi")) or self.dpp:
                self.src = self.src + (R[0] if (op.startswith(("v_fmac", "v_mac")) or self.dpp) else [])
            if op.startswith("v_cndmask") and len(ops) == 3:
                self.src = self.src + [("s", 106), ("s", 107)]
            if op.startswith("v_writelane"):
                self.src = self.src + R[0]
        elif op.startswith(("global_load", "buffer_load", "flat_load")):
            self.cls = "vmem"
            if "lds" in op or " lds" in (" " + mods):
                self.src = sum(R, [])
            else:
                self.dst = R[0]; self.src = sum(R[1:], [])
                if "d16" in op: self.src = self.src + R[0]
        elif op.startswith(("global_store", "buffer_store", "flat_store")):
            self.cls = "vmem"; self.src = sum(R, [])
            if op.startswith("global_store"): self.store_data = R[1]
            else: self.store_data = R[0]
            if not (op.endswith("x3") or op.endswith("x4")): self.store_data = []
        elif op.startswith(("global_atomic", "buffer_atomic")):
            self.cls = "vmem"
            if "sc0" in mods: self.dst = R[0]; self.src = sum(R[1:], [])
            else: self.src = sum(R, [])
        elif op.startswith("ds_"):
            self.cls = "ds"
            if op.startswith(("ds_read", "ds_bpermute", "ds_permute", "ds_swizzle")) or "_rtn" in op:
                self.dst = R[0]; self.src = sum(R[1:], [])
                if "d16" in op: self.src = self.src + R[0]
            else:
                self.src = sum(R, [])
        elif op.startswith("s_"):
            self.cls = "salu"
            if op.startswith(("s_cmp", "s_cbranch", "s_branch", "s_waitcnt", "s_barrier", "s_sleep", "s_endpgm", "s_setprio", "s_bitcmp")):
                self.src = sum(R, [])
            else:
                self.dst = R[0] if R else []; self.src = sum(R[1:], [])
                if "saveexec" in op: self.dst = self.dst + [("s", 126), ("s", 127)]
        else:
            self.cls = "other"

def need(prod, cons):
    n = 0
    pv = set(r for r in prod.dst if r[0] in "va")
    ps = set(r for r in prod.dst if r[0] == "s")
    isvalu_p = prod.cls in ("valu", "trans", "readlane", "permlane")
    isvalu_c = cons.cls in ("valu", "trans", "readlane", "permlane")
    csrc = set(cons.src); cdst = set(cons.dst)
    if isvalu_p and pv:
        if cons.cls == "mfma" and pv & csrc: n = max(n, 2)
        if cons.dpp and cons.cls in ("valu", "trans") and pv & csrc: n = max(n, 2)
        if cons.cls == "permlane" and pv & csrc: n = max(n, 2)
        if cons.cls == "readlane" and pv & csrc: n = max(n, 1)
        if prod.cls == "trans" and isvalu_c and cons.cls != "trans" and pv & csrc: n = max(n, 1)
        if prod.cls == "trans" and cons.cls in ("mfma",) and pv & csrc: n = max(n, 2)
    if isvalu_p and ps:
        if isvalu_c and ps & csrc:
            n = max(n, 4 if cons.cls == "readlane" else 2)
        if cons.op.startswith("v_writelane") and ps & csrc: n = max(n, 4)
        if cons.cls == "vmem" and ps & csrc: n = max(n, 5)
        if cons.cls == "ds" and ps & csrc: n = max(n, 5)
        if cons.cls == "salu" and ps & csrc and not cons.op.startswith("s_cbranch"): n = max(n, 1)
    if prod.cls == "mfma":
        P = prod.passes
        raw = {2: 5, 4: 8, 8: 12}[P]
        if cons.cls == "mfma":
            if pv & set(cons.srcAB): n = max(n, raw)
            if pv & set(cons.srcC):
                if set(cons.srcC) == pv and cons.passes == P: n = max(n, 2 if P == 2 else 0)
                else: n = max(n, {2: 4, 4: 6, 8: 10}[P])
            elif pv & cdst:
                n = max(n, raw)
        elif isvalu_c or cons.cls in ("vmem", "ds"):
            if pv & (csrc | cdst): n = max(n, raw)
        if isvalu_c and set(prod.srcC) & cdst: n = max(n, {2: 1, 4: 3, 8: 7}[P])
    if prod.store_data and isvalu_c and set(prod.store_data) & cdst: n = max(n, 2)
    if prod.store_data and cons.cls in ("vmem", "ds") and set(prod.store_data) & cdst: n = max(n, 1)
    return n

class Asm:
    def __init__(self):
        self.lines = []
    def __call__(self, s):
        for l in s.split("\n"):
            l = l.strip()
            if l: self.lines.append(l)
    def label(self, n): self.lines.append(n + ":")
    def c(self, s): self.lines.append("; " + s)
    def finish(self):
        out = []
        hist = []
        pos = 0
        labelhist = {}
        nnop = 0
        pend = {}
        for l in self.lines:
            if l.startswith(";") or l.startswith(".") :
                out.append(l); continue
            if l.endswith(":"):
                out.append(l)
                name = l[:-1]
                for (h, p) in pend.pop(name, []):
                    for (ins, q) in h:
                        hist.append((ins, pos - (p - q)))
                continue
            ins = Ins(l)
            req = 0
            for (p, q) in hist:
                d = pos - q - 1
                if d < 14:
                    nn = need(p, ins)
                    if nn > d: req = max(req, nn - d)
            if req:
                k = req
                while k > 0:
                    c = min(k, 16)
                    out.append(f"s_nop {c-1}"); nnop += 1
                    pos += c; k -= c
            out.append(l)
            if ins.cls == "nop":
                pos += ins.nops
            else:
                hist.append((ins, pos)); pos += 1
            hist = [(p, q) for (p, q) in hist if pos - q < 16]
            if ins.op.startswith(("s_cbranch", "s_branch")):
                tgt = l.split()[1]
                pend.setdefault(tgt, []).append((list(hist), pos))
                if ins.op == "s_branch": hist = []
        return out, nnop
```

```python
import sys
from asmlib import Asm
NAME = "parallel_sum__gqa_block_cached__glu_gated_bilinear__decode"

WS_EPOCH = 0
WS_QS = 0x10000
WS_OS = 0x50000
WS_ML = 0x90000
WS_GS = 0xA0000
WS_FS = 0x100000
WS_STAMP = 0x800000
C_XN, C_QP, C_KISS, C_Q, C_P, C_VISS, C_RO, C_RG, F_Z, F_H, C_F, C_FR = [4 * i for i in range(12)]
L_XN = 256
L_Q = 2560
L_P = 3072
L_ML = 5120
L_ZA = 5248
L_HA = 5312
L_DUMMY = 5440
L_FR = 6400
L_QP = 8192
L_RO = 16384
L_RG = 24576
LDS_BYTES = 32768
LOG2E = 0x3FB8AA3B
SCALE = 0x3DB504F3
NT = " nt"

def gen(diag=False, mimic=True, ngu=216):
    A = Asm()
    uid = [0]
    def lab(p):
        uid[0] += 1; return f"L_{p}_{uid[0]}"
    stamp_n = [0]
    def stamp(name=None):
        if not diag: return
        i = stamp_n[0]; stamp_n[0] += 1
        assert i < 14
        A(f"s_memrealtime s[{70+2*i}:{71+2*i}]")
    def stamp_reset(): stamp_n[0] = 0
    def stamp_dump(base_col):
        if not diag: return
        n = stamp_n[0]
        A("s_waitcnt lgkmcnt(0)")
        A("s_mov_b64 exec, 1")
        A(f"s_lshl_b32 s60, s2, 8"); A(f"s_add_u32 s60, s60, {WS_STAMP + base_col*8}")
        A("v_mov_b32 v4, s60")
        for i in range(n):
            A(f"v_mov_b32 v6, s{70+2*i}"); A(f"v_mov_b32 v7, s{71+2*i}")
            A(f"global_store_dwordx2 v4, v[6:7], s[26:27] offset:{8*i}")
            A("s_nop 1")
        A("s_mov_b64 exec, -1")

    VZ, VONE, VMASK = "v2", "v3", "v19"
    def signal(cnt):
        A("s_waitcnt lgkmcnt(0)")
        A("s_mov_b64 exec, 1")
        A(f"ds_add_u32 {VZ}, {VONE} offset:{cnt}")
        A("s_mov_b64 exec, -1")
    def arrive(cnt, sdst, vt="v4"):
        A("s_waitcnt lgkmcnt(0)")
        A("s_mov_b64 exec, 1")
        A(f"ds_add_rtn_u32 {vt}, {VZ}, {VONE} offset:{cnt}")
        A("s_mov_b64 exec, -1")
        A("s_waitcnt lgkmcnt(0)")
        A(f"v_readfirstlane_b32 {sdst}, {vt}")
    def spin(cnt, n, vt="v4", sleep=1):
        l = lab("spin"); d = lab("spind")
        A.label(l)
        A(f"ds_read_b32 {vt}, {VZ} offset:{cnt}")
        A("s_waitcnt lgkmcnt(0)")
        A(f"v_readfirstlane_b32 s60, {vt}")
        A(f"s_cmp_ge_u32 s60, {n}")
        A(f"s_cbranch_scc1 {d}")
        A("s_sub_u32 s42, s42, 1")
        A(f"s_cbranch_scc1 {d}")
        if sleep: A(f"s_sleep {sleep}")
        A(f"s_branch {l}")
        A.label(d)
    def tagcheck(r, vt0, vt1, vt2):
        A(f"v_xor_b32 {vt0}, s32, v{r}")
        A(f"v_xor_b32 {vt1}, s33, v{r+1}")
        A(f"v_xor_b32 {vt2}, s34, v{r+2}")
        A(f"v_or3_b32 {vt0}, {vt0}, {vt1}, {vt2}")
        A(f"v_xor_b32 {vt1}, s35, v{r+3}")
        A(f"v_or_b32 {vt0}, {vt0}, {vt1}")
        A(f"v_and_b32 {vt0}, {VMASK}, {vt0}")
        A(f"v_cmp_ne_u32 vcc, 0, {vt0}")
    def tagset(r):
        for i in range(4):
            A(f"v_bfi_b32 v{r+i}, {VMASK}, s{32+i}, v{r+i}")
    def untag(r, n=4):
        for i in range(n):
            A(f"v_and_b32 v{r+i}, 0xfffff000, v{r+i}")
    def tags_from_epoch():
        A("s_waitcnt lgkmcnt(0)")
        A("s_add_u32 s28, s28, 1")
        A("s_and_b32 s32, s28, 0xfff")
        A("s_bfe_u32 s33, s28, 0xc000c")
        A("s_lshr_b64 s[60:61], s[28:29], 24"); A("s_and_b32 s34, s60, 0xfff")
        A("s_lshr_b64 s[60:61], s[28:29], 36"); A("s_and_b32 s35, s60, 0xfff")
    def butterfly16(op, regs, tmp):
        for r, t in zip(regs, tmp): A(f"v_mov_b32 {t}, {r}")
        for r, t in zip(regs, tmp): A(f"v_permlane16_swap_b32 {r}, {t}")
        for r, t in zip(regs, tmp): A(f"{op} {r}, {r}, {t}")
    def butterfly32(op, regs, tmp):
        for r, t in zip(regs, tmp): A(f"v_mov_b32 {t}, {r}")
        for r, t in zip(regs, tmp): A(f"v_permlane32_swap_b32 {r}, {t}")
        for r, t in zip(regs, tmp): A(f"{op} {r}, {r}, {t}")
    def dpp(op, regs, ctrl):
        for r in regs: A(f"{op}_dpp {r}, {r}, {r} {ctrl} row_mask:0xf bank_mask:0xf")
    def base_add(dst, src, off_sreg_or_imm):
        A(f"s_add_u32 s{dst}, s{src}, {off_sreg_or_imm}")
        A(f"s_addc_u32 s{dst+1}, s{src+1}, 0")

    A("s_cmp_ge_u32 s2, 256")
    A("s_cbranch_scc1 L_end")
    A("s_load_dwordx16 s[4:19], s[0:1], 0")
    A("s_load_dwordx8 s[20:27], s[0:1], 64")
    if diag: A("s_memrealtime s[70:71]"); stamp_n[0] = 1
    A("v_lshrrev_b32 v4, 6, v0")
    A("v_and_b32 v1, 63, v0")
    A("v_readfirstlane_b32 s30, v4")
    A("s_lshr_b32 s40, s2, 7")
    A("s_bfe_u32 s38, s2, 0x40003")
    A("s_and_b32 s41, s2, 7")
    A("s_lshl_b32 s39, s40, 3")
    A("s_or_b32 s39, s39, s41")
    A("s_mov_b32 s36, 0x05040100")
    A("s_mov_b32 s37, 0x07060302")
    A("s_mov_b32 s42, 0x200000")
    A(f"v_mov_b32 {VZ}, 0")
    A(f"v_mov_b32 {VONE}, 1")
    A(f"v_mov_b32 {VMASK}, 0xfff")
    A("s_and_b32 s31, s30, 7")
    A("v_and_b32 v16, 15, v1")
    A("v_lshrrev_b32 v17, 4, v1")
    A("s_cmp_ge_u32 s30, 8")
    A("s_cbranch_scc1 L_vwave")
    common_stamp = stamp_n[0]

    A.c("K wave: keys [64w, 64w+64) of this workgroup's 512")
    A("v_bfe_u32 v4, v1, 2, 2")
    A("v_lshlrev_b32 v5, 8, v4")
    A("v_lshl_or_b32 v5, v17, 6, v5")
    A("v_and_b32 v4, 3, v1")
    A("v_lshl_or_b32 v5, v4, 4, v5")
    A("s_lshl_b32 s60, s2, 17")
    A("s_lshl_b32 s61, s31, 14")
    A("s_add_u32 s60, s60, s61")
    A("v_lshrrev_b32 v6, 3, v1")
    A("v_lshlrev_b32 v6, 10, v6")
    A("v_and_b32 v7, 7, v1")
    A("v_lshl_or_b32 v6, v7, 4, v6")
    A("s_lshl_b32 s62, s31, 7")
    A("v_add_u32 v6, s62, v6")
    A("s_waitcnt lgkmcnt(0)")
    A("s_load_dwordx2 s[28:29], s[26:27], 0")
    base_add(44, 6, "s60")
    A("s_barrier")
    for i in range(16):
        if i and i % 4 == 0:
            base_add(44, 44, 4096)
        A(f"global_load_dwordx4 v[{64+4*i}:{67+4*i}], v5, s[44:45] offset:{(i%4)*1024}{NT}")
    A("s_lshl_b32 s60, s38, 1"); A("s_add_u32 s60, s60, s40"); A("s_lshl_b32 s60, s60, 13")
    A(f"s_add_u32 s60, s60, {WS_QS}")
    base_add(46, 26, "s60")
    A("global_load_dwordx4 v[20:23], v6, s[46:47] sc1")
    stamp()
    signal(C_KISS)
    tags_from_epoch()
    lp = lab("qpoll"); ld = lab("qdone")
    A.label(lp)
    A("s_waitcnt vmcnt(0)")
    tagcheck(20, "v8", "v9", "v10")
    A(f"s_cbranch_vccz {ld}")
    A("s_sub_u32 s42, s42, 64")
    A(f"s_cbranch_scc1 {ld}")
    A("global_load_dwordx4 v[20:23], v6, s[46:47] sc1")
    A(f"s_branch {lp}")
    A.label(ld)
    stamp()
    untag(20)
    q = ["v20", "v21", "v22", "v23"]
    dpp("v_add_f32", q, "row_ror:8")
    butterfly16("v_add_f32", q, ["v8", "v9", "v10", "v11"])
    butterfly32("v_add_f32", q, ["v8", "v9", "v10", "v11"])
    A("v_cvt_pk_bf16_f32 v8, v20, v21")
    A("v_cvt_pk_bf16_f32 v9, v22, v23")
    A("v_lshlrev_b32 v10, 3, v7")
    A("s_lshl_b32 s60, s31, 6")
    A("v_add_u32 v10, s60, v10")
    A("s_mov_b64 exec, 0xff")
    A(f"ds_write_b64 v10, v[8:9] offset:{L_Q}")
    A("s_mov_b64 exec, -1")
    signal(C_Q)
    for (r, val) in ((52, 0x22222222), (54, 0x44444444), (56, 0x88888888)):
        A(f"s_mov_b32 s{r}, {val:#x}"); A(f"s_mov_b32 s{r+1}, {val:#x}")
    A("s_mov_b32 s58, 0x00ff00ff"); A("s_mov_b32 s59, 0x00ff00ff")
    A("v_bfe_u32 v8, v16, 2, 1")
    A("v_lshlrev_b32 v8, 8, v8")
    A("v_lshl_or_b32 v8, v17, 6, v8")
    A("v_and_b32 v9, 3, v16")
    A("v_lshl_or_b32 v8, v9, 4, v8")
    spin(C_Q, 8)
    A(f"ds_read_b128 v[12:15], v8 offset:{L_Q}")
    A("s_waitcnt lgkmcnt(0)")
    for i in range(4):
        A(f"v_cndmask_b32 v{24+i}, 0, v{12+i}, s[58:59]")
    for i in range(4):
        A(f"v_cndmask_b32 v{28+i}, v{12+i}, 0, s[58:59]")
    for t in range(8):
        A(f"v_mfma_f32_16x16x32_bf16 v[{32+4*t}:{35+4*t}], v[24:27], v[{64+8*t}:{67+8*t}], 0")
    for t in range(8):
        A(f"v_mfma_f32_16x16x32_bf16 v[{32+4*t}:{35+4*t}], v[28:31], v[{68+8*t}:{71+8*t}], v[{32+4*t}:{35+4*t}]")
    S = [f"v{8+t}" for t in range(8)]
    for t in range(8): A(f"v_cndmask_b32 {S[t]}, v{32+4*t}, v{33+4*t}, s[52:53]")
    for t in range(8): A(f"v_cndmask_b32 {S[t]}, {S[t]}, v{34+4*t}, s[54:55]")
    for t in range(8): A(f"v_cndmask_b32 {S[t]}, {S[t]}, v{35+4*t}, s[56:57]")
    dpp("v_add_f32", S, "quad_perm:[1,0,3,2]")
    dpp("v_add_f32", S, "quad_perm:[2,3,0,1]")
    A(f"s_mov_b32 s60, {SCALE:#x}")
    if mimic:
        for p in range(4): A(f"v_cvt_pk_bf16_f32 v{32+p}, {S[2*p]}, {S[2*p+1]}")
        for p in range(4):
            A(f"v_lshlrev_b32 {S[2*p]}, 16, v{32+p}")
            A(f"v_and_b32 {S[2*p+1]}, 0xffff0000, v{32+p}")
        for t in range(8): A(f"v_mul_f32 {S[t]}, s60, {S[t]}")
        for p in range(4): A(f"v_cvt_pk_bf16_f32 v{32+p}, {S[2*p]}, {S[2*p+1]}")
        for p in range(4):
            A(f"v_lshlrev_b32 {S[2*p]}, 16, v{32+p}")
            A(f"v_and_b32 {S[2*p+1]}, 0xffff0000, v{32+p}")
    else:
        for t in range(8): A(f"v_mul_f32 {S[t]}, s60, {S[t]}")
    A(f"v_max3_f32 v32, {S[0]}, {S[1]}, {S[2]}")
    A(f"v_max3_f32 v33, {S[3]}, {S[4]}, {S[5]}")
    A(f"v_max3_f32 v32, v32, {S[6]}, {S[7]}")
    A("v_max_f32 v32, v32, v33")
    dpp("v_max_f32", ["v32"], "row_ror:4")
    dpp("v_max_f32", ["v32"], "row_ror:8")
    butterfly32("v_max_f32", ["v32"], ["v33"])
    A(f"s_mov_b32 s60, {LOG2E:#x}")
    A("v_mul_f32 v33, s60, v32")
    for t in range(8): A(f"v_fma_f32 {S[t]}, {S[t]}, s60, -v33")
    for t in range(8): A(f"v_exp_f32 {S[t]}, {S[t]}")
    A(f"v_add_f32 v34, {S[0]}, {S[1]}"); A(f"v_add_f32 v35, {S[2]}, {S[3]}")
    A(f"v_add_f32 v36, {S[4]}, {S[5]}"); A(f"v_add_f32 v37, {S[6]}, {S[7]}")
    A("v_add_f32 v34, v34, v35"); A("v_add_f32 v36, v36, v37"); A("v_add_f32 v33, v34, v36")
    dpp("v_add_f32", ["v33"], "row_ror:4")
    dpp("v_add_f32", ["v33"], "row_ror:8")
    butterfly32("v_add_f32", ["v33"], ["v34"])
    for t in range(8): A(f"v_mov_b32 v{40+t}, {S[t]}")
    for t in range(8): A(f"v_permlane32_swap_b32 {S[t]}, v{40+t}")
    for t in range(8): A(f"v_cvt_pk_bf16_f32 v{48+t}, {S[t]}, v{40+t}")
    A("s_mov_b32 s60, 0"); A("s_mov_b32 s61, -1")
    for i in range(4): A(f"v_cndmask_b32 v{48+i}, v{48+i}, v{52+i}, s[60:61]")
    A("v_lshlrev_b32 v8, 2, v1")
    A("s_lshl_b32 s62, s31, 8")
    A("v_add_u32 v8, s62, v8")
    A("s_mov_b32 exec_lo, 0x11111111"); A("s_mov_b32 exec_hi, 0x11111111")
    A(f"ds_write_b128 v8, v[48:51] offset:{L_P}")
    A("s_mov_b64 exec, 0x10001")
    A("v_lshrrev_b32 v9, 1, v1")
    A("s_lshl_b32 s62, s31, 4")
    A("v_add_u32 v9, s62, v9")
    A(f"ds_write_b64 v9, v[32:33] offset:{L_ML}")
    A("s_mov_b64 exec, -1")
    signal(C_P)
    stamp()
    A("s_mul_i32 s62, s2, 911"); A("s_lshr_b32 s62, s62, 16")
    A("s_mul_i32 s63, s62, 72"); A("s_sub_u32 s63, s2, s63")
    A("s_mul_i32 s64, s62, 192"); A("s_mul_i32 s65, s31, 24"); A("s_add_u32 s64, s64, s65")
    A("s_mul_i32 s65, s64, 9216"); A("s_lshl_b32 s66, s63, 7"); A("s_add_u32 s65, s65, s66")
    A("v_mul_u32_u24 v4, 55296, v17")
    A("v_and_b32 v5, 7, v16")
    A("v_lshl_add_u32 v4, v5, 4, v4")
    A("v_add_u32 v4, s65, v4")
    A("v_mov_b32 v8, s16"); A("v_mov_b32 v9, s17")
    A("v_mov_b32 v10, s18"); A("v_mov_b32 v11, s19")
    A("v_cndmask_b32 v8, v10, v8, s[58:59]")
    A("v_cndmask_b32 v9, v11, v9, s[58:59]")
    A("v_add_co_u32 v8, vcc, v8, v4")
    A("v_addc_co_u32 v9, vcc, 0, v9, vcc")
    A("s_mov_b32 s46, 9216"); A("s_mov_b32 s47, 0")
    A("v_lshlrev_b32 v12, 4, v16")
    A("s_lshl_b32 s66, s31, 8")
    A("v_add_u32 v12, s66, v12")
    A("v_mul_u32_u24 v13, 4608, v17"); A("v_add_u32 v13, v13, v12")
    A("v_mul_u32_u24 v14, 1152, v17"); A("v_add_u32 v14, v14, v12")
    A("s_lshl_b32 s66, s38, 8"); A("s_lshl_b32 s67, s39, 4"); A("s_add_u32 s66, s66, s67")
    A("s_mul_i32 s66, s66, 1152")
    base_add(48, 12, "s66")
    A("s_mul_i32 s66, s2, 20736")
    base_add(50, 20, "s66")
    for i in range(4): A(f"v_mov_b32 v{120+i}, 0")
    spin(C_VISS, 8, vt="v15")
    lnogu = lab("nogu")
    A(f"s_cmp_ge_u32 s2, {ngu}")
    A(f"s_cbranch_scc1 {lnogu}")
    for j in range(6):
        A(f"global_load_dwordx4 v[{64+4*j}:{67+4*j}], v[8:9], off{NT}")
        if j < 5: A("v_lshl_add_u64 v[8:9], v[8:9], 0, s[46:47]")
    A.label(lnogu)
    lnowo = lab("nowo")
    A("s_cmp_ge_u32 s31, 5")
    A(f"s_cbranch_scc1 {lnowo}")
    A("s_cmp_eq_u32 s31, 4")
    A("s_cselect_b32 s60, 0x00ff00ff, -1")
    A("s_mov_b32 exec_lo, s60"); A("s_mov_b32 exec_hi, s60")
    for j in range(4):
        A(f"global_load_dwordx4 v[{88+4*j}:{91+4*j}], v13, s[48:49] offset:{1152*j}{NT}")
    for j in range(4):
        A(f"global_load_dwordx4 v[{104+4*j}:{107+4*j}], v14, s[50:51]{NT}")
        A("v_add_u32 v14, 4608, v14")
    A("s_mov_b32 exec_hi, 0")
    A("global_load_dwordx4 v[120:123], v14, s[50:51]" + NT)
    A("s_mov_b64 exec, -1")
    A.label(lnowo)
    stamp()
    lgudone = lab("gudone")
    A(f"s_cmp_ge_u32 s2, {ngu}")
    A(f"s_cbranch_scc1 {lgudone}")
    A("v_and_b32 v4, 1, v1")
    A("v_mul_u32_u24 v4, 1152, v4")
    A("v_mul_u32_u24 v5, 12, v17")
    A("v_add_u32 v4, v4, v5")
    A("s_lshl_b32 s64, s64, 1")
    A("v_add_u32 v4, s64, v4")
    A(f"ds_read_b32 v24, v4 offset:{L_XN}")
    A(f"ds_read_b32 v25, v4 offset:{L_XN+4}")
    A(f"ds_read_b32 v26, v4 offset:{L_XN+8}")
    A("v_mov_b32 v27, 0")
    A("v_mov_b32 v11, 0"); A("v_mov_b32 v15, 0")
    lw9 = lab("w9"); lw0 = lab("w0")
    A("s_cmp_ge_u32 s31, 5"); A(f"s_cbranch_scc1 {lw0}")
    A("s_waitcnt vmcnt(9) lgkmcnt(0)"); A(f"s_branch {lw9}")
    A.label(lw0); A("s_waitcnt vmcnt(0) lgkmcnt(0)")
    A.label(lw9)
    stamp()
    def perms(f, setreg, L, npairs):
        c = f >> 1; sel = "s37" if f & 1 else "s36"
        for i in range(npairs):
            A(f"v_perm_b32 v{setreg+i}, v{L[2*i+1]+c}, v{L[2*i]+c}, {sel}")
    Lg = [64 + 4*j for j in range(6)]
    sets = [8, 12]
    perms(0, sets[0], Lg, 3)
    for f in range(8):
        if f + 1 < 8: perms(f+1, sets[(f+1) & 1], Lg, 3)
        s = sets[f & 1]
        A(f"v_mfma_f32_16x16x32_bf16 v[{32+4*f}:{35+4*f}], v[24:27], v[{s}:{s+3}], 0")
    for b in range(2):
        for f in range(8): A(f"v_mov_b32 v{64+8*b+f}, v{32+4*f+b}")
    A("v_lshlrev_b32 v4, 5, v16")
    A("s_lshl_b32 s60, s31, 10")
    A("v_add_u32 v4, s60, v4")
    A("s_mov_b64 exec, 0xffff")
    for b in range(2):
        A(f"ds_write_b128 v4, v[{64+8*b}:{67+8*b}] offset:{L_RG+512*b}")
        A(f"ds_write_b128 v4, v[{68+8*b}:{71+8*b}] offset:{L_RG+512*b+16}")
    A("s_mov_b64 exec, -1")
    signal(C_RG)
    A.label(lgudone)
    stamp()
    A("s_cmp_ge_u32 s31, 5")
    A("s_cbranch_scc1 L_kend")
    A("s_waitcnt vmcnt(0)")
    stamp()
    Lw = [88 + 4*j for j in range(4)]
    Ld = [104 + 4*j for j in range(4)]
    for f in range(8):
        c = f >> 1; sel = "s37" if f & 1 else "s36"
        for i in range(2): A(f"v_perm_b32 v{32+2*f+i}, v{Lw[2*i+1]+c}, v{Lw[2*i]+c}, {sel}")
    for f in range(8):
        c = f >> 1; sel = "s37" if f & 1 else "s36"
        for i in range(2): A(f"v_perm_b32 v{48+4*f+i}, v{Ld[2*i+1]+c}, v{Ld[2*i]+c}, {sel}")
        if f & 1: A(f"v_lshrrev_b32 v{48+4*f+2}, 16, v{120+c}")
        else: A(f"v_and_b32 v{48+4*f+2}, 0xffff, v{120+c}")
        A(f"v_mov_b32 v{48+4*f+3}, 0")
    A("v_and_b32 v4, 1, v1")
    A("v_lshlrev_b32 v4, 2, v4"); A("v_add_u32 v4, v4, v17")
    A("v_lshlrev_b32 v5, 3, v4")
    A("v_lshlrev_b32 v6, 4, v4")
    A("v_and_b32 v7, 1, v17"); A("v_mul_u32_u24 v7, 72, v7"); A("v_add_u32 v7, v7, v16")
    A("s_lshl_b32 s60, s31, 4"); A("v_add_u32 v7, s60, v7")
    A("v_lshlrev_b32 v7, 13, v7")
    A("v_lshrrev_b32 v8, 1, v17"); A("v_lshl_add_u32 v7, v8, 4, v7")
    A("s_lshl_b32 s60, s2, 5"); A(f"s_add_u32 s60, s60, {WS_FS}")
    base_add(44, 26, "s60")
    spin(F_Z, 1, vt="v15")
    A(f"ds_read_b64 v[8:9], v5 offset:{L_ZA}")
    A("s_waitcnt lgkmcnt(0)")
    for f in range(8):
        A(f"v_mfma_f32_16x16x16_bf16 v[{80+4*f}:{83+4*f}], v[8:9], v[{32+2*f}:{33+2*f}], 0")
    stamp()
    spin(F_H, 1, vt="v15")
    A(f"ds_read_b128 v[12:15], v6 offset:{L_HA}")
    A("s_waitcnt lgkmcnt(0)")
    for f in range(8):
        A(f"v_mfma_f32_16x16x32_bf16 v[{80+4*f}:{83+4*f}], v[12:15], v[{48+4*f}:{51+4*f}], v[{80+4*f}:{83+4*f}]")
    A("s_mov_b32 s60, 0xffff0000"); A("s_mov_b32 s61, 0xffff0000")
    A("s_mov_b32 s62, 0"); A("s_mov_b32 s63, -1")
    for i in range(4):
        A(f"v_cndmask_b32 v{32+i}, v{80+4*i}, v{81+4*i}, s[60:61]")
    for i in range(4):
        A(f"v_cndmask_b32 v{36+i}, v{96+4*i}, v{97+4*i}, s[60:61]")
    for i in range(4):
        A(f"v_cndmask_b32 v{32+i}, v{32+i}, v{36+i}, s[62:63]")
    tagset(32)
    A("s_cmp_eq_u32 s31, 4")
    A("s_cselect_b32 s60, 0x00ff00ff, -1")
    A("s_mov_b32 exec_lo, s60"); A("s_mov_b32 exec_hi, s60")
    A("global_store_dwordx4 v7, v[32:35], s[44:45] sc1")
    A("s_mov_b64 exec, -1")
    signal(C_F)
    stamp()
    A.label("L_kend")
    if diag:
        l = lab("kd"); A("s_cmp_lg_u32 s31, 0"); A(f"s_cbranch_scc1 {l}"); stamp_dump(0); A.label(l)
    A("s_endpgm")

    stamp_n[0] = common_stamp
    A.label("L_vwave")
    A("s_cmp_ge_u32 s31, 6")
    A("s_cbranch_scc1 L_v67")
    A("s_lshr_b32 s60, s39, 1"); A("s_mul_i32 s60, s60, 72"); A("s_mul_i32 s61, s31, 12"); A("s_add_u32 s64, s60, s61")
    A("s_lshl_b32 s60, s64, 13"); A("s_lshl_b32 s61, s38, 9"); A("s_add_u32 s60, s60, s61")
    A("s_and_b32 s61, s39, 1"); A("s_lshl_b32 s61, s61, 8"); A("s_add_u32 s60, s60, s61")
    A("v_lshlrev_b32 v4, 13, v17"); A("v_lshl_add_u32 v4, v16, 4, v4")
    A("s_waitcnt lgkmcnt(0)")
    A("s_load_dwordx2 s[28:29], s[26:27], 0")
    base_add(44, 10, "s60")
    for j in range(3):
        A(f"global_load_dwordx4 v[{64+4*j}:{67+4*j}], v4, s[44:45]{NT}")
        if j < 2: base_add(44, 44, 32768)
    A("s_barrier")
    A("v_and_b32 v4, 1, v1"); A("v_mul_u32_u24 v4, 1152, v4")
    A("v_lshl_add_u32 v4, v17, 1, v4")
    A("s_lshl_b32 s60, s64, 1"); A("v_add_u32 v4, s60, v4")
    spin(C_XN, 1, vt="v5")
    A(f"ds_read_u16 v8, v4 offset:{L_XN}")
    A(f"ds_read_u16 v10, v4 offset:{L_XN+8}")
    A(f"ds_read_u16 v9, v4 offset:{L_XN+16}")
    A("s_waitcnt lgkmcnt(0)")
    A("v_lshl_or_b32 v8, v10, 16, v8")
    A("s_waitcnt vmcnt(0)")
    stamp()
    sets = [10, 12]
    def qfrag(f):
        c = f >> 1; s = sets[f & 1]; sel = "s37" if f & 1 else "s36"
        A(f"v_perm_b32 v{s}, v{68+c}, v{64+c}, {sel}")
        if f & 1: A(f"v_lshrrev_b32 v{s+1}, 16, v{72+c}")
        else: A(f"v_and_b32 v{s+1}, 0xffff, v{72+c}")
    qfrag(0)
    for f in range(8):
        if f + 1 < 8: qfrag(f + 1)
        s = sets[f & 1]
        A(f"v_mfma_f32_16x16x16_bf16 v[{32+4*f}:{35+4*f}], v[8:9], v[{s}:{s+1}], 0")
    for b in range(2):
        for f in range(8): A(f"v_mov_b32 v{64+8*b+f}, v{32+4*f+b}")
    A("v_lshlrev_b32 v4, 5, v16")
    A("s_lshl_b32 s60, s31, 10"); A("v_add_u32 v4, s60, v4")
    A("s_mov_b64 exec, 0xffff")
    for b in range(2):
        A(f"ds_write_b128 v4, v[{64+8*b}:{67+8*b}] offset:{L_QP+512*b}")
        A(f"ds_write_b128 v4, v[{68+8*b}:{71+8*b}] offset:{L_QP+512*b+16}")
    A("s_mov_b64 exec, -1")
    arrive(C_QP, "s60")
    A("s_cmp_lg_u32 s60, 5")
    A("s_cbranch_scc1 L_vmain")
    A("v_lshlrev_b32 v4, 4, v1")
    for w in range(6): A(f"ds_read_b128 v[{64+4*w}:{67+4*w}], v4 offset:{L_QP+1024*w}")
    tags_from_epoch()
    for w in range(1, 6):
        for i in range(4): A(f"v_add_f32 v{64+i}, v{64+i}, v{64+4*w+i}")
    tagset(64)
    A("v_lshrrev_b32 v5, 5, v1"); A("v_lshlrev_b32 v5, 13, v5")
    A("v_and_b32 v6, 31, v1"); A("v_lshl_add_u32 v5, v6, 4, v5")
    A("s_lshl_b32 s60, s38, 14"); A("s_lshr_b32 s61, s39, 1"); A("s_lshl_b32 s61, s61, 10"); A("s_add_u32 s60, s60, s61")
    A("s_and_b32 s61, s39, 1"); A("s_lshl_b32 s61, s61, 9"); A("s_add_u32 s60, s60, s61")
    A(f"s_add_u32 s60, s60, {WS_QS}")
    base_add(44, 26, "s60")
    A("global_store_dwordx4 v5, v[64:67], s[44:45] sc1")
    stamp()
    A("s_mov_b32 s43, 1")
    A("s_branch L_vmain2")
    A.label("L_v67")
    A("s_cmp_eq_u32 s31, 7")
    A("s_cbranch_scc1 L_v7")
    A("v_lshlrev_b32 v4, 2, v1")
    A(f"ds_write_b32 v4, {VZ}")
    A(f"ds_write_b32 v4, {VZ} offset:{L_HA}")
    A("s_waitcnt lgkmcnt(0)")
    A("s_load_dwordx2 s[28:29], s[26:27], 0")
    A("s_barrier")
    A("s_branch L_vmain")
    A.label("L_v7")
    A("v_lshrrev_b32 v4, 5, v1"); A("v_mul_u32_u24 v4, 1152, v4")
    A("v_and_b32 v5, 31, v1"); A("v_lshl_add_u32 v4, v5, 2, v4")
    A("s_waitcnt lgkmcnt(0)")
    A("s_load_dwordx2 s[28:29], s[26:27], 0")
    for t in range(9): A(f"global_load_dword v{64+t}, v4, s[4:5] offset:{128*t}")
    A("s_barrier")
    A("s_waitcnt vmcnt(0)")
    stamp()
    X = [f"v{80+i}" for i in range(18)]
    for t in range(9):
        A(f"v_lshlrev_b32 {X[2*t]}, 16, v{64+t}")
        A(f"v_and_b32 {X[2*t+1]}, 0xffff0000, v{64+t}")
    def sum18(vals, dst, sq=False):
        if sq:
            for i in range(9):
                A(f"v_mul_f32 v{32+i}, {vals[2*i]}, {vals[2*i]}")
            for i in range(9):
                A(f"v_fmac_f32 v{32+i}, {vals[2*i+1]}, {vals[2*i+1]}")
        else:
            for i in range(9): A(f"v_add_f32 v{32+i}, {vals[2*i]}, {vals[2*i+1]}")
        for i in range(4): A(f"v_add_f32 v{32+i}, v{32+i}, v{36+i}")
        A("v_add_f32 v32, v32, v33"); A("v_add_f32 v34, v34, v35"); A("v_add_f32 v32, v32, v40")
        A(f"v_add_f32 {dst}, v32, v34")
        dpp("v_add_f32", [dst], "quad_perm:[1,0,3,2]")
        dpp("v_add_f32", [dst], "quad_perm:[2,3,0,1]")
        dpp("v_add_f32", [dst], "row_ror:4")
        dpp("v_add_f32", [dst], "row_ror:8")
        butterfly16("v_add_f32", [dst], ["v33"])
    sum18(X, "v8")
    A("s_mov_b32 s60, 0x3ae38e39")
    A("v_mul_f32 v8, s60, v8")
    D = [f"v{100+i}" for i in range(18)]
    for i in range(18): A(f"v_sub_f32 {D[i]}, {X[i]}, v8")
    sum18(D, "v9", sq=True)
    A("v_mul_f32 v9, s60, v9")
    def bf16r(r):
        A(f"v_cvt_pk_bf16_f32 {r}, {r}, {r}"); A(f"v_and_b32 {r}, 0xffff0000, {r}")
    bf16r("v8"); bf16r("v9")
    A("v_add_f32 v9, 0x3727c5ac, v9")
    bf16r("v9")
    A("v_sqrt_f32 v9, v9")
    bf16r("v9")
    A("v_rcp_f32 v10, v9")
    A("v_fma_f32 v11, -v9, v10, 1.0")
    A("v_fma_f32 v10, v10, v11, v10")
    for i in range(18): A(f"v_sub_f32 {D[i]}, {X[i]}, v8")
    for t in range(9): A(f"v_cvt_pk_bf16_f32 v{32+t}, {D[2*t]}, {D[2*t+1]}")
    for t in range(9):
        A(f"v_lshlrev_b32 {D[2*t]}, 16, v{32+t}")
        A(f"v_and_b32 {D[2*t+1]}, 0xffff0000, v{32+t}")
    for i in range(18): A(f"v_mul_f32 {D[i]}, {D[i]}, v10")
    for t in range(9): A(f"v_cvt_pk_bf16_f32 v{32+t}, {D[2*t]}, {D[2*t+1]}")
    for t in range(9): A(f"ds_write_b32 v4, v{32+t} offset:{L_XN+128*t}")
    signal(C_XN)
    stamp()
    A.label("L_vmain")
    tags_from_epoch()
    A.label("L_vmain2")
    A("s_lshl_b32 s60, s2, 17"); A("s_lshl_b32 s61, s31, 14"); A("s_add_u32 s60, s60, s61")
    base_add(44, 8, "s60")
    A("v_lshlrev_b32 v5, 4, v1")
    spin(C_KISS, 8)
    for i in range(16):
        if i and i % 4 == 0: base_add(44, 44, 4096)
        A(f"global_load_dwordx4 v[{64+4*i}:{67+4*i}], v5, s[44:45] offset:{(i%4)*1024}{NT}")
    signal(C_VISS)
    stamp()
    A("v_and_b32 v6, 1, v1"); A("v_lshlrev_b32 v6, 2, v6"); A("v_add_u32 v6, v6, v17"); A("v_lshlrev_b32 v6, 4, v6")
    A("s_lshl_b32 s60, s31, 8"); A("v_add_u32 v6, s60, v6")
    A("v_and_b32 v7, 7, v1"); A("v_lshlrev_b32 v7, 4, v7"); A("v_bfe_u32 v8, v1, 3, 1"); A("v_lshl_add_u32 v7, v8, 3, v7")
    spin(C_P, 8)
    A(f"ds_read_b128 v[20:23], v6 offset:{L_P}")
    A(f"ds_read_b128 v[24:27], v6 offset:{L_P+128}")
    A(f"ds_read_b64 v[28:29], v7 offset:{L_ML}")
    A("s_waitcnt lgkmcnt(0)")
    stamp()
    A("v_mov_b32 v30, v28")
    dpp("v_max_f32", ["v30"], "quad_perm:[1,0,3,2]")
    dpp("v_max_f32", ["v30"], "quad_perm:[2,3,0,1]")
    dpp("v_max_f32", ["v30"], "row_half_mirror")
    A("v_and_b32 v30, 0xfffff000, v30")
    A("v_sub_f32 v31, v28, v30")
    A(f"v_mul_f32 v31, {LOG2E:#x}, v31")
    A("v_exp_f32 v31, v31")
    A("v_mul_f32 v29, v31, v29")
    dpp("v_add_f32", ["v29"], "quad_perm:[1,0,3,2]")
    dpp("v_add_f32", ["v29"], "quad_perm:[2,3,0,1]")
    dpp("v_add_f32", ["v29"], "row_half_mirror")
    A("s_add_u32 s60, s31, 8")
    A("v_readlane_b32 s52, v31, s31")
    A("v_readlane_b32 s53, v31, s60")
    A("v_readlane_b32 s54, v30, 0"); A("v_readlane_b32 s55, v30, 8")
    A("v_readlane_b32 s56, v29, 0"); A("v_readlane_b32 s57, v29, 8")
    sets = [8, 12]
    for T in range(2):
        A(f"s_waitcnt vmcnt({8 if T == 0 else 0})")
        if T == 1: stamp()
        Lv = [64 + 32*T + 4*j for j in range(8)]
        perms(0, sets[0], Lv, 4)
        for f in range(8):
            if f + 1 < 8: perms(f+1, sets[(f+1) & 1], Lv, 4)
            s = sets[f & 1]
            C = "0" if T == 0 else f"v[{32+4*f}:{35+4*f}]"
            A(f"v_mfma_f32_16x16x32_bf16 v[{32+4*f}:{35+4*f}], v[{20+4*T}:{23+4*T}], v[{s}:{s+3}], {C}")
    for h in range(2):
        for f in range(8): A(f"v_mul_f32 v{64+8*h+f}, s{52+h}, v{32+4*f+h}")
    A("v_lshlrev_b32 v4, 5, v16")
    A("s_lshl_b32 s60, s31, 10"); A("v_add_u32 v4, s60, v4")
    A("s_mov_b64 exec, 0xffff")
    for h in range(2):
        A(f"ds_write_b128 v4, v[{64+8*h}:{67+8*h}] offset:{L_RO+512*h}")
        A(f"ds_write_b128 v4, v[{68+8*h}:{71+8*h}] offset:{L_RO+512*h+16}")
    A("s_mov_b64 exec, -1")
    arrive(C_RO, "s60")
    A("s_cmp_eq_u32 s60, 0")
    A("s_cbranch_scc1 L_vgu")
    A("s_cmp_lg_u32 s60, 7")
    A("s_cbranch_scc1 L_vfinal")
    stamp()
    A("v_lshlrev_b32 v4, 4, v1")
    for w in range(8): A(f"ds_read_b128 v[{64+4*w}:{67+4*w}], v4 offset:{L_RO+1024*w}")
    A("v_lshrrev_b32 v5, 2, v1"); A("v_lshlrev_b32 v5, 10, v5"); A("v_and_b32 v6, 3, v1"); A("v_lshl_add_u32 v5, v6, 4, v5")
    A("s_lshl_b32 s60, s38, 14"); A("s_lshl_b32 s61, s39, 6"); A("s_add_u32 s61, s61, s60"); A(f"s_add_u32 s61, s61, {WS_OS}")
    base_add(44, 26, "s61")
    A("s_waitcnt lgkmcnt(0)")
    for w in range(1, 8):
        for i in range(4): A(f"v_add_f32 v{64+i}, v{64+i}, v{64+4*w+i}")
    tagset(64)
    A("global_store_dwordx4 v5, v[64:67], s[44:45] sc1")
    A("s_mov_b32 s62, 0"); A("s_mov_b32 s63, -1")
    A("v_mov_b32 v68, s54"); A("v_mov_b32 v70, s55"); A("v_cndmask_b32 v68, v68, v70, s[62:63]")
    A("v_mov_b32 v69, s56"); A("v_mov_b32 v70, s57"); A("v_cndmask_b32 v69, v69, v70, s[62:63]")
    A("v_mov_b32 v70, 0"); A("v_mov_b32 v71, 0")
    tagset(68)
    A("v_lshrrev_b32 v7, 5, v1"); A("v_lshlrev_b32 v7, 8, v7")
    A("s_lshl_b32 s60, s38, 9"); A("s_lshl_b32 s61, s39, 4"); A("s_add_u32 s60, s60, s61"); A(f"s_add_u32 s60, s60, {WS_ML}")
    base_add(46, 26, "s60")
    A("s_mov_b32 exec_lo, 1"); A("s_mov_b32 exec_hi, 1")
    A("global_store_dwordx4 v7, v[68:71], s[46:47] sc1")
    A("s_mov_b64 exec, -1")
    stamp()
    A("s_lshl_b32 s60, s38, 14"); A("s_lshl_b32 s61, s39, 10"); A("s_add_u32 s61, s61, s60"); A(f"s_add_u32 s61, s61, {WS_OS}")
    base_add(44, 26, "s61")
    A("s_lshl_b32 s60, s38, 1"); A("s_add_u32 s60, s60, s40"); A("s_lshl_b32 s60, s60, 8"); A(f"s_add_u32 s60, s60, {WS_ML}")
    base_add(46, 26, "s60")
    A("v_lshrrev_b32 v5, 2, v1"); A("v_lshlrev_b32 v5, 4, v5")
    lp = lab("opoll"); ld = lab("odone")
    A.label(lp)
    A("global_load_dwordx4 v[64:67], v4, s[44:45] sc1")
    A("global_load_dwordx4 v[68:71], v5, s[46:47] sc1")
    A("s_waitcnt vmcnt(0)")
    tagcheck(64, "v8", "v9", "v10")
    A("s_mov_b64 s[62:63], vcc")
    tagcheck(68, "v8", "v9", "v10")
    A("s_or_b64 vcc, vcc, s[62:63]")
    A(f"s_cbranch_vccz {ld}")
    A("s_sub_u32 s42, s42, 64")
    A(f"s_cbranch_scc0 {lp}")
    A.label(ld)
    stamp()
    untag(64); untag(68, 2)
    A("v_mov_b32 v8, v68")
    dpp("v_max_f32", ["v8"], "row_ror:4"); dpp("v_max_f32", ["v8"], "row_ror:8")
    butterfly16("v_max_f32", ["v8"], ["v9"])
    A("v_sub_f32 v8, v68, v8"); A(f"v_mul_f32 v8, {LOG2E:#x}, v8"); A("v_exp_f32 v8, v8")
    A("v_mul_f32 v69, v8, v69")
    for i in range(4): A(f"v_mul_f32 v{64+i}, v8, v{64+i}")
    z = ["v64", "v65", "v66", "v67", "v69"]
    dpp("v_add_f32", z, "row_ror:4"); dpp("v_add_f32", z, "row_ror:8")
    butterfly16("v_add_f32", z, ["v8", "v9", "v10", "v11", "v12"])
    A("v_rcp_f32 v8, v69")
    A("v_fma_f32 v9, -v69, v8, 1.0"); A("v_fma_f32 v8, v8, v9, v8")
    for i in range(4): A(f"v_mul_f32 v{64+i}, v{64+i}, v8")
    A("v_cvt_pk_bf16_f32 v8, v64, v65"); A("v_cvt_pk_bf16_f32 v9, v66, v67")
    A("v_lshrrev_b32 v10, 5, v1"); A("v_lshlrev_b32 v10, 2, v10"); A("v_and_b32 v11, 3, v1"); A("v_add_u32 v10, v10, v11")
    A("v_lshlrev_b32 v10, 3, v10")
    A("s_mov_b32 exec_lo, 0xf"); A("s_mov_b32 exec_hi, 0xf")
    A(f"ds_write_b64 v10, v[8:9] offset:{L_ZA}")
    A("s_mov_b64 exec, -1")
    signal(F_Z)
    stamp()
    A("s_branch L_vfinal")
    A.label("L_vgu")
    lnp = lab("nopub")
    A(f"s_cmp_ge_u32 s2, {ngu}")
    A(f"s_cbranch_scc1 {lnp}")
    A("s_mul_i32 s62, s2, 911"); A("s_lshr_b32 s62, s62, 16"); A("s_mul_i32 s63, s62, 72"); A("s_sub_u32 s63, s2, s63")
    A("s_mul_i32 s60, s62, 73728"); A("s_lshl_b32 s61, s63, 8"); A("s_add_u32 s60, s60, s61"); A(f"s_add_u32 s60, s60, {WS_GS}")
    base_add(44, 26, "s60")
    A("v_mul_u32_u24 v5, 18432, v17"); A("v_lshl_add_u32 v5, v16, 4, v5")
    A("v_and_b32 v6, 1, v17"); A("v_lshlrev_b32 v6, 9, v6"); A("v_lshrrev_b32 v7, 1, v17"); A("v_lshl_add_u32 v6, v7, 8, v6")
    A("v_lshl_add_u32 v6, v16, 4, v6")
    spin(C_RG, 8)
    for w in range(8): A(f"ds_read_b128 v[{64+4*w}:{67+4*w}], v6 offset:{L_RG+1024*w}")
    A("s_waitcnt lgkmcnt(0)")
    for w in range(1, 8):
        for i in range(4): A(f"v_add_f32 v{64+i}, v{64+i}, v{64+4*w+i}")
    tagset(64)
    A("global_store_dwordx4 v5, v[64:67], s[44:45] sc1")
    A.label(lnp)
    stamp()
    A("s_mul_i32 s60, s2, 18"); A("s_and_b32 s64, s60, 3"); A("s_lshr_b32 s60, s60, 2"); A("s_lshl_b32 s60, s60, 4")
    A(f"s_add_u32 s60, s60, {WS_GS}")
    base_add(44, 26, "s60")
    A("v_lshrrev_b32 v5, 2, v1"); A("v_mul_u32_u24 v5, 18432, v5"); A("v_and_b32 v6, 3, v1"); A("v_lshl_add_u32 v5, v6, 4, v5")
    A("v_mov_b32 v64, 0"); A("v_mov_b32 v65, 0"); A("v_mov_b32 v66, 0"); A("v_mov_b32 v67, 0")
    A("v_mov_b32 v68, 0"); A("v_mov_b32 v69, 0"); A("v_mov_b32 v70, 0"); A("v_mov_b32 v71, 0")
    lp = lab("gpoll"); ld = lab("gdone")
    A.label(lp)
    A("s_mov_b32 exec_hi, 0x0000ffff")
    A("global_load_dwordx4 v[64:67], v5, s[44:45] sc1")
    A("s_mov_b32 exec_lo, 0x11111111"); A("s_mov_b32 exec_hi, 0x00001111")
    A("global_load_dwordx4 v[68:71], v5, s[44:45] offset:64 sc1")
    A("s_waitcnt vmcnt(0)")
    tagcheck(68, "v8", "v9", "v10")
    A("s_mov_b64 s[62:63], vcc")
    A("s_mov_b32 exec_lo, -1"); A("s_mov_b32 exec_hi, 0x0000ffff")
    tagcheck(64, "v8", "v9", "v10")
    A("s_or_b64 vcc, vcc, s[62:63]")
    A("s_mov_b64 exec, -1")
    A(f"s_cbranch_vccz {ld}")
    A("s_sub_u32 s42, s42, 64")
    A(f"s_cbranch_scc0 {lp}")
    A.label(ld)
    stamp()
    untag(64, 8)
    gv = [f"v{64+i}" for i in range(8)]
    tv = [f"v{72+i}" for i in range(8)]
    butterfly16("v_add_f32", gv, tv)
    butterfly32("v_add_f32", gv, tv)
    for p in range(4): A(f"v_cvt_pk_bf16_f32 v{72+p}, v{64+2*p}, v{65+2*p}")
    for p in range(4):
        A(f"v_lshlrev_b32 v{64+2*p}, 16, v{72+p}"); A(f"v_and_b32 v{65+2*p}, 0xffff0000, v{72+p}")
    for i in range(8):
        A(f"v_mul_f32_dpp v{72+i}, v{64+i}, v{64+i} row_ror:8 row_mask:0xf bank_mask:0xf")
    for p in range(4): A(f"v_cvt_pk_bf16_f32 v{64+p}, v{72+2*p}, v{73+2*p}")
    A("v_bfe_u32 v8, v1, 2, 1"); A("v_lshlrev_b32 v8, 6, v8")
    A("v_lshlrev_b32 v9, 2, v6"); A("v_subrev_u32 v9, s64, v9")
    A("s_mov_b64 exec, 0xff")
    for s_ in range(2):
        for i in range(4):
            A(f"v_add_u32 v10, {16*s_+i}, v9")
            A("v_and_b32 v11, 3, v10"); A("v_lshlrev_b32 v11, 4, v11")
            A("v_lshrrev_b32 v12, 2, v10"); A("v_lshl_add_u32 v11, v12, 1, v11"); A("v_add_u32 v11, v11, v8")
            A("v_cmp_gt_u32 vcc, 18, v10")
            if s_ == 1:
                A("s_and_b64 vcc, vcc, 0x11")
            A(f"v_mov_b32 v12, {L_DUMMY-L_HA}")
            A("v_cndmask_b32 v11, v12, v11, vcc")
            src = f"v{64 + 2*s_ + (i >> 1)}"
            if i & 1: A(f"ds_write_b16_d16_hi v11, {src} offset:{L_HA}")
            else: A(f"ds_write_b16 v11, {src} offset:{L_HA}")
    A("s_mov_b64 exec, -1")
    signal(F_H)
    stamp()
    A.label("L_vfinal")
    A("s_cmp_ge_u32 s2, 144")
    A("s_cbranch_scc1 L_vend")
    A("s_lshl_b32 s60, s2, 13"); A("s_lshl_b32 s61, s31, 10"); A("s_add_u32 s60, s60, s61"); A(f"s_add_u32 s60, s60, {WS_FS}")
    base_add(44, 26, "s60")
    A("v_lshlrev_b32 v5, 4, v1")
    A("s_cmp_ge_u32 s2, 72"); A("s_cselect_b32 s60, 72, 0"); A("s_cselect_b32 s61, 1152, 0")
    A("s_sub_u32 s60, s2, s60"); A("s_lshl_b32 s60, s60, 4"); A("s_add_u32 s64, s60, s61")
    A("v_and_b32 v6, 1, v1"); A("v_lshlrev_b32 v6, 3, v6"); A("v_add_u32 v6, s64, v6")
    A("global_load_dwordx2 v[30:31], v6, s[4:5]")
    spin(C_F, 5)
    stamp()
    lp = lab("fpoll"); ld = lab("fdone")
    A.label(lp)
    A("global_load_dwordx4 v[64:67], v5, s[44:45] sc1")
    A("s_waitcnt vmcnt(0)")
    tagcheck(64, "v8", "v9", "v10")
    A(f"s_cbranch_vccz {ld}")
    A("s_sub_u32 s42, s42, 64")
    A(f"s_cbranch_scc0 {lp}")
    A.label(ld)
    stamp()
    untag(64)
    z = ["v64", "v65", "v66", "v67"]
    dpp("v_add_f32", z, "quad_perm:[2,3,0,1]")
    dpp("v_add_f32", z, "row_ror:4"); dpp("v_add_f32", z, "row_ror:8")
    butterfly16("v_add_f32", z, ["v8", "v9", "v10", "v11"])
    butterfly32("v_add_f32", z, ["v8", "v9", "v10", "v11"])
    A("v_and_b32 v7, 1, v1"); A("v_lshlrev_b32 v7, 4, v7")
    A("s_lshl_b32 s60, s31, 5"); A("v_add_u32 v8, s60, v7")
    A("s_mov_b64 exec, 3")
    A(f"ds_write_b128 v8, v[64:67] offset:{L_FR}")
    A("s_mov_b64 exec, -1")
    arrive(C_FR, "s60")
    A("s_cmp_lg_u32 s60, 7")
    A("s_cbranch_scc1 L_vend")
    for w in range(8): A(f"ds_read_b128 v[{64+4*w}:{67+4*w}], v7 offset:{L_FR+32*w}")
    A("s_waitcnt lgkmcnt(0)")
    for w in range(1, 8):
        for i in range(4): A(f"v_add_f32 v{64+i}, v{64+i}, v{64+4*w+i}")
    A("v_lshlrev_b32 v8, 16, v30"); A("v_and_b32 v9, 0xffff0000, v30")
    A("v_lshlrev_b32 v10, 16, v31"); A("v_and_b32 v11, 0xffff0000, v31")
    for i in range(4): A(f"v_add_f32 v{64+i}, v{64+i}, v{8+i}")
    A("v_cvt_pk_bf16_f32 v8, v64, v65"); A("v_cvt_pk_bf16_f32 v9, v66, v67")
    A("s_mov_b64 exec, 3")
    A("global_store_dwordx2 v6, v[8:9], s[22:23]")
    A("s_cmp_lg_u32 s2, 0")
    A("s_cbranch_scc1 L_vend2")
    A("s_mov_b64 exec, 1")
    A("v_mov_b32 v8, s28")
    A(f"global_store_dword {VZ}, v8, s[26:27] sc1")
    A.label("L_vend2")
    A("s_mov_b64 exec, -1")
    stamp()
    A.label("L_vend")
    if diag:
        l = lab("vd"); l2 = lab("vd2")
        A("s_cmp_eq_u32 s31, 0"); A(f"s_cbranch_scc0 {l}");
        A.label(l)
    A.label("L_end")
    A("s_endpgm")
    lines, nn = A.finish()
    hdr = open("cdna_kernels/" + NAME + ".s.ref").read().split("; Override launch geometry")[0]
    out = hdr
    out += f"; @launch grid=(256,1,1) block=(1024,1,1) lds={LDS_BYTES}\n"
    out += f""".amdgcn_target "amdgcn-amd-amdhsa--gfx950"
.text
.globl {NAME}_kernel
.p2align 8
.type {NAME}_kernel,@function
{NAME}_kernel:
"""
    out += "\n".join(("    " + l) if not l.endswith(":") else l for l in lines)
    out += f"""
.section .rodata,"a"
.p2align 6
.amdhsa_kernel {NAME}_kernel
  .amdhsa_next_free_vgpr 128
  .amdhsa_next_free_sgpr 102
  .amdhsa_accum_offset 128
  .amdhsa_group_segment_fixed_size 0
  .amdhsa_kernarg_size 96
  .amdhsa_user_sgpr_count 2
  .amdhsa_user_sgpr_kernarg_segment_ptr 1
  .amdhsa_system_sgpr_workgroup_id_x 1
.end_amdhsa_kernel
"""
    return out, nn

if __name__ == "__main__":
    o, nn = gen()
    open("k1.s", "w").write(o)
    print("nops inserted:", nn, "lines:", o.count("\n"))
```

```python
import sys
from asmlib import Asm
NAME = "parallel_sum__gqa_block_cached__glu_gated_bilinear__decode"

WS_EPOCH = 0
WS_QS = 0x10000
WS_OS = 0x50000
WS_ML = 0x90000
WS_GS = 0xA0000
WS_FS = 0x100000
WS_STAMP = 0x800000
C_XN, C_QP, C_KISS, C_Q, C_P, C_VISS, C_RO, C_RG, F_Z, F_H, C_F, C_FR = [4 * i for i in range(12)]
L_XN = 256
L_Q = 2560
L_P = 3072
L_ML = 5120
L_ZA = 5248
L_HA = 5312
L_DUMMY = 5440
L_FR = 6400
L_QP = 8192
L_RO = 16384
L_RG = 24576
LDS_BYTES = 32768
LOG2E = 0x3FB8AA3B
SCALE = 0x3DB504F3
NT = " nt"

def gen(diag=False, mimic=True, ngu=216):
    A = Asm()
    uid = [0]
    def lab(p):
        uid[0] += 1; return f"L_{p}_{uid[0]}"
    VZ, VONE, VMASK = "v2", "v3", "v19"
    def stamp(i):
        if not diag: return
        assert i < 16
        A(f"s_memrealtime s[{70+2*i}:{71+2*i}]")
    def stamp_dump(role=None):
        if not diag: return
        if diag == 2:
            lskip = lab("nodump")
            A("s_cmp_lg_u32 s2, 0"); A(f"s_cbranch_scc1 {lskip}")
            A("s_waitcnt lgkmcnt(0)")
            A("s_mov_b64 exec, 1")
            sel = {"K": [(1,2),(2,3),(3,4),(5,7),(7,8),(9,10)], "V": [(2,13),(3,5),(5,6),(8,9),(11,11),(12,12)]}[role]
            A("s_not_b32 s60, s70"); A("v_mov_b32 v6, s60"); A(f"global_atomic_umax {VZ}, v6, s[24:25]")
            A("v_mov_b32 v7, s70"); A(f"global_atomic_umax {VZ}, v7, s[24:25] offset:4")
            for k, (st, slot) in enumerate(sel):
                A(f"v_mov_b32 v{8+k}, s{70+2*st}"); A(f"global_atomic_umax {VZ}, v{8+k}, s[24:25] offset:{4*slot}")
            A("s_mov_b64 exec, -1")
            A.label(lskip)
            return
        A("s_waitcnt lgkmcnt(0)")
        A("s_mov_b64 exec, 1")
        A(f"s_lshl_b32 s60, s2, 12"); A("s_lshl_b32 s61, s30, 8"); A("s_add_u32 s60, s60, s61")
        A(f"s_add_u32 s60, s60, {WS_STAMP}")
        A("v_mov_b32 v4, s60")
        for i in range(16):
            A(f"v_mov_b32 v6, s{70+2*i}"); A(f"v_mov_b32 v7, s{71+2*i}")
            A(f"global_store_dwordx2 v4, v[6:7], s[26:27] offset:{8*i}")
            A("s_nop 1")
        A("s_mov_b64 exec, -1")

    def signal(cnt):
        A("s_waitcnt lgkmcnt(0)")
        A("s_mov_b64 exec, 1")
        A(f"ds_add_u32 {VZ}, {VONE} offset:{cnt}")
        A("s_mov_b64 exec, -1")
    def arrive(cnt, sdst, vt="v4"):
        A("s_waitcnt lgkmcnt(0)")
        A("s_mov_b64 exec, 1")
        A(f"ds_add_rtn_u32 {vt}, {VZ}, {VONE} offset:{cnt}")
        A("s_mov_b64 exec, -1")
        A("s_waitcnt lgkmcnt(0)")
        A(f"v_readfirstlane_b32 {sdst}, {vt}")
    def spin(cnt, n, vt="v4", sleep=1):
        l = lab("spin"); d = lab("spind")
        A.label(l)
        A(f"ds_read_b32 {vt}, {VZ} offset:{cnt}")
        A("s_waitcnt lgkmcnt(0)")
        A(f"v_readfirstlane_b32 s60, {vt}")
        A(f"s_cmp_ge_u32 s60, {n}")
        A(f"s_cbranch_scc1 {d}")
        A("s_sub_u32 s42, s42, 1")
        A(f"s_cbranch_scc1 {d}")
        if sleep: A(f"s_sleep {sleep}")
        A(f"s_branch {l}")
        A.label(d)
    def tagcheck(r, vt0, vt1, vt2):
        A(f"v_xor_b32 {vt0}, s32, v{r}")
        A(f"v_xor_b32 {vt1}, s33, v{r+1}")
        A(f"v_xor_b32 {vt2}, s34, v{r+2}")
        A(f"v_or3_b32 {vt0}, {vt0}, {vt1}, {vt2}")
        A(f"v_xor_b32 {vt1}, s35, v{r+3}")
        A(f"v_or_b32 {vt0}, {vt0}, {vt1}")
        A(f"v_and_b32 {vt0}, {VMASK}, {vt0}")
        A(f"v_cmp_ne_u32 vcc, 0, {vt0}")
    def tagset(r):
        for i in range(4):
            A(f"v_bfi_b32 v{r+i}, {VMASK}, s{32+i}, v{r+i}")
    def untag(r, n=4):
        for i in range(n):
            A(f"v_and_b32 v{r+i}, 0xfffff000, v{r+i}")
    def tags_from_epoch():
        A("s_waitcnt lgkmcnt(0)")
        A("s_add_u32 s28, s28, 1")
        A("s_and_b32 s32, s28, 0xfff")
        A("s_bfe_u32 s33, s28, 0xc000c")
        A("s_lshr_b64 s[60:61], s[28:29], 24"); A("s_and_b32 s34, s60, 0xfff")
        A("s_lshr_b64 s[60:61], s[28:29], 36"); A("s_and_b32 s35, s60, 0xfff")
    def butterfly16(op, regs, tmp):
        for r, t in zip(regs, tmp): A(f"v_mov_b32 {t}, {r}")
        for r, t in zip(regs, tmp): A(f"v_permlane16_swap_b32 {r}, {t}")
        for r, t in zip(regs, tmp): A(f"{op} {r}, {r}, {t}")
    def butterfly32(op, regs, tmp):
        for r, t in zip(regs, tmp): A(f"v_mov_b32 {t}, {r}")
        for r, t in zip(regs, tmp): A(f"v_permlane32_swap_b32 {r}, {t}")
        for r, t in zip(regs, tmp): A(f"{op} {r}, {r}, {t}")
    def dpp(op, regs, ctrl):
        for r in regs: A(f"{op}_dpp {r}, {r}, {r} {ctrl} row_mask:0xf bank_mask:0xf")
    def base_add(dst, src, off_sreg_or_imm):
        A(f"s_add_u32 s{dst}, s{src}, {off_sreg_or_imm}")
        A(f"s_addc_u32 s{dst+1}, s{src+1}, 0")

    A("s_cmp_ge_u32 s2, 256")
    A("s_cbranch_scc1 L_end")
    A("s_load_dwordx16 s[4:19], s[0:1], 0")
    A("s_load_dwordx8 s[20:27], s[0:1], 64")
    if diag:
        A("s_memrealtime s[70:71]")
        for i in range(72, 102): A(f"s_mov_b32 s{i}, 0")
    A("v_lshrrev_b32 v4, 6, v0")
    A("v_and_b32 v1, 63, v0")
    A("v_readfirstlane_b32 s30, v4")
    A("s_lshr_b32 s40, s2, 7")
    A("s_bfe_u32 s38, s2, 0x40003")
    A("s_and_b32 s41, s2, 7")
    A("s_lshl_b32 s39, s40, 3")
    A("s_or_b32 s39, s39, s41")
    A("s_mov_b32 s36, 0x05040100")
    A("s_mov_b32 s37, 0x07060302")
    A("s_mov_b32 s42, 0x200000")
    A(f"v_mov_b32 {VZ}, 0")
    A(f"v_mov_b32 {VONE}, 1")
    A(f"v_mov_b32 {VMASK}, 0xfff")
    A("s_and_b32 s31, s30, 7")
    A("v_and_b32 v16, 15, v1")
    A("v_lshrrev_b32 v17, 4, v1")
    A("s_cmp_ge_u32 s30, 8")
    A("s_cbranch_scc1 L_vwave")

    A.c("K wave: keys [64w, 64w+64) of this workgroup's 512")
    A("v_bfe_u32 v4, v1, 2, 2")
    A("v_lshlrev_b32 v5, 8, v4")
    A("v_lshl_or_b32 v5, v17, 6, v5")
    A("v_and_b32 v4, 3, v1")
    A("v_lshl_or_b32 v5, v4, 4, v5")
    A("s_lshl_b32 s60, s2, 17")
    A("s_lshl_b32 s61, s31, 14")
    A("s_add_u32 s60, s60, s61")
    A("v_lshrrev_b32 v6, 3, v1")
    A("v_lshlrev_b32 v6, 10, v6")
    A("v_and_b32 v7, 7, v1")
    A("v_lshl_or_b32 v6, v7, 4, v6")
    A("s_lshl_b32 s62, s31, 7")
    A("v_add_u32 v6, s62, v6")
    A("s_waitcnt lgkmcnt(0)")
    A("s_load_dwordx2 s[28:29], s[26:27], 0")
    base_add(44, 6, "s60")
    A("s_barrier")
    for i in range(16):
        if i and i % 4 == 0:
            base_add(44, 44, 4096)
        A(f"global_load_dwordx4 v[{64+4*i}:{67+4*i}], v5, s[44:45] offset:{(i%4)*1024}{NT}")
    A("s_lshl_b32 s60, s38, 1"); A("s_add_u32 s60, s60, s40"); A("s_lshl_b32 s60, s60, 13")
    A(f"s_add_u32 s60, s60, {WS_QS}")
    base_add(46, 26, "s60")
    A("global_load_dwordx4 v[20:23], v6, s[46:47] sc1")
    stamp(1)
    signal(C_KISS)
    tags_from_epoch()
    lp = lab("qpoll"); ld = lab("qdone")
    A.label(lp)
    A("s_waitcnt vmcnt(0)")
    tagcheck(20, "v8", "v9", "v10")
    A(f"s_cbranch_vccz {ld}")
    A("s_sub_u32 s42, s42, 64")
    A(f"s_cbranch_scc1 {ld}")
    A("global_load_dwordx4 v[20:23], v6, s[46:47] sc1")
    A(f"s_branch {lp}")
    A.label(ld)
    stamp(2)
    untag(20)
    q = ["v20", "v21", "v22", "v23"]
    dpp("v_add_f32", q, "row_ror:8")
    butterfly16("v_add_f32", q, ["v8", "v9", "v10", "v11"])
    butterfly32("v_add_f32", q, ["v8", "v9", "v10", "v11"])
    A("v_cvt_pk_bf16_f32 v8, v20, v21")
    A("v_cvt_pk_bf16_f32 v9, v22, v23")
    A("v_lshlrev_b32 v10, 3, v7")
    A("s_lshl_b32 s60, s31, 6")
    A("v_add_u32 v10, s60, v10")
    A("s_mov_b64 exec, 0xff")
    A(f"ds_write_b64 v10, v[8:9] offset:{L_Q}")
    A("s_mov_b64 exec, -1")
    signal(C_Q)
    for (r, val) in ((52, 0x22222222), (54, 0x44444444), (56, 0x88888888)):
        A(f"s_mov_b32 s{r}, {val:#x}"); A(f"s_mov_b32 s{r+1}, {val:#x}")
    A("s_mov_b32 s58, 0x00ff00ff"); A("s_mov_b32 s59, 0x00ff00ff")
    A("v_bfe_u32 v8, v16, 2, 1")
    A("v_lshlrev_b32 v8, 8, v8")
    A("v_lshl_or_b32 v8, v17, 6, v8")
    A("v_and_b32 v9, 3, v16")
    A("v_lshl_or_b32 v8, v9, 4, v8")
    spin(C_Q, 8)
    A(f"ds_read_b128 v[12:15], v8 offset:{L_Q}")
    A("s_waitcnt lgkmcnt(0)")
    for i in range(4):
        A(f"v_cndmask_b32 v{24+i}, 0, v{12+i}, s[58:59]")
    for i in range(4):
        A(f"v_cndmask_b32 v{28+i}, v{12+i}, 0, s[58:59]")
    for t in range(8):
        A(f"v_mfma_f32_16x16x32_bf16 v[{32+4*t}:{35+4*t}], v[24:27], v[{64+8*t}:{67+8*t}], 0")
    for t in range(8):
        A(f"v_mfma_f32_16x16x32_bf16 v[{32+4*t}:{35+4*t}], v[28:31], v[{68+8*t}:{71+8*t}], v[{32+4*t}:{35+4*t}]")
    S = [f"v{8+t}" for t in range(8)]
    for t in range(8): A(f"v_cndmask_b32 {S[t]}, v{32+4*t}, v{33+4*t}, s[52:53]")
    for t in range(8): A(f"v_cndmask_b32 {S[t]}, {S[t]}, v{34+4*t}, s[54:55]")
    for t in range(8): A(f"v_cndmask_b32 {S[t]}, {S[t]}, v{35+4*t}, s[56:57]")
    dpp("v_add_f32", S, "quad_perm:[1,0,3,2]")
    dpp("v_add_f32", S, "quad_perm:[2,3,0,1]")
    A(f"s_mov_b32 s60, {SCALE:#x}")
    if mimic:
        for p in range(4): A(f"v_cvt_pk_bf16_f32 v{32+p}, {S[2*p]}, {S[2*p+1]}")
        for p in range(4):
            A(f"v_lshlrev_b32 {S[2*p]}, 16, v{32+p}")
            A(f"v_and_b32 {S[2*p+1]}, 0xffff0000, v{32+p}")
        for t in range(8): A(f"v_mul_f32 {S[t]}, s60, {S[t]}")
        for p in range(4): A(f"v_cvt_pk_bf16_f32 v{32+p}, {S[2*p]}, {S[2*p+1]}")
        for p in range(4):
            A(f"v_lshlrev_b32 {S[2*p]}, 16, v{32+p}")
            A(f"v_and_b32 {S[2*p+1]}, 0xffff0000, v{32+p}")
    else:
        for t in range(8): A(f"v_mul_f32 {S[t]}, s60, {S[t]}")
    A(f"v_max3_f32 v32, {S[0]}, {S[1]}, {S[2]}")
    A(f"v_max3_f32 v33, {S[3]}, {S[4]}, {S[5]}")
    A(f"v_max3_f32 v32, v32, {S[6]}, {S[7]}")
    A("v_max_f32 v32, v32, v33")
    dpp("v_max_f32", ["v32"], "row_ror:4")
    dpp("v_max_f32", ["v32"], "row_ror:8")
    butterfly32("v_max_f32", ["v32"], ["v33"])
    A(f"s_mov_b32 s60, {LOG2E:#x}")
    A("v_mul_f32 v33, s60, v32")
    for t in range(8): A(f"v_fma_f32 {S[t]}, {S[t]}, s60, -v33")
    for t in range(8): A(f"v_exp_f32 {S[t]}, {S[t]}")
    A(f"v_add_f32 v34, {S[0]}, {S[1]}"); A(f"v_add_f32 v35, {S[2]}, {S[3]}")
    A(f"v_add_f32 v36, {S[4]}, {S[5]}"); A(f"v_add_f32 v37, {S[6]}, {S[7]}")
    A("v_add_f32 v34, v34, v35"); A("v_add_f32 v36, v36, v37"); A("v_add_f32 v33, v34, v36")
    dpp("v_add_f32", ["v33"], "row_ror:4")
    dpp("v_add_f32", ["v33"], "row_ror:8")
    butterfly32("v_add_f32", ["v33"], ["v34"])
    for t in range(8): A(f"v_mov_b32 v{40+t}, {S[t]}")
    for t in range(8): A(f"v_permlane32_swap_b32 {S[t]}, v{40+t}")
    for t in range(8): A(f"v_cvt_pk_bf16_f32 v{48+t}, {S[t]}, v{40+t}")
    A("s_mov_b32 s60, 0"); A("s_mov_b32 s61, -1")
    for i in range(4): A(f"v_cndmask_b32 v{48+i}, v{48+i}, v{52+i}, s[60:61]")
    A("v_lshlrev_b32 v8, 2, v1")
    A("s_lshl_b32 s62, s31, 8")
    A("v_add_u32 v8, s62, v8")
    A("s_mov_b32 exec_lo, 0x11111111"); A("s_mov_b32 exec_hi, 0x11111111")
    A(f"ds_write_b128 v8, v[48:51] offset:{L_P}")
    A("s_mov_b64 exec, 0x10001")
    A("v_lshrrev_b32 v9, 1, v1")
    A("s_lshl_b32 s62, s31, 4")
    A("v_add_u32 v9, s62, v9")
    A(f"ds_write_b64 v9, v[32:33] offset:{L_ML}")
    A("s_mov_b64 exec, -1")
    signal(C_P)
    stamp(3)
    A("s_mul_i32 s62, s2, 911"); A("s_lshr_b32 s62, s62, 16")
    A("s_mul_i32 s63, s62, 72"); A("s_sub_u32 s63, s2, s63")
    A("s_mul_i32 s64, s62, 192"); A("s_mul_i32 s65, s31, 24"); A("s_add_u32 s64, s64, s65")
    A("s_mul_i32 s65, s64, 9216"); A("s_lshl_b32 s66, s63, 7"); A("s_add_u32 s65, s65, s66")
    A("v_mul_u32_u24 v4, 55296, v17")
    A("v_and_b32 v5, 7, v16")
    A("v_lshl_add_u32 v4, v5, 4, v4")
    A("v_add_u32 v4, s65, v4")
    A("v_mov_b32 v8, s16"); A("v_mov_b32 v9, s17")
    A("v_mov_b32 v10, s18"); A("v_mov_b32 v11, s19")
    A("v_cndmask_b32 v8, v10, v8, s[58:59]")
    A("v_cndmask_b32 v9, v11, v9, s[58:59]")
    A("v_add_co_u32 v8, vcc, v8, v4")
    A("v_addc_co_u32 v9, vcc, 0, v9, vcc")
    A("s_mov_b32 s46, 9216"); A("s_mov_b32 s47, 0")
    A("v_lshlrev_b32 v12, 4, v16")
    A("s_lshl_b32 s66, s31, 8")
    A("v_add_u32 v12, s66, v12")
    A("v_mul_u32_u24 v13, 4608, v17"); A("v_add_u32 v13, v13, v12")
    A("v_mul_u32_u24 v14, 1152, v17"); A("v_add_u32 v14, v14, v12")
    A("s_lshl_b32 s66, s38, 8"); A("s_lshl_b32 s67, s39, 4"); A("s_add_u32 s66, s66, s67")
    A("s_mul_i32 s66, s66, 1152")
    base_add(48, 12, "s66")
    A("s_mul_i32 s66, s2, 20736")
    base_add(50, 20, "s66")
    for i in range(4): A(f"v_mov_b32 v{120+i}, 0")
    spin(C_VISS, 8, vt="v15")
    lnogu = lab("nogu")
    A(f"s_cmp_ge_u32 s2, {ngu}")
    A(f"s_cbranch_scc1 {lnogu}")
    for j in range(6):
        A(f"global_load_dwordx4 v[{64+4*j}:{67+4*j}], v[8:9], off{NT}")
        if j < 5: A("v_lshl_add_u64 v[8:9], v[8:9], 0, s[46:47]")
    A.label(lnogu)
    lnowo = lab("nowo")
    A("s_cmp_ge_u32 s31, 5")
    A(f"s_cbranch_scc1 {lnowo}")
    A("s_cmp_eq_u32 s31, 4")
    A("s_cselect_b32 s60, 0x00ff00ff, -1")
    A("s_mov_b32 exec_lo, s60"); A("s_mov_b32 exec_hi, s60")
    for j in range(4):
        A(f"global_load_dwordx4 v[{88+4*j}:{91+4*j}], v13, s[48:49] offset:{1152*j}{NT}")
    for j in range(4):
        A(f"global_load_dwordx4 v[{104+4*j}:{107+4*j}], v14, s[50:51]{NT}")
        A("v_add_u32 v14, 4608, v14")
    A("s_mov_b32 exec_hi, 0")
    A("global_load_dwordx4 v[120:123], v14, s[50:51]" + NT)
    A("s_mov_b64 exec, -1")
    A.label(lnowo)
    stamp(4)
    lgudone = lab("gudone")
    A(f"s_cmp_ge_u32 s2, {ngu}")
    A(f"s_cbranch_scc1 {lgudone}")
    A("v_and_b32 v4, 1, v1")
    A("v_mul_u32_u24 v4, 1152, v4")
    A("v_mul_u32_u24 v5, 12, v17")
    A("v_add_u32 v4, v4, v5")
    A("s_lshl_b32 s64, s64, 1")
    A("v_add_u32 v4, s64, v4")
    A(f"ds_read_b32 v24, v4 offset:{L_XN}")
    A(f"ds_read_b32 v25, v4 offset:{L_XN+4}")
    A(f"ds_read_b32 v26, v4 offset:{L_XN+8}")
    A("v_mov_b32 v27, 0")
    A("v_mov_b32 v11, 0"); A("v_mov_b32 v15, 0")
    lw9 = lab("w9"); lw0 = lab("w0")
    A("s_cmp_ge_u32 s31, 5"); A(f"s_cbranch_scc1 {lw0}")
    A("s_waitcnt vmcnt(9) lgkmcnt(0)"); A(f"s_branch {lw9}")
    A.label(lw0); A("s_waitcnt vmcnt(0) lgkmcnt(0)")
    A.label(lw9)
    stamp(5)
    def perms(f, setreg, L, npairs):
        c = f >> 1; sel = "s37" if f & 1 else "s36"
        for i in range(npairs):
            A(f"v_perm_b32 v{setreg+i}, v{L[2*i+1]+c}, v{L[2*i]+c}, {sel}")
    Lg = [64 + 4*j for j in range(6)]
    sets = [8, 12]
    perms(0, sets[0], Lg, 3)
    for f in range(8):
        if f + 1 < 8: perms(f+1, sets[(f+1) & 1], Lg, 3)
        s = sets[f & 1]
        A(f"v_mfma_f32_16x16x32_bf16 v[{32+4*f}:{35+4*f}], v[24:27], v[{s}:{s+3}], 0")
    for b in range(2):
        for f in range(8): A(f"v_mov_b32 v{64+8*b+f}, v{32+4*f+b}")
    A("v_lshlrev_b32 v4, 5, v16")
    A("s_lshl_b32 s60, s31, 10")
    A("v_add_u32 v4, s60, v4")
    A("s_mov_b64 exec, 0xffff")
    for b in range(2):
        A(f"ds_write_b128 v4, v[{64+8*b}:{67+8*b}] offset:{L_RG+512*b}")
        A(f"ds_write_b128 v4, v[{68+8*b}:{71+8*b}] offset:{L_RG+512*b+16}")
    A("s_mov_b64 exec, -1")
    signal(C_RG)
    A.label(lgudone)
    stamp(6)
    A("s_cmp_ge_u32 s31, 5")
    A("s_cbranch_scc1 L_kend")
    A("s_waitcnt vmcnt(0)")
    stamp(7)
    Lw = [88 + 4*j for j in range(4)]
    Ld = [104 + 4*j for j in range(4)]
    for f in range(8):
        c = f >> 1; sel = "s37" if f & 1 else "s36"
        for i in range(2): A(f"v_perm_b32 v{32+2*f+i}, v{Lw[2*i+1]+c}, v{Lw[2*i]+c}, {sel}")
    for f in range(8):
        c = f >> 1; sel = "s37" if f & 1 else "s36"
        for i in range(2): A(f"v_perm_b32 v{48+4*f+i}, v{Ld[2*i+1]+c}, v{Ld[2*i]+c}, {sel}")
        if f & 1: A(f"v_lshrrev_b32 v{48+4*f+2}, 16, v{120+c}")
        else: A(f"v_and_b32 v{48+4*f+2}, 0xffff, v{120+c}")
        A(f"v_mov_b32 v{48+4*f+3}, 0")
    A("v_and_b32 v4, 1, v1")
    A("v_lshlrev_b32 v4, 2, v4"); A("v_add_u32 v4, v4, v17")
    A("v_lshlrev_b32 v5, 3, v4")
    A("v_lshlrev_b32 v6, 4, v4")
    A("v_and_b32 v7, 1, v17"); A("v_mul_u32_u24 v7, 72, v7"); A("v_add_u32 v7, v7, v16")
    A("s_lshl_b32 s60, s31, 4"); A("v_add_u32 v7, s60, v7")
    A("v_lshlrev_b32 v7, 13, v7")
    A("v_lshrrev_b32 v8, 1, v17"); A("v_lshl_add_u32 v7, v8, 4, v7")
    A("s_lshl_b32 s60, s2, 5"); A(f"s_add_u32 s60, s60, {WS_FS}")
    base_add(44, 26, "s60")
    spin(F_Z, 1, vt="v15")
    A(f"ds_read_b64 v[8:9], v5 offset:{L_ZA}")
    A("s_waitcnt lgkmcnt(0)")
    for f in range(8):
        A(f"v_mfma_f32_16x16x16_bf16 v[{80+4*f}:{83+4*f}], v[8:9], v[{32+2*f}:{33+2*f}], 0")
    stamp(8)
    spin(F_H, 1, vt="v15")
    A(f"ds_read_b128 v[12:15], v6 offset:{L_HA}")
    A("s_waitcnt lgkmcnt(0)")
    for f in range(8):
        A(f"v_mfma_f32_16x16x32_bf16 v[{80+4*f}:{83+4*f}], v[12:15], v[{48+4*f}:{51+4*f}], v[{80+4*f}:{83+4*f}]")
    A("s_mov_b32 s60, 0xffff0000"); A("s_mov_b32 s61, 0xffff0000")
    A("s_mov_b32 s62, 0"); A("s_mov_b32 s63, -1")
    for i in range(4):
        A(f"v_cndmask_b32 v{32+i}, v{80+4*i}, v{81+4*i}, s[60:61]")
    for i in range(4):
        A(f"v_cndmask_b32 v{36+i}, v{96+4*i}, v{97+4*i}, s[60:61]")
    for i in range(4):
        A(f"v_cndmask_b32 v{32+i}, v{32+i}, v{36+i}, s[62:63]")
    tagset(32)
    A("s_cmp_eq_u32 s31, 4")
    A("s_cselect_b32 s60, 0x00ff00ff, -1")
    A("s_mov_b32 exec_lo, s60"); A("s_mov_b32 exec_hi, s60")
    A("global_store_dwordx4 v7, v[32:35], s[44:45] sc1")
    A("s_mov_b64 exec, -1")
    signal(C_F)
    stamp(9)
    A.label("L_kend")
    stamp_dump("K")
    A("s_endpgm")

    A.label("L_vwave")
    A("s_cmp_ge_u32 s31, 6")
    A("s_cbranch_scc1 L_v67")
    A("s_lshr_b32 s60, s39, 1"); A("s_mul_i32 s60, s60, 72"); A("s_mul_i32 s61, s31, 12"); A("s_add_u32 s64, s60, s61")
    A("s_lshl_b32 s60, s64, 13"); A("s_lshl_b32 s61, s38, 9"); A("s_add_u32 s60, s60, s61")
    A("s_and_b32 s61, s39, 1"); A("s_lshl_b32 s61, s61, 8"); A("s_add_u32 s60, s60, s61")
    A("v_lshlrev_b32 v4, 13, v17"); A("v_lshl_add_u32 v4, v16, 4, v4")
    A("s_waitcnt lgkmcnt(0)")
    A("s_load_dwordx2 s[28:29], s[26:27], 0")
    base_add(44, 10, "s60")
    for j in range(3):
        A(f"global_load_dwordx4 v[{64+4*j}:{67+4*j}], v4, s[44:45]{NT}")
        if j < 2: base_add(44, 44, 32768)
    A("s_barrier")
    A("v_and_b32 v4, 1, v1"); A("v_mul_u32_u24 v4, 1152, v4")
    A("v_lshl_add_u32 v4, v17, 1, v4")
    A("s_lshl_b32 s60, s64, 1"); A("v_add_u32 v4, s60, v4")
    spin(C_XN, 1, vt="v5")
    A(f"ds_read_u16 v8, v4 offset:{L_XN}")
    A(f"ds_read_u16 v10, v4 offset:{L_XN+8}")
    A(f"ds_read_u16 v9, v4 offset:{L_XN+16}")
    A("s_waitcnt lgkmcnt(0)")
    A("v_lshl_or_b32 v8, v10, 16, v8")
    A("s_waitcnt vmcnt(0)")
    stamp(1)
    sets = [10, 12]
    def qfrag(f):
        c = f >> 1; s = sets[f & 1]; sel = "s37" if f & 1 else "s36"
        A(f"v_perm_b32 v{s}, v{68+c}, v{64+c}, {sel}")
        if f & 1: A(f"v_lshrrev_b32 v{s+1}, 16, v{72+c}")
        else: A(f"v_and_b32 v{s+1}, 0xffff, v{72+c}")
    qfrag(0)
    for f in range(8):
        if f + 1 < 8: qfrag(f + 1)
        s = sets[f & 1]
        A(f"v_mfma_f32_16x16x16_bf16 v[{32+4*f}:{35+4*f}], v[8:9], v[{s}:{s+1}], 0")
    for b in range(2):
        for f in range(8): A(f"v_mov_b32 v{64+8*b+f}, v{32+4*f+b}")
    A("v_lshlrev_b32 v4, 5, v16")
    A("s_lshl_b32 s60, s31, 10"); A("v_add_u32 v4, s60, v4")
    A("s_mov_b64 exec, 0xffff")
    for b in range(2):
        A(f"ds_write_b128 v4, v[{64+8*b}:{67+8*b}] offset:{L_QP+512*b}")
        A(f"ds_write_b128 v4, v[{68+8*b}:{71+8*b}] offset:{L_QP+512*b+16}")
    A("s_mov_b64 exec, -1")
    arrive(C_QP, "s60")
    A("s_cmp_lg_u32 s60, 5")
    A("s_cbranch_scc1 L_vmain")
    A("v_lshlrev_b32 v4, 4, v1")
    for w in range(6): A(f"ds_read_b128 v[{64+4*w}:{67+4*w}], v4 offset:{L_QP+1024*w}")
    tags_from_epoch()
    for w in range(1, 6):
        for i in range(4): A(f"v_add_f32 v{64+i}, v{64+i}, v{64+4*w+i}")
    tagset(64)
    A("v_lshrrev_b32 v5, 5, v1"); A("v_lshlrev_b32 v5, 13, v5")
    A("v_and_b32 v6, 31, v1"); A("v_lshl_add_u32 v5, v6, 4, v5")
    A("s_lshl_b32 s60, s38, 14"); A("s_lshr_b32 s61, s39, 1"); A("s_lshl_b32 s61, s61, 10"); A("s_add_u32 s60, s60, s61")
    A("s_and_b32 s61, s39, 1"); A("s_lshl_b32 s61, s61, 9"); A("s_add_u32 s60, s60, s61")
    A(f"s_add_u32 s60, s60, {WS_QS}")
    base_add(44, 26, "s60")
    A("global_store_dwordx4 v5, v[64:67], s[44:45] sc1")
    stamp(2)
    A("s_mov_b32 s43, 1")
    A("s_branch L_vmain2")
    A.label("L_v67")
    A("s_cmp_eq_u32 s31, 7")
    A("s_cbranch_scc1 L_v7")
    A("v_lshlrev_b32 v4, 2, v1")
    A(f"ds_write_b32 v4, {VZ}")
    A(f"ds_write_b32 v4, {VZ} offset:{L_HA}")
    A("s_waitcnt lgkmcnt(0)")
    A("s_load_dwordx2 s[28:29], s[26:27], 0")
    A("s_barrier")
    A("s_branch L_vmain")
    A.label("L_v7")
    A("v_lshrrev_b32 v4, 5, v1"); A("v_mul_u32_u24 v4, 1152, v4")
    A("v_and_b32 v5, 31, v1"); A("v_lshl_add_u32 v4, v5, 2, v4")
    A("s_waitcnt lgkmcnt(0)")
    A("s_load_dwordx2 s[28:29], s[26:27], 0")
    for t in range(9): A(f"global_load_dword v{64+t}, v4, s[4:5] offset:{128*t}")
    A("s_barrier")
    A("s_waitcnt vmcnt(0)")
    stamp(1)
    X = [f"v{80+i}" for i in range(18)]
    for t in range(9):
        A(f"v_lshlrev_b32 {X[2*t]}, 16, v{64+t}")
        A(f"v_and_b32 {X[2*t+1]}, 0xffff0000, v{64+t}")
    def sum18(vals, dst, sq=False):
        if sq:
            for i in range(9):
                A(f"v_mul_f32 v{32+i}, {vals[2*i]}, {vals[2*i]}")
            for i in range(9):
                A(f"v_fmac_f32 v{32+i}, {vals[2*i+1]}, {vals[2*i+1]}")
        else:
            for i in range(9): A(f"v_add_f32 v{32+i}, {vals[2*i]}, {vals[2*i+1]}")
        for i in range(4): A(f"v_add_f32 v{32+i}, v{32+i}, v{36+i}")
        A("v_add_f32 v32, v32, v33"); A("v_add_f32 v34, v34, v35"); A("v_add_f32 v32, v32, v40")
        A(f"v_add_f32 {dst}, v32, v34")
        dpp("v_add_f32", [dst], "quad_perm:[1,0,3,2]")
        dpp("v_add_f32", [dst], "quad_perm:[2,3,0,1]")
        dpp("v_add_f32", [dst], "row_ror:4")
        dpp("v_add_f32", [dst], "row_ror:8")
        butterfly16("v_add_f32", [dst], ["v33"])
    sum18(X, "v8")
    A("s_mov_b32 s60, 0x3ae38e39")
    A("v_mul_f32 v8, s60, v8")
    D = [f"v{100+i}" for i in range(18)]
    for i in range(18): A(f"v_sub_f32 {D[i]}, {X[i]}, v8")
    sum18(D, "v9", sq=True)
    A("v_mul_f32 v9, s60, v9")
    def bf16r(r):
        A(f"v_cvt_pk_bf16_f32 {r}, {r}, {r}"); A(f"v_and_b32 {r}, 0xffff0000, {r}")
    bf16r("v8"); bf16r("v9")
    A("v_add_f32 v9, 0x3727c5ac, v9")
    bf16r("v9")
    A("v_sqrt_f32 v9, v9")
    bf16r("v9")
    A("v_rcp_f32 v10, v9")
    A("v_fma_f32 v11, -v9, v10, 1.0")
    A("v_fma_f32 v10, v10, v11, v10")
    for i in range(18): A(f"v_sub_f32 {D[i]}, {X[i]}, v8")
    for t in range(9): A(f"v_cvt_pk_bf16_f32 v{32+t}, {D[2*t]}, {D[2*t+1]}")
    for t in range(9):
        A(f"v_lshlrev_b32 {D[2*t]}, 16, v{32+t}")
        A(f"v_and_b32 {D[2*t+1]}, 0xffff0000, v{32+t}")
    for i in range(18): A(f"v_mul_f32 {D[i]}, {D[i]}, v10")
    for t in range(9): A(f"v_cvt_pk_bf16_f32 v{32+t}, {D[2*t]}, {D[2*t+1]}")
    for t in range(9): A(f"ds_write_b32 v4, v{32+t} offset:{L_XN+128*t}")
    signal(C_XN)
    stamp(2)
    A.label("L_vmain")
    tags_from_epoch()
    A.label("L_vmain2")
    A("s_lshl_b32 s60, s2, 17"); A("s_lshl_b32 s61, s31, 14"); A("s_add_u32 s60, s60, s61")
    base_add(44, 8, "s60")
    A("v_lshlrev_b32 v5, 4, v1")
    spin(C_KISS, 8)
    for i in range(16):
        if i and i % 4 == 0: base_add(44, 44, 4096)
        A(f"global_load_dwordx4 v[{64+4*i}:{67+4*i}], v5, s[44:45] offset:{(i%4)*1024}{NT}")
    signal(C_VISS)
    stamp(3)
    A("v_and_b32 v6, 1, v1"); A("v_lshlrev_b32 v6, 2, v6"); A("v_add_u32 v6, v6, v17"); A("v_lshlrev_b32 v6, 4, v6")
    A("s_lshl_b32 s60, s31, 8"); A("v_add_u32 v6, s60, v6")
    A("v_and_b32 v7, 7, v1"); A("v_lshlrev_b32 v7, 4, v7"); A("v_bfe_u32 v8, v1, 3, 1"); A("v_lshl_add_u32 v7, v8, 3, v7")
    spin(C_P, 8)
    A(f"ds_read_b128 v[20:23], v6 offset:{L_P}")
    A(f"ds_read_b128 v[24:27], v6 offset:{L_P+128}")
    A(f"ds_read_b64 v[28:29], v7 offset:{L_ML}")
    A("s_waitcnt lgkmcnt(0)")
    stamp(4)
    A("v_mov_b32 v30, v28")
    dpp("v_max_f32", ["v30"], "quad_perm:[1,0,3,2]")
    dpp("v_max_f32", ["v30"], "quad_perm:[2,3,0,1]")
    dpp("v_max_f32", ["v30"], "row_half_mirror")
    A("v_and_b32 v30, 0xfffff000, v30")
    A("v_sub_f32 v31, v28, v30")
    A(f"v_mul_f32 v31, {LOG2E:#x}, v31")
    A("v_exp_f32 v31, v31")
    A("v_mul_f32 v29, v31, v29")
    dpp("v_add_f32", ["v29"], "quad_perm:[1,0,3,2]")
    dpp("v_add_f32", ["v29"], "quad_perm:[2,3,0,1]")
    dpp("v_add_f32", ["v29"], "row_half_mirror")
    A("s_add_u32 s60, s31, 8")
    A("v_readlane_b32 s52, v31, s31")
    A("v_readlane_b32 s53, v31, s60")
    A("v_readlane_b32 s54, v30, 0"); A("v_readlane_b32 s55, v30, 8")
    A("v_readlane_b32 s56, v29, 0"); A("v_readlane_b32 s57, v29, 8")
    sets = [8, 12]
    for T in range(2):
        A(f"s_waitcnt vmcnt({8 if T == 0 else 0})")
        if T == 1: stamp(5)
        Lv = [64 + 32*T + 4*j for j in range(8)]
        perms(0, sets[0], Lv, 4)
        for f in range(8):
            if f + 1 < 8: perms(f+1, sets[(f+1) & 1], Lv, 4)
            s = sets[f & 1]
            C = "0" if T == 0 else f"v[{32+4*f}:{35+4*f}]"
            A(f"v_mfma_f32_16x16x32_bf16 v[{32+4*f}:{35+4*f}], v[{20+4*T}:{23+4*T}], v[{s}:{s+3}], {C}")
    for h in range(2):
        for f in range(8): A(f"v_mul_f32 v{64+8*h+f}, s{52+h}, v{32+4*f+h}")
    A("v_lshlrev_b32 v4, 5, v16")
    A("s_lshl_b32 s60, s31, 10"); A("v_add_u32 v4, s60, v4")
    A("s_mov_b64 exec, 0xffff")
    for h in range(2):
        A(f"ds_write_b128 v4, v[{64+8*h}:{67+8*h}] offset:{L_RO+512*h}")
        A(f"ds_write_b128 v4, v[{68+8*h}:{71+8*h}] offset:{L_RO+512*h+16}")
    A("s_mov_b64 exec, -1")
    arrive(C_RO, "s60")
    A("s_cmp_eq_u32 s60, 0")
    A("s_cbranch_scc1 L_vgu")
    A("s_cmp_lg_u32 s60, 7")
    A("s_cbranch_scc1 L_vfinal")
    stamp(6)
    A("v_lshlrev_b32 v4, 4, v1")
    for w in range(8): A(f"ds_read_b128 v[{64+4*w}:{67+4*w}], v4 offset:{L_RO+1024*w}")
    A("v_lshrrev_b32 v5, 2, v1"); A("v_lshlrev_b32 v5, 10, v5"); A("v_and_b32 v6, 3, v1"); A("v_lshl_add_u32 v5, v6, 4, v5")
    A("s_lshl_b32 s60, s38, 14"); A("s_lshl_b32 s61, s39, 6"); A("s_add_u32 s61, s61, s60"); A(f"s_add_u32 s61, s61, {WS_OS}")
    base_add(44, 26, "s61")
    A("s_waitcnt lgkmcnt(0)")
    for w in range(1, 8):
        for i in range(4): A(f"v_add_f32 v{64+i}, v{64+i}, v{64+4*w+i}")
    tagset(64)
    A("global_store_dwordx4 v5, v[64:67], s[44:45] sc1")
    A("s_mov_b32 s62, 0"); A("s_mov_b32 s63, -1")
    A("v_mov_b32 v68, s54"); A("v_mov_b32 v70, s55"); A("v_cndmask_b32 v68, v68, v70, s[62:63]")
    A("v_mov_b32 v69, s56"); A("v_mov_b32 v70, s57"); A("v_cndmask_b32 v69, v69, v70, s[62:63]")
    A("v_mov_b32 v70, 0"); A("v_mov_b32 v71, 0")
    tagset(68)
    A("v_lshrrev_b32 v7, 5, v1"); A("v_lshlrev_b32 v7, 8, v7")
    A("s_lshl_b32 s60, s38, 9"); A("s_lshl_b32 s61, s39, 4"); A("s_add_u32 s60, s60, s61"); A(f"s_add_u32 s60, s60, {WS_ML}")
    base_add(46, 26, "s60")
    A("s_mov_b32 exec_lo, 1"); A("s_mov_b32 exec_hi, 1")
    A("global_store_dwordx4 v7, v[68:71], s[46:47] sc1")
    A("s_mov_b64 exec, -1")
    stamp(7)
    A("s_lshl_b32 s60, s38, 14"); A("s_lshl_b32 s61, s39, 10"); A("s_add_u32 s61, s61, s60"); A(f"s_add_u32 s61, s61, {WS_OS}")
    base_add(44, 26, "s61")
    A("s_lshl_b32 s60, s38, 1"); A("s_add_u32 s60, s60, s40"); A("s_lshl_b32 s60, s60, 8"); A(f"s_add_u32 s60, s60, {WS_ML}")
    base_add(46, 26, "s60")
    A("v_lshrrev_b32 v5, 2, v1"); A("v_lshlrev_b32 v5, 4, v5")
    lp = lab("opoll"); ld = lab("odone")
    A.label(lp)
    A("global_load_dwordx4 v[64:67], v4, s[44:45] sc1")
    A("global_load_dwordx4 v[68:71], v5, s[46:47] sc1")
    A("s_waitcnt vmcnt(0)")
    tagcheck(64, "v8", "v9", "v10")
    A("s_mov_b64 s[62:63], vcc")
    tagcheck(68, "v8", "v9", "v10")
    A("s_or_b64 vcc, vcc, s[62:63]")
    A(f"s_cbranch_vccz {ld}")
    A("s_sub_u32 s42, s42, 64")
    A(f"s_cbranch_scc0 {lp}")
    A.label(ld)
    stamp(8)
    untag(64); untag(68, 2)
    A("v_mov_b32 v8, v68")
    dpp("v_max_f32", ["v8"], "row_ror:4"); dpp("v_max_f32", ["v8"], "row_ror:8")
    butterfly16("v_max_f32", ["v8"], ["v9"])
    A("v_sub_f32 v8, v68, v8"); A(f"v_mul_f32 v8, {LOG2E:#x}, v8"); A("v_exp_f32 v8, v8")
    A("v_mul_f32 v69, v8, v69")
    for i in range(4): A(f"v_mul_f32 v{64+i}, v8, v{64+i}")
    z = ["v64", "v65", "v66", "v67", "v69"]
    dpp("v_add_f32", z, "row_ror:4"); dpp("v_add_f32", z, "row_ror:8")
    butterfly16("v_add_f32", z, ["v8", "v9", "v10", "v11", "v12"])
    A("v_rcp_f32 v8, v69")
    A("v_fma_f32 v9, -v69, v8, 1.0"); A("v_fma_f32 v8, v8, v9, v8")
    for i in range(4): A(f"v_mul_f32 v{64+i}, v{64+i}, v8")
    A("v_cvt_pk_bf16_f32 v8, v64, v65"); A("v_cvt_pk_bf16_f32 v9, v66, v67")
    A("v_lshrrev_b32 v10, 5, v1"); A("v_lshlrev_b32 v10, 2, v10"); A("v_and_b32 v11, 3, v1"); A("v_add_u32 v10, v10, v11")
    A("v_lshlrev_b32 v10, 3, v10")
    A("s_mov_b32 exec_lo, 0xf"); A("s_mov_b32 exec_hi, 0xf")
    A(f"ds_write_b64 v10, v[8:9] offset:{L_ZA}")
    A("s_mov_b64 exec, -1")
    signal(F_Z)
    stamp(9)
    A("s_branch L_vfinal")
    A.label("L_vgu")
    lnp = lab("nopub")
    A(f"s_cmp_ge_u32 s2, {ngu}")
    A(f"s_cbranch_scc1 {lnp}")
    A("s_mul_i32 s62, s2, 911"); A("s_lshr_b32 s62, s62, 16"); A("s_mul_i32 s63, s62, 72"); A("s_sub_u32 s63, s2, s63")
    A("s_mul_i32 s60, s62, 73728"); A("s_lshl_b32 s61, s63, 8"); A("s_add_u32 s60, s60, s61"); A(f"s_add_u32 s60, s60, {WS_GS}")
    base_add(44, 26, "s60")
    A("v_mul_u32_u24 v5, 18432, v17"); A("v_lshl_add_u32 v5, v16, 4, v5")
    A("v_and_b32 v6, 1, v17"); A("v_lshlrev_b32 v6, 9, v6"); A("v_lshrrev_b32 v7, 1, v17"); A("v_lshl_add_u32 v6, v7, 8, v6")
    A("v_lshl_add_u32 v6, v16, 4, v6")
    spin(C_RG, 8)
    for w in range(8): A(f"ds_read_b128 v[{64+4*w}:{67+4*w}], v6 offset:{L_RG+1024*w}")
    A("s_waitcnt lgkmcnt(0)")
    for w in range(1, 8):
        for i in range(4): A(f"v_add_f32 v{64+i}, v{64+i}, v{64+4*w+i}")
    tagset(64)
    A("global_store_dwordx4 v5, v[64:67], s[44:45] sc1")
    A.label(lnp)
    stamp(7)
    A("s_mul_i32 s60, s2, 18"); A("s_and_b32 s64, s60, 3"); A("s_lshr_b32 s60, s60, 2"); A("s_lshl_b32 s60, s60, 4")
    A(f"s_add_u32 s60, s60, {WS_GS}")
    base_add(44, 26, "s60")
    A("v_lshrrev_b32 v5, 2, v1"); A("v_mul_u32_u24 v5, 18432, v5"); A("v_and_b32 v6, 3, v1"); A("v_lshl_add_u32 v5, v6, 4, v5")
    A("v_mov_b32 v64, 0"); A("v_mov_b32 v65, 0"); A("v_mov_b32 v66, 0"); A("v_mov_b32 v67, 0")
    A("v_mov_b32 v68, 0"); A("v_mov_b32 v69, 0"); A("v_mov_b32 v70, 0"); A("v_mov_b32 v71, 0")
    lp = lab("gpoll"); ld = lab("gdone")
    A.label(lp)
    A("s_mov_b32 exec_hi, 0x0000ffff")
    A("global_load_dwordx4 v[64:67], v5, s[44:45] sc1")
    A("s_mov_b32 exec_lo, 0x11111111"); A("s_mov_b32 exec_hi, 0x00001111")
    A("global_load_dwordx4 v[68:71], v5, s[44:45] offset:64 sc1")
    A("s_waitcnt vmcnt(0)")
    tagcheck(68, "v8", "v9", "v10")
    A("s_mov_b64 s[62:63], vcc")
    A("s_mov_b32 exec_lo, -1"); A("s_mov_b32 exec_hi, 0x0000ffff")
    tagcheck(64, "v8", "v9", "v10")
    A("s_or_b64 vcc, vcc, s[62:63]")
    A("s_mov_b64 exec, -1")
    A(f"s_cbranch_vccz {ld}")
    A("s_sub_u32 s42, s42, 64")
    A(f"s_cbranch_scc0 {lp}")
    A.label(ld)
    stamp(8)
    untag(64, 8)
    gv = [f"v{64+i}" for i in range(8)]
    tv = [f"v{72+i}" for i in range(8)]
    butterfly16("v_add_f32", gv, tv)
    butterfly32("v_add_f32", gv, tv)
    for p in range(4): A(f"v_cvt_pk_bf16_f32 v{72+p}, v{64+2*p}, v{65+2*p}")
    for p in range(4):
        A(f"v_lshlrev_b32 v{64+2*p}, 16, v{72+p}"); A(f"v_and_b32 v{65+2*p}, 0xffff0000, v{72+p}")
    for i in range(8):
        A(f"v_mul_f32_dpp v{72+i}, v{64+i}, v{64+i} row_ror:8 row_mask:0xf bank_mask:0xf")
    for p in range(4): A(f"v_cvt_pk_bf16_f32 v{64+p}, v{72+2*p}, v{73+2*p}")
    A("v_bfe_u32 v8, v1, 2, 1"); A("v_lshlrev_b32 v8, 6, v8")
    A("v_lshlrev_b32 v9, 2, v6"); A("v_subrev_u32 v9, s64, v9")
    A("s_mov_b64 exec, 0xff")
    for s_ in range(2):
        for i in range(4):
            A(f"v_add_u32 v10, {16*s_+i}, v9")
            A("v_and_b32 v11, 3, v10"); A("v_lshlrev_b32 v11, 4, v11")
            A("v_lshrrev_b32 v12, 2, v10"); A("v_lshl_add_u32 v11, v12, 1, v11"); A("v_add_u32 v11, v11, v8")
            A("v_cmp_gt_u32 vcc, 18, v10")
            if s_ == 1:
                A("s_and_b64 vcc, vcc, 0x11")
            A(f"v_mov_b32 v12, {L_DUMMY-L_HA}")
            A("v_cndmask_b32 v11, v12, v11, vcc")
            src = f"v{64 + 2*s_ + (i >> 1)}"
            if i & 1: A(f"ds_write_b16_d16_hi v11, {src} offset:{L_HA}")
            else: A(f"ds_write_b16 v11, {src} offset:{L_HA}")
    A("s_mov_b64 exec, -1")
    signal(F_H)
    stamp(9)
    A.label("L_vfinal")
    A("s_cmp_ge_u32 s2, 144")
    A("s_cbranch_scc1 L_vend")
    A("s_lshl_b32 s60, s2, 13"); A("s_lshl_b32 s61, s31, 10"); A("s_add_u32 s60, s60, s61"); A(f"s_add_u32 s60, s60, {WS_FS}")
    base_add(44, 26, "s60")
    A("v_lshlrev_b32 v5, 4, v1")
    A("s_cmp_ge_u32 s2, 72"); A("s_cselect_b32 s60, 72, 0"); A("s_cselect_b32 s61, 1152, 0")
    A("s_sub_u32 s60, s2, s60"); A("s_lshl_b32 s60, s60, 4"); A("s_add_u32 s64, s60, s61")
    A("v_and_b32 v6, 1, v1"); A("v_lshlrev_b32 v6, 3, v6"); A("v_add_u32 v6, s64, v6")
    A("global_load_dwordx2 v[30:31], v6, s[4:5]")
    spin(C_F, 5)
    stamp(10)
    lp = lab("fpoll"); ld = lab("fdone")
    A.label(lp)
    A("global_load_dwordx4 v[64:67], v5, s[44:45] sc1")
    A("s_waitcnt vmcnt(0)")
    tagcheck(64, "v8", "v9", "v10")
    A(f"s_cbranch_vccz {ld}")
    A("s_sub_u32 s42, s42, 64")
    A(f"s_cbranch_scc0 {lp}")
    A.label(ld)
    stamp(11)
    untag(64)
    z = ["v64", "v65", "v66", "v67"]
    dpp("v_add_f32", z, "quad_perm:[2,3,0,1]")
    dpp("v_add_f32", z, "row_ror:4"); dpp("v_add_f32", z, "row_ror:8")
    butterfly16("v_add_f32", z, ["v8", "v9", "v10", "v11"])
    butterfly32("v_add_f32", z, ["v8", "v9", "v10", "v11"])
    A("v_and_b32 v7, 1, v1"); A("v_lshlrev_b32 v7, 4, v7")
    A("s_lshl_b32 s60, s31, 5"); A("v_add_u32 v8, s60, v7")
    A("s_mov_b64 exec, 3")
    A(f"ds_write_b128 v8, v[64:67] offset:{L_FR}")
    A("s_mov_b64 exec, -1")
    arrive(C_FR, "s60")
    A("s_cmp_lg_u32 s60, 7")
    A("s_cbranch_scc1 L_vend")
    for w in range(8): A(f"ds_read_b128 v[{64+4*w}:{67+4*w}], v7 offset:{L_FR+32*w}")
    A("s_waitcnt lgkmcnt(0)")
    for w in range(1, 8):
        for i in range(4): A(f"v_add_f32 v{64+i}, v{64+i}, v{64+4*w+i}")
    A("v_lshlrev_b32 v8, 16, v30"); A("v_and_b32 v9, 0xffff0000, v30")
    A("v_lshlrev_b32 v10, 16, v31"); A("v_and_b32 v11, 0xffff0000, v31")
    for i in range(4): A(f"v_add_f32 v{64+i}, v{64+i}, v{8+i}")
    A("v_cvt_pk_bf16_f32 v8, v64, v65"); A("v_cvt_pk_bf16_f32 v9, v66, v67")
    A("s_mov_b64 exec, 3")
    A("global_store_dwordx2 v6, v[8:9], s[22:23]")
    A("s_cmp_lg_u32 s2, 0")
    A("s_cbranch_scc1 L_vend2")
    A("s_mov_b64 exec, 1")
    A("v_mov_b32 v8, s28")
    A(f"global_store_dword {VZ}, v8, s[26:27] sc1")
    A.label("L_vend2")
    A("s_mov_b64 exec, -1")
    stamp(12)
    A.label("L_vend")
    stamp_dump("V")
    A.label("L_end")
    A("s_endpgm")
    lines, nn = A.finish()
    hdr = open("cdna_kernels/" + NAME + ".s.ref").read().split("; Override launch geometry")[0]
    out = hdr
    out += f"; @launch grid=(256,1,1) block=(1024,1,1) lds={LDS_BYTES}\n"
    out += f""".amdgcn_target "amdgcn-amd-amdhsa--gfx950"
.text
.globl {NAME}_kernel
.p2align 8
.type {NAME}_kernel,@function
{NAME}_kernel:
"""
    out += "\n".join(("    " + l) if not l.endswith(":") else l for l in lines)
    out += f"""
.section .rodata,"a"
.p2align 6
.amdhsa_kernel {NAME}_kernel
  .amdhsa_next_free_vgpr 128
  .amdhsa_next_free_sgpr 102
  .amdhsa_accum_offset 128
  .amdhsa_group_segment_fixed_size 0
  .amdhsa_kernarg_size 96
  .amdhsa_user_sgpr_count 2
  .amdhsa_user_sgpr_kernarg_segment_ptr 1
  .amdhsa_system_sgpr_workgroup_id_x 1
.end_amdhsa_kernel
"""
    return out, nn

if __name__ == "__main__":
    o, nn = gen()
    open("k1.s", "w").write(o)
    print("nops inserted:", nn, "lines:", o.count("\n"))
    o, nn = gen(diag=True)
    open("k1d.s", "w").write(o)
    o, nn = gen(diag=2)
    open("k1h.s", "w").write(o)
```

```python
import sys
from asmlib import Asm
NAME = "parallel_sum__gqa_block_cached__glu_gated_bilinear__decode"

WS_EPOCH = 0
WS_QS = 0x10000
WS_OS = 0x50000
WS_ML = 0x90000
WS_GS = 0xA0000
WS_FS = 0x100000
WS_STAMP = 0x800000
C_XN, C_QP, C_KISS, C_Q, C_P, C_VISS, C_RO, C_RG, F_Z, F_H, C_F, C_FR = [4 * i for i in range(12)]
L_XN = 256
L_Q = 2560
L_P = 3072
L_ML = 5120
L_ZA = 5248
L_HA = 5312
L_DUMMY = 5440
L_FR = 6400
L_QP = 8192
L_RO = 16384
L_RG = 24576
LDS_BYTES = 32768
LOG2E = 0x3FB8AA3B
SCALE = 0x3DB504F3
NT = " nt"

def gen(diag=False, mimic=True, ngu=216):
    A = Asm()
    uid = [0]
    def lab(p):
        uid[0] += 1; return f"L_{p}_{uid[0]}"
    VZ, VONE, VMASK = "v2", "v3", "v19"
    def stamp(i):
        if not diag: return
        assert i < 16
        A(f"s_memrealtime s[{70+2*i}:{71+2*i}]")
    def stamp_dump(role=None):
        if not diag: return
        if diag == 3:
            lskip = lab("nodump")
            A("s_waitcnt lgkmcnt(0)")
            A("s_mov_b64 exec, 1")
            if role == "K":
                A("s_cmp_lg_u32 s30, 0"); A(f"s_cbranch_scc1 {lskip}")
                A("s_not_b32 s60, s70"); A("v_mov_b32 v6, s60"); A(f"global_atomic_umax {VZ}, v6, s[24:25]")
                A("v_mov_b32 v7, s70"); A(f"global_atomic_umax {VZ}, v7, s[24:25] offset:4")
                A("s_and_b32 s60, s2, 7"); A("s_lshl_b32 s60, s60, 2"); A("v_mov_b32 v8, s60")
                A(f"global_atomic_umax v8, v7, s[24:25] offset:16")
            else:
                A("s_cmp_eq_u32 s94, 0"); A(f"s_cbranch_scc1 {lskip}")
                A("v_mov_b32 v7, s94"); A(f"global_atomic_umax {VZ}, v7, s[24:25] offset:8")
            A.label(lskip)
            A("s_mov_b64 exec, -1")
            return
        if diag == 2:
            lskip = lab("nodump")
            A("s_cmp_lg_u32 s2, 0"); A(f"s_cbranch_scc1 {lskip}")
            A("s_waitcnt lgkmcnt(0)")
            A("s_mov_b64 exec, 1")
            sel = {"K": [(1,2),(2,3),(3,4),(5,7),(7,8),(9,10)], "V": [(2,13),(3,5),(5,6),(8,9),(11,11),(12,12)]}[role]
            A("s_not_b32 s60, s70"); A("v_mov_b32 v6, s60"); A(f"global_atomic_umax {VZ}, v6, s[24:25]")
            A("v_mov_b32 v7, s70"); A(f"global_atomic_umax {VZ}, v7, s[24:25] offset:4")
            for k, (st, slot) in enumerate(sel):
                A(f"v_mov_b32 v{8+k}, s{70+2*st}"); A(f"global_atomic_umax {VZ}, v{8+k}, s[24:25] offset:{4*slot}")
            A("s_mov_b64 exec, -1")
            A.label(lskip)
            return
        A("s_waitcnt lgkmcnt(0)")
        A("s_mov_b64 exec, 1")
        A(f"s_lshl_b32 s60, s2, 12"); A("s_lshl_b32 s61, s30, 8"); A("s_add_u32 s60, s60, s61")
        A(f"s_add_u32 s60, s60, {WS_STAMP}")
        A("v_mov_b32 v4, s60")
        for i in range(16):
            A(f"v_mov_b32 v6, s{70+2*i}"); A(f"v_mov_b32 v7, s{71+2*i}")
            A(f"global_store_dwordx2 v4, v[6:7], s[26:27] offset:{8*i}")
            A("s_nop 1")
        A("s_mov_b64 exec, -1")

    def signal(cnt):
        A("s_waitcnt lgkmcnt(0)")
        A("s_mov_b64 exec, 1")
        A(f"ds_add_u32 {VZ}, {VONE} offset:{cnt}")
        A("s_mov_b64 exec, -1")
    def arrive(cnt, sdst, vt="v4"):
        A("s_waitcnt lgkmcnt(0)")
        A("s_mov_b64 exec, 1")
        A(f"ds_add_rtn_u32 {vt}, {VZ}, {VONE} offset:{cnt}")
        A("s_mov_b64 exec, -1")
        A("s_waitcnt lgkmcnt(0)")
        A(f"v_readfirstlane_b32 {sdst}, {vt}")
    def spin(cnt, n, vt="v4", sleep=1):
        l = lab("spin"); d = lab("spind")
        A.label(l)
        A(f"ds_read_b32 {vt}, {VZ} offset:{cnt}")
        A("s_waitcnt lgkmcnt(0)")
        A(f"v_readfirstlane_b32 s60, {vt}")
        A(f"s_cmp_ge_u32 s60, {n}")
        A(f"s_cbranch_scc1 {d}")
        A("s_sub_u32 s42, s42, 1")
        A(f"s_cbranch_scc1 {d}")
        if sleep: A(f"s_sleep {sleep}")
        A(f"s_branch {l}")
        A.label(d)
    def tagcheck(r, vt0, vt1, vt2):
        A(f"v_xor_b32 {vt0}, s32, v{r}")
        A(f"v_xor_b32 {vt1}, s33, v{r+1}")
        A(f"v_xor_b32 {vt2}, s34, v{r+2}")
        A(f"v_or3_b32 {vt0}, {vt0}, {vt1}, {vt2}")
        A(f"v_xor_b32 {vt1}, s35, v{r+3}")
        A(f"v_or_b32 {vt0}, {vt0}, {vt1}")
        A(f"v_and_b32 {vt0}, {VMASK}, {vt0}")
        A(f"v_cmp_ne_u32 vcc, 0, {vt0}")
    def tagset(r):
        for i in range(4):
            A(f"v_bfi_b32 v{r+i}, {VMASK}, s{32+i}, v{r+i}")
    def untag(r, n=4):
        for i in range(n):
            A(f"v_and_b32 v{r+i}, 0xfffff000, v{r+i}")
    def tags_from_epoch():
        A("s_waitcnt lgkmcnt(0)")
        A("s_add_u32 s28, s28, 1")
        A("s_and_b32 s32, s28, 0xfff")
        A("s_bfe_u32 s33, s28, 0xc000c")
        A("s_lshr_b64 s[60:61], s[28:29], 24"); A("s_and_b32 s34, s60, 0xfff")
        A("s_lshr_b64 s[60:61], s[28:29], 36"); A("s_and_b32 s35, s60, 0xfff")
    def butterfly16(op, regs, tmp):
        for r, t in zip(regs, tmp): A(f"v_mov_b32 {t}, {r}")
        for r, t in zip(regs, tmp): A(f"v_permlane16_swap_b32 {r}, {t}")
        for r, t in zip(regs, tmp): A(f"{op} {r}, {r}, {t}")
    def butterfly32(op, regs, tmp):
        for r, t in zip(regs, tmp): A(f"v_mov_b32 {t}, {r}")
        for r, t in zip(regs, tmp): A(f"v_permlane32_swap_b32 {r}, {t}")
        for r, t in zip(regs, tmp): A(f"{op} {r}, {r}, {t}")
    def dpp(op, regs, ctrl):
        for r in regs: A(f"{op}_dpp {r}, {r}, {r} {ctrl} row_mask:0xf bank_mask:0xf")
    def base_add(dst, src, off_sreg_or_imm):
        A(f"s_add_u32 s{dst}, s{src}, {off_sreg_or_imm}")
        A(f"s_addc_u32 s{dst+1}, s{src+1}, 0")

    A("s_cmp_ge_u32 s2, 256")
    A("s_cbranch_scc1 L_end")
    A("s_load_dwordx16 s[4:19], s[0:1], 0")
    A("s_load_dwordx8 s[20:27], s[0:1], 64")
    if diag:
        A("s_memrealtime s[70:71]")
        for i in range(72, 102): A(f"s_mov_b32 s{i}, 0")
    A("v_lshrrev_b32 v4, 6, v0")
    A("v_and_b32 v1, 63, v0")
    A("v_readfirstlane_b32 s30, v4")
    A("s_lshr_b32 s40, s2, 7")
    A("s_bfe_u32 s38, s2, 0x40003")
    A("s_and_b32 s41, s2, 7")
    A("s_lshl_b32 s39, s40, 3")
    A("s_or_b32 s39, s39, s41")
    A("s_mov_b32 s36, 0x05040100")
    A("s_mov_b32 s37, 0x07060302")
    A("s_mov_b32 s42, 0x200000")
    A(f"v_mov_b32 {VZ}, 0")
    A(f"v_mov_b32 {VONE}, 1")
    A(f"v_mov_b32 {VMASK}, 0xfff")
    A("s_and_b32 s31, s30, 7")
    A("v_and_b32 v16, 15, v1")
    A("v_lshrrev_b32 v17, 4, v1")
    A("s_cmp_ge_u32 s30, 8")
    A("s_cbranch_scc1 L_vwave")

    A.c("K wave: keys [64w, 64w+64) of this workgroup's 512")
    A("v_bfe_u32 v4, v1, 2, 2")
    A("v_lshlrev_b32 v5, 8, v4")
    A("v_lshl_or_b32 v5, v17, 6, v5")
    A("v_and_b32 v4, 3, v1")
    A("v_lshl_or_b32 v5, v4, 4, v5")
    A("s_lshl_b32 s60, s2, 17")
    A("s_lshl_b32 s61, s31, 14")
    A("s_add_u32 s60, s60, s61")
    A("v_lshrrev_b32 v6, 3, v1")
    A("v_lshlrev_b32 v6, 10, v6")
    A("v_and_b32 v7, 7, v1")
    A("v_lshl_or_b32 v6, v7, 4, v6")
    A("s_lshl_b32 s62, s31, 7")
    A("v_add_u32 v6, s62, v6")
    A("s_waitcnt lgkmcnt(0)")
    A("s_load_dwordx2 s[28:29], s[26:27], 0")
    base_add(44, 6, "s60")
    A("s_barrier")
    for i in range(16):
        if i and i % 4 == 0:
            base_add(44, 44, 4096)
        A(f"global_load_dwordx4 v[{64+4*i}:{67+4*i}], v5, s[44:45] offset:{(i%4)*1024}{NT}")
    A("s_lshl_b32 s60, s38, 1"); A("s_add_u32 s60, s60, s40"); A("s_lshl_b32 s60, s60, 13")
    A(f"s_add_u32 s60, s60, {WS_QS}")
    base_add(46, 26, "s60")
    A("global_load_dwordx4 v[20:23], v6, s[46:47] sc1")
    stamp(1)
    signal(C_KISS)
    tags_from_epoch()
    lp = lab("qpoll"); ld = lab("qdone")
    A.label(lp)
    A("s_waitcnt vmcnt(0)")
    tagcheck(20, "v8", "v9", "v10")
    A(f"s_cbranch_vccz {ld}")
    A("s_sub_u32 s42, s42, 64")
    A(f"s_cbranch_scc1 {ld}")
    A("global_load_dwordx4 v[20:23], v6, s[46:47] sc1")
    A(f"s_branch {lp}")
    A.label(ld)
    stamp(2)
    untag(20)
    q = ["v20", "v21", "v22", "v23"]
    dpp("v_add_f32", q, "row_ror:8")
    butterfly16("v_add_f32", q, ["v8", "v9", "v10", "v11"])
    butterfly32("v_add_f32", q, ["v8", "v9", "v10", "v11"])
    A("v_cvt_pk_bf16_f32 v8, v20, v21")
    A("v_cvt_pk_bf16_f32 v9, v22, v23")
    A("v_lshlrev_b32 v10, 3, v7")
    A("s_lshl_b32 s60, s31, 6")
    A("v_add_u32 v10, s60, v10")
    A("s_mov_b64 exec, 0xff")
    A(f"ds_write_b64 v10, v[8:9] offset:{L_Q}")
    A("s_mov_b64 exec, -1")
    signal(C_Q)
    for (r, val) in ((52, 0x22222222), (54, 0x44444444), (56, 0x88888888)):
        A(f"s_mov_b32 s{r}, {val:#x}"); A(f"s_mov_b32 s{r+1}, {val:#x}")
    A("s_mov_b32 s58, 0x00ff00ff"); A("s_mov_b32 s59, 0x00ff00ff")
    A("v_bfe_u32 v8, v16, 2, 1")
    A("v_lshlrev_b32 v8, 8, v8")
    A("v_lshl_or_b32 v8, v17, 6, v8")
    A("v_and_b32 v9, 3, v16")
    A("v_lshl_or_b32 v8, v9, 4, v8")
    spin(C_Q, 8)
    A(f"ds_read_b128 v[12:15], v8 offset:{L_Q}")
    A("s_waitcnt lgkmcnt(0)")
    for i in range(4):
        A(f"v_cndmask_b32 v{24+i}, 0, v{12+i}, s[58:59]")
    for i in range(4):
        A(f"v_cndmask_b32 v{28+i}, v{12+i}, 0, s[58:59]")
    for t in range(8):
        A(f"v_mfma_f32_16x16x32_bf16 v[{32+4*t}:{35+4*t}], v[24:27], v[{64+8*t}:{67+8*t}], 0")
    for t in range(8):
        A(f"v_mfma_f32_16x16x32_bf16 v[{32+4*t}:{35+4*t}], v[28:31], v[{68+8*t}:{71+8*t}], v[{32+4*t}:{35+4*t}]")
    S = [f"v{8+t}" for t in range(8)]
    for t in range(8): A(f"v_cndmask_b32 {S[t]}, v{32+4*t}, v{33+4*t}, s[52:53]")
    for t in range(8): A(f"v_cndmask_b32 {S[t]}, {S[t]}, v{34+4*t}, s[54:55]")
    for t in range(8): A(f"v_cndmask_b32 {S[t]}, {S[t]}, v{35+4*t}, s[56:57]")
    dpp("v_add_f32", S, "quad_perm:[1,0,3,2]")
    dpp("v_add_f32", S, "quad_perm:[2,3,0,1]")
    A(f"s_mov_b32 s60, {SCALE:#x}")
    if mimic:
        for p in range(4): A(f"v_cvt_pk_bf16_f32 v{32+p}, {S[2*p]}, {S[2*p+1]}")
        for p in range(4):
            A(f"v_lshlrev_b32 {S[2*p]}, 16, v{32+p}")
            A(f"v_and_b32 {S[2*p+1]}, 0xffff0000, v{32+p}")
        for t in range(8): A(f"v_mul_f32 {S[t]}, s60, {S[t]}")
        for p in range(4): A(f"v_cvt_pk_bf16_f32 v{32+p}, {S[2*p]}, {S[2*p+1]}")
        for p in range(4):
            A(f"v_lshlrev_b32 {S[2*p]}, 16, v{32+p}")
            A(f"v_and_b32 {S[2*p+1]}, 0xffff0000, v{32+p}")
    else:
        for t in range(8): A(f"v_mul_f32 {S[t]}, s60, {S[t]}")
    A(f"v_max3_f32 v32, {S[0]}, {S[1]}, {S[2]}")
    A(f"v_max3_f32 v33, {S[3]}, {S[4]}, {S[5]}")
    A(f"v_max3_f32 v32, v32, {S[6]}, {S[7]}")
    A("v_max_f32 v32, v32, v33")
    dpp("v_max_f32", ["v32"], "row_ror:4")
    dpp("v_max_f32", ["v32"], "row_ror:8")
    butterfly32("v_max_f32", ["v32"], ["v33"])
    A(f"s_mov_b32 s60, {LOG2E:#x}")
    A("v_mul_f32 v33, s60, v32")
    for t in range(8): A(f"v_fma_f32 {S[t]}, {S[t]}, s60, -v33")
    for t in range(8): A(f"v_exp_f32 {S[t]}, {S[t]}")
    A(f"v_add_f32 v34, {S[0]}, {S[1]}"); A(f"v_add_f32 v35, {S[2]}, {S[3]}")
    A(f"v_add_f32 v36, {S[4]}, {S[5]}"); A(f"v_add_f32 v37, {S[6]}, {S[7]}")
    A("v_add_f32 v34, v34, v35"); A("v_add_f32 v36, v36, v37"); A("v_add_f32 v33, v34, v36")
    dpp("v_add_f32", ["v33"], "row_ror:4")
    dpp("v_add_f32", ["v33"], "row_ror:8")
    butterfly32("v_add_f32", ["v33"], ["v34"])
    for t in range(8): A(f"v_mov_b32 v{40+t}, {S[t]}")
    for t in range(8): A(f"v_permlane32_swap_b32 {S[t]}, v{40+t}")
    for t in range(8): A(f"v_cvt_pk_bf16_f32 v{48+t}, {S[t]}, v{40+t}")
    A("s_mov_b32 s60, 0"); A("s_mov_b32 s61, -1")
    for i in range(4): A(f"v_cndmask_b32 v{48+i}, v{48+i}, v{52+i}, s[60:61]")
    A("v_lshlrev_b32 v8, 2, v1")
    A("s_lshl_b32 s62, s31, 8")
    A("v_add_u32 v8, s62, v8")
    A("s_mov_b32 exec_lo, 0x11111111"); A("s_mov_b32 exec_hi, 0x11111111")
    A(f"ds_write_b128 v8, v[48:51] offset:{L_P}")
    A("s_mov_b64 exec, 0x10001")
    A("v_lshrrev_b32 v9, 1, v1")
    A("s_lshl_b32 s62, s31, 4")
    A("v_add_u32 v9, s62, v9")
    A(f"ds_write_b64 v9, v[32:33] offset:{L_ML}")
    A("s_mov_b64 exec, -1")
    signal(C_P)
    stamp(3)
    A("s_mul_i32 s62, s2, 911"); A("s_lshr_b32 s62, s62, 16")
    A("s_mul_i32 s63, s62, 72"); A("s_sub_u32 s63, s2, s63")
    A("s_mul_i32 s64, s62, 192"); A("s_mul_i32 s65, s31, 24"); A("s_add_u32 s64, s64, s65")
    A("s_mul_i32 s65, s64, 9216"); A("s_lshl_b32 s66, s63, 7"); A("s_add_u32 s65, s65, s66")
    A("v_mul_u32_u24 v4, 55296, v17")
    A("v_and_b32 v5, 7, v16")
    A("v_lshl_add_u32 v4, v5, 4, v4")
    A("v_add_u32 v4, s65, v4")
    A("v_mov_b32 v8, s16"); A("v_mov_b32 v9, s17")
    A("v_mov_b32 v10, s18"); A("v_mov_b32 v11, s19")
    A("v_cndmask_b32 v8, v10, v8, s[58:59]")
    A("v_cndmask_b32 v9, v11, v9, s[58:59]")
    A("v_add_co_u32 v8, vcc, v8, v4")
    A("v_addc_co_u32 v9, vcc, 0, v9, vcc")
    A("s_mov_b32 s46, 9216"); A("s_mov_b32 s47, 0")
    A("v_lshlrev_b32 v12, 4, v16")
    A("s_lshl_b32 s66, s31, 8")
    A("v_add_u32 v12, s66, v12")
    A("v_mul_u32_u24 v13, 4608, v17"); A("v_add_u32 v13, v13, v12")
    A("v_mul_u32_u24 v14, 1152, v17"); A("v_add_u32 v14, v14, v12")
    A("s_lshl_b32 s66, s38, 8"); A("s_lshl_b32 s67, s39, 4"); A("s_add_u32 s66, s66, s67")
    A("s_mul_i32 s66, s66, 1152")
    base_add(48, 12, "s66")
    A("s_mul_i32 s66, s2, 20736")
    base_add(50, 20, "s66")
    for i in range(4): A(f"v_mov_b32 v{120+i}, 0")
    spin(C_VISS, 8, vt="v15")
    lnogu = lab("nogu")
    A(f"s_cmp_ge_u32 s2, {ngu}")
    A(f"s_cbranch_scc1 {lnogu}")
    for j in range(6):
        A(f"global_load_dwordx4 v[{64+4*j}:{67+4*j}], v[8:9], off{NT}")
        if j < 5: A("v_lshl_add_u64 v[8:9], v[8:9], 0, s[46:47]")
    A.label(lnogu)
    lnowo = lab("nowo")
    A("s_cmp_ge_u32 s31, 5")
    A(f"s_cbranch_scc1 {lnowo}")
    A("s_cmp_eq_u32 s31, 4")
    A("s_cselect_b32 s60, 0x00ff00ff, -1")
    A("s_mov_b32 exec_lo, s60"); A("s_mov_b32 exec_hi, s60")
    for j in range(4):
        A(f"global_load_dwordx4 v[{88+4*j}:{91+4*j}], v13, s[48:49] offset:{1152*j}{NT}")
    for j in range(4):
        A(f"global_load_dwordx4 v[{104+4*j}:{107+4*j}], v14, s[50:51]{NT}")
        A("v_add_u32 v14, 4608, v14")
    A("s_mov_b32 exec_hi, 0")
    A("global_load_dwordx4 v[120:123], v14, s[50:51]" + NT)
    A("s_mov_b64 exec, -1")
    A.label(lnowo)
    stamp(4)
    lgudone = lab("gudone")
    A(f"s_cmp_ge_u32 s2, {ngu}")
    A(f"s_cbranch_scc1 {lgudone}")
    A("v_and_b32 v4, 1, v1")
    A("v_mul_u32_u24 v4, 1152, v4")
    A("v_mul_u32_u24 v5, 12, v17")
    A("v_add_u32 v4, v4, v5")
    A("s_lshl_b32 s64, s64, 1")
    A("v_add_u32 v4, s64, v4")
    A(f"ds_read_b32 v24, v4 offset:{L_XN}")
    A(f"ds_read_b32 v25, v4 offset:{L_XN+4}")
    A(f"ds_read_b32 v26, v4 offset:{L_XN+8}")
    A("v_mov_b32 v27, 0")
    A("v_mov_b32 v11, 0"); A("v_mov_b32 v15, 0")
    lw9 = lab("w9"); lw0 = lab("w0")
    A("s_cmp_ge_u32 s31, 5"); A(f"s_cbranch_scc1 {lw0}")
    A("s_waitcnt vmcnt(9) lgkmcnt(0)"); A(f"s_branch {lw9}")
    A.label(lw0); A("s_waitcnt vmcnt(0) lgkmcnt(0)")
    A.label(lw9)
    stamp(5)
    def perms(f, setreg, L, npairs):
        c = f >> 1; sel = "s37" if f & 1 else "s36"
        for i in range(npairs):
            A(f"v_perm_b32 v{setreg+i}, v{L[2*i+1]+c}, v{L[2*i]+c}, {sel}")
    Lg = [64 + 4*j for j in range(6)]
    sets = [8, 12]
    perms(0, sets[0], Lg, 3)
    for f in range(8):
        if f + 1 < 8: perms(f+1, sets[(f+1) & 1], Lg, 3)
        s = sets[f & 1]
        A(f"v_mfma_f32_16x16x32_bf16 v[{32+4*f}:{35+4*f}], v[24:27], v[{s}:{s+3}], 0")
    for b in range(2):
        for f in range(8): A(f"v_mov_b32 v{64+8*b+f}, v{32+4*f+b}")
    A("v_lshlrev_b32 v4, 5, v16")
    A("s_lshl_b32 s60, s31, 10")
    A("v_add_u32 v4, s60, v4")
    A("s_mov_b64 exec, 0xffff")
    for b in range(2):
        A(f"ds_write_b128 v4, v[{64+8*b}:{67+8*b}] offset:{L_RG+512*b}")
        A(f"ds_write_b128 v4, v[{68+8*b}:{71+8*b}] offset:{L_RG+512*b+16}")
    A("s_mov_b64 exec, -1")
    signal(C_RG)
    A.label(lgudone)
    stamp(6)
    A("s_cmp_ge_u32 s31, 5")
    A("s_cbranch_scc1 L_kend")
    A("s_waitcnt vmcnt(0)")
    stamp(7)
    Lw = [88 + 4*j for j in range(4)]
    Ld = [104 + 4*j for j in range(4)]
    for f in range(8):
        c = f >> 1; sel = "s37" if f & 1 else "s36"
        for i in range(2): A(f"v_perm_b32 v{32+2*f+i}, v{Lw[2*i+1]+c}, v{Lw[2*i]+c}, {sel}")
    for f in range(8):
        c = f >> 1; sel = "s37" if f & 1 else "s36"
        for i in range(2): A(f"v_perm_b32 v{48+4*f+i}, v{Ld[2*i+1]+c}, v{Ld[2*i]+c}, {sel}")
        if f & 1: A(f"v_lshrrev_b32 v{48+4*f+2}, 16, v{120+c}")
        else: A(f"v_and_b32 v{48+4*f+2}, 0xffff, v{120+c}")
        A(f"v_mov_b32 v{48+4*f+3}, 0")
    A("v_and_b32 v4, 1, v1")
    A("v_lshlrev_b32 v4, 2, v4"); A("v_add_u32 v4, v4, v17")
    A("v_lshlrev_b32 v5, 3, v4")
    A("v_lshlrev_b32 v6, 4, v4")
    A("v_and_b32 v7, 1, v17"); A("v_mul_u32_u24 v7, 72, v7"); A("v_add_u32 v7, v7, v16")
    A("s_lshl_b32 s60, s31, 4"); A("v_add_u32 v7, s60, v7")
    A("v_lshlrev_b32 v7, 13, v7")
    A("v_lshrrev_b32 v8, 1, v17"); A("v_lshl_add_u32 v7, v8, 4, v7")
    A("s_lshl_b32 s60, s2, 5"); A(f"s_add_u32 s60, s60, {WS_FS}")
    base_add(44, 26, "s60")
    spin(F_Z, 1, vt="v15")
    A(f"ds_read_b64 v[8:9], v5 offset:{L_ZA}")
    A("s_waitcnt lgkmcnt(0)")
    for f in range(8):
        A(f"v_mfma_f32_16x16x16_bf16 v[{80+4*f}:{83+4*f}], v[8:9], v[{32+2*f}:{33+2*f}], 0")
    stamp(8)
    spin(F_H, 1, vt="v15")
    A(f"ds_read_b128 v[12:15], v6 offset:{L_HA}")
    A("s_waitcnt lgkmcnt(0)")
    for f in range(8):
        A(f"v_mfma_f32_16x16x32_bf16 v[{80+4*f}:{83+4*f}], v[12:15], v[{48+4*f}:{51+4*f}], v[{80+4*f}:{83+4*f}]")
    A("s_mov_b32 s60, 0xffff0000"); A("s_mov_b32 s61, 0xffff0000")
    A("s_mov_b32 s62, 0"); A("s_mov_b32 s63, -1")
    for i in range(4):
        A(f"v_cndmask_b32 v{32+i}, v{80+4*i}, v{81+4*i}, s[60:61]")
    for i in range(4):
        A(f"v_cndmask_b32 v{36+i}, v{96+4*i}, v{97+4*i}, s[60:61]")
    for i in range(4):
        A(f"v_cndmask_b32 v{32+i}, v{32+i}, v{36+i}, s[62:63]")
    tagset(32)
    A("s_cmp_eq_u32 s31, 4")
    A("s_cselect_b32 s60, 0x00ff00ff, -1")
    A("s_mov_b32 exec_lo, s60"); A("s_mov_b32 exec_hi, s60")
    A("global_store_dwordx4 v7, v[32:35], s[44:45] sc1")
    A("s_mov_b64 exec, -1")
    signal(C_F)
    stamp(9)
    A.label("L_kend")
    stamp_dump("K")
    A("s_endpgm")

    A.label("L_vwave")
    A("s_cmp_ge_u32 s31, 6")
    A("s_cbranch_scc1 L_v67")
    A("s_lshr_b32 s60, s39, 1"); A("s_mul_i32 s60, s60, 72"); A("s_mul_i32 s61, s31, 12"); A("s_add_u32 s64, s60, s61")
    A("s_lshl_b32 s60, s64, 13"); A("s_lshl_b32 s61, s38, 9"); A("s_add_u32 s60, s60, s61")
    A("s_and_b32 s61, s39, 1"); A("s_lshl_b32 s61, s61, 8"); A("s_add_u32 s60, s60, s61")
    A("v_lshlrev_b32 v4, 13, v17"); A("v_lshl_add_u32 v4, v16, 4, v4")
    A("s_waitcnt lgkmcnt(0)")
    A("s_load_dwordx2 s[28:29], s[26:27], 0")
    base_add(44, 10, "s60")
    for j in range(3):
        A(f"global_load_dwordx4 v[{64+4*j}:{67+4*j}], v4, s[44:45]{NT}")
        if j < 2: base_add(44, 44, 32768)
    A("s_barrier")
    A("v_and_b32 v4, 1, v1"); A("v_mul_u32_u24 v4, 1152, v4")
    A("v_lshl_add_u32 v4, v17, 1, v4")
    A("s_lshl_b32 s60, s64, 1"); A("v_add_u32 v4, s60, v4")
    spin(C_XN, 1, vt="v5")
    A(f"ds_read_u16 v8, v4 offset:{L_XN}")
    A(f"ds_read_u16 v10, v4 offset:{L_XN+8}")
    A(f"ds_read_u16 v9, v4 offset:{L_XN+16}")
    A("s_waitcnt lgkmcnt(0)")
    A("v_lshl_or_b32 v8, v10, 16, v8")
    A("s_waitcnt vmcnt(0)")
    stamp(1)
    sets = [10, 12]
    def qfrag(f):
        c = f >> 1; s = sets[f & 1]; sel = "s37" if f & 1 else "s36"
        A(f"v_perm_b32 v{s}, v{68+c}, v{64+c}, {sel}")
        if f & 1: A(f"v_lshrrev_b32 v{s+1}, 16, v{72+c}")
        else: A(f"v_and_b32 v{s+1}, 0xffff, v{72+c}")
    qfrag(0)
    for f in range(8):
        if f + 1 < 8: qfrag(f + 1)
        s = sets[f & 1]
        A(f"v_mfma_f32_16x16x16_bf16 v[{32+4*f}:{35+4*f}], v[8:9], v[{s}:{s+1}], 0")
    for b in range(2):
        for f in range(8): A(f"v_mov_b32 v{64+8*b+f}, v{32+4*f+b}")
    A("v_lshlrev_b32 v4, 5, v16")
    A("s_lshl_b32 s60, s31, 10"); A("v_add_u32 v4, s60, v4")
    A("s_mov_b64 exec, 0xffff")
    for b in range(2):
        A(f"ds_write_b128 v4, v[{64+8*b}:{67+8*b}] offset:{L_QP+512*b}")
        A(f"ds_write_b128 v4, v[{68+8*b}:{71+8*b}] offset:{L_QP+512*b+16}")
    A("s_mov_b64 exec, -1")
    arrive(C_QP, "s60")
    A("s_cmp_lg_u32 s60, 5")
    A("s_cbranch_scc1 L_vmain")
    A("v_lshlrev_b32 v4, 4, v1")
    for w in range(6): A(f"ds_read_b128 v[{64+4*w}:{67+4*w}], v4 offset:{L_QP+1024*w}")
    tags_from_epoch()
    for w in range(1, 6):
        for i in range(4): A(f"v_add_f32 v{64+i}, v{64+i}, v{64+4*w+i}")
    tagset(64)
    A("v_lshrrev_b32 v5, 5, v1"); A("v_lshlrev_b32 v5, 13, v5")
    A("v_and_b32 v6, 31, v1"); A("v_lshl_add_u32 v5, v6, 4, v5")
    A("s_lshl_b32 s60, s38, 14"); A("s_lshr_b32 s61, s39, 1"); A("s_lshl_b32 s61, s61, 10"); A("s_add_u32 s60, s60, s61")
    A("s_and_b32 s61, s39, 1"); A("s_lshl_b32 s61, s61, 9"); A("s_add_u32 s60, s60, s61")
    A(f"s_add_u32 s60, s60, {WS_QS}")
    base_add(44, 26, "s60")
    A("global_store_dwordx4 v5, v[64:67], s[44:45] sc1")
    stamp(2)
    A("s_mov_b32 s43, 1")
    A("s_branch L_vmain2")
    A.label("L_v67")
    A("s_cmp_eq_u32 s31, 7")
    A("s_cbranch_scc1 L_v7")
    A("v_lshlrev_b32 v4, 2, v1")
    A(f"ds_write_b32 v4, {VZ}")
    A(f"ds_write_b32 v4, {VZ} offset:{L_HA}")
    A("s_waitcnt lgkmcnt(0)")
    A("s_load_dwordx2 s[28:29], s[26:27], 0")
    A("s_barrier")
    A("s_branch L_vmain")
    A.label("L_v7")
    A("v_lshrrev_b32 v4, 5, v1"); A("v_mul_u32_u24 v4, 1152, v4")
    A("v_and_b32 v5, 31, v1"); A("v_lshl_add_u32 v4, v5, 2, v4")
    A("s_waitcnt lgkmcnt(0)")
    A("s_load_dwordx2 s[28:29], s[26:27], 0")
    for t in range(9): A(f"global_load_dword v{64+t}, v4, s[4:5] offset:{128*t}")
    A("s_barrier")
    A("s_waitcnt vmcnt(0)")
    stamp(1)
    X = [f"v{80+i}" for i in range(18)]
    for t in range(9):
        A(f"v_lshlrev_b32 {X[2*t]}, 16, v{64+t}")
        A(f"v_and_b32 {X[2*t+1]}, 0xffff0000, v{64+t}")
    def sum18(vals, dst, sq=False):
        if sq:
            for i in range(9):
                A(f"v_mul_f32 v{32+i}, {vals[2*i]}, {vals[2*i]}")
            for i in range(9):
                A(f"v_fmac_f32 v{32+i}, {vals[2*i+1]}, {vals[2*i+1]}")
        else:
            for i in range(9): A(f"v_add_f32 v{32+i}, {vals[2*i]}, {vals[2*i+1]}")
        for i in range(4): A(f"v_add_f32 v{32+i}, v{32+i}, v{36+i}")
        A("v_add_f32 v32, v32, v33"); A("v_add_f32 v34, v34, v35"); A("v_add_f32 v32, v32, v40")
        A(f"v_add_f32 {dst}, v32, v34")
        dpp("v_add_f32", [dst], "quad_perm:[1,0,3,2]")
        dpp("v_add_f32", [dst], "quad_perm:[2,3,0,1]")
        dpp("v_add_f32", [dst], "row_ror:4")
        dpp("v_add_f32", [dst], "row_ror:8")
        butterfly16("v_add_f32", [dst], ["v33"])
    sum18(X, "v8")
    A("s_mov_b32 s60, 0x3ae38e39")
    A("v_mul_f32 v8, s60, v8")
    D = [f"v{100+i}" for i in range(18)]
    for i in range(18): A(f"v_sub_f32 {D[i]}, {X[i]}, v8")
    sum18(D, "v9", sq=True)
    A("v_mul_f32 v9, s60, v9")
    def bf16r(r):
        A(f"v_cvt_pk_bf16_f32 {r}, {r}, {r}"); A(f"v_and_b32 {r}, 0xffff0000, {r}")
    bf16r("v8"); bf16r("v9")
    A("v_add_f32 v9, 0x3727c5ac, v9")
    bf16r("v9")
    A("v_sqrt_f32 v9, v9")
    bf16r("v9")
    A("v_rcp_f32 v10, v9")
    A("v_fma_f32 v11, -v9, v10, 1.0")
    A("v_fma_f32 v10, v10, v11, v10")
    for i in range(18): A(f"v_sub_f32 {D[i]}, {X[i]}, v8")
    for t in range(9): A(f"v_cvt_pk_bf16_f32 v{32+t}, {D[2*t]}, {D[2*t+1]}")
    for t in range(9):
        A(f"v_lshlrev_b32 {D[2*t]}, 16, v{32+t}")
        A(f"v_and_b32 {D[2*t+1]}, 0xffff0000, v{32+t}")
    for i in range(18): A(f"v_mul_f32 {D[i]}, {D[i]}, v10")
    for t in range(9): A(f"v_cvt_pk_bf16_f32 v{32+t}, {D[2*t]}, {D[2*t+1]}")
    for t in range(9): A(f"ds_write_b32 v4, v{32+t} offset:{L_XN+128*t}")
    signal(C_XN)
    stamp(2)
    A.label("L_vmain")
    tags_from_epoch()
    A.label("L_vmain2")
    A("s_lshl_b32 s60, s2, 17"); A("s_lshl_b32 s61, s31, 14"); A("s_add_u32 s60, s60, s61")
    base_add(44, 8, "s60")
    A("v_lshlrev_b32 v5, 4, v1")
    spin(C_KISS, 8)
    for i in range(16):
        if i and i % 4 == 0: base_add(44, 44, 4096)
        A(f"global_load_dwordx4 v[{64+4*i}:{67+4*i}], v5, s[44:45] offset:{(i%4)*1024}{NT}")
    signal(C_VISS)
    stamp(3)
    A("v_and_b32 v6, 1, v1"); A("v_lshlrev_b32 v6, 2, v6"); A("v_add_u32 v6, v6, v17"); A("v_lshlrev_b32 v6, 4, v6")
    A("s_lshl_b32 s60, s31, 8"); A("v_add_u32 v6, s60, v6")
    A("v_and_b32 v7, 7, v1"); A("v_lshlrev_b32 v7, 4, v7"); A("v_bfe_u32 v8, v1, 3, 1"); A("v_lshl_add_u32 v7, v8, 3, v7")
    spin(C_P, 8)
    A(f"ds_read_b128 v[20:23], v6 offset:{L_P}")
    A(f"ds_read_b128 v[24:27], v6 offset:{L_P+128}")
    A(f"ds_read_b64 v[28:29], v7 offset:{L_ML}")
    A("s_waitcnt lgkmcnt(0)")
    stamp(4)
    A("v_mov_b32 v30, v28")
    dpp("v_max_f32", ["v30"], "quad_perm:[1,0,3,2]")
    dpp("v_max_f32", ["v30"], "quad_perm:[2,3,0,1]")
    dpp("v_max_f32", ["v30"], "row_half_mirror")
    A("v_and_b32 v30, 0xfffff000, v30")
    A("v_sub_f32 v31, v28, v30")
    A(f"v_mul_f32 v31, {LOG2E:#x}, v31")
    A("v_exp_f32 v31, v31")
    A("v_mul_f32 v29, v31, v29")
    dpp("v_add_f32", ["v29"], "quad_perm:[1,0,3,2]")
    dpp("v_add_f32", ["v29"], "quad_perm:[2,3,0,1]")
    dpp("v_add_f32", ["v29"], "row_half_mirror")
    A("s_add_u32 s60, s31, 8")
    A("v_readlane_b32 s52, v31, s31")
    A("v_readlane_b32 s53, v31, s60")
    A("v_readlane_b32 s54, v30, 0"); A("v_readlane_b32 s55, v30, 8")
    A("v_readlane_b32 s56, v29, 0"); A("v_readlane_b32 s57, v29, 8")
    sets = [8, 12]
    for T in range(2):
        A(f"s_waitcnt vmcnt({8 if T == 0 else 0})")
        if T == 1: stamp(5)
        Lv = [64 + 32*T + 4*j for j in range(8)]
        perms(0, sets[0], Lv, 4)
        for f in range(8):
            if f + 1 < 8: perms(f+1, sets[(f+1) & 1], Lv, 4)
            s = sets[f & 1]
            C = "0" if T == 0 else f"v[{32+4*f}:{35+4*f}]"
            A(f"v_mfma_f32_16x16x32_bf16 v[{32+4*f}:{35+4*f}], v[{20+4*T}:{23+4*T}], v[{s}:{s+3}], {C}")
    for h in range(2):
        for f in range(8): A(f"v_mul_f32 v{64+8*h+f}, s{52+h}, v{32+4*f+h}")
    A("v_lshlrev_b32 v4, 5, v16")
    A("s_lshl_b32 s60, s31, 10"); A("v_add_u32 v4, s60, v4")
    A("s_mov_b64 exec, 0xffff")
    for h in range(2):
        A(f"ds_write_b128 v4, v[{64+8*h}:{67+8*h}] offset:{L_RO+512*h}")
        A(f"ds_write_b128 v4, v[{68+8*h}:{71+8*h}] offset:{L_RO+512*h+16}")
    A("s_mov_b64 exec, -1")
    arrive(C_RO, "s60")
    A("s_cmp_eq_u32 s60, 0")
    A("s_cbranch_scc1 L_vgu")
    A("s_cmp_lg_u32 s60, 7")
    A("s_cbranch_scc1 L_vfinal")
    stamp(6)
    A("v_lshlrev_b32 v4, 4, v1")
    for w in range(8): A(f"ds_read_b128 v[{64+4*w}:{67+4*w}], v4 offset:{L_RO+1024*w}")
    A("v_lshrrev_b32 v5, 2, v1"); A("v_lshlrev_b32 v5, 10, v5"); A("v_and_b32 v6, 3, v1"); A("v_lshl_add_u32 v5, v6, 4, v5")
    A("s_lshl_b32 s60, s38, 14"); A("s_lshl_b32 s61, s39, 6"); A("s_add_u32 s61, s61, s60"); A(f"s_add_u32 s61, s61, {WS_OS}")
    base_add(44, 26, "s61")
    A("s_waitcnt lgkmcnt(0)")
    for w in range(1, 8):
        for i in range(4): A(f"v_add_f32 v{64+i}, v{64+i}, v{64+4*w+i}")
    tagset(64)
    A("global_store_dwordx4 v5, v[64:67], s[44:45] sc1")
    A("s_mov_b32 s62, 0"); A("s_mov_b32 s63, -1")
    A("v_mov_b32 v68, s54"); A("v_mov_b32 v70, s55"); A("v_cndmask_b32 v68, v68, v70, s[62:63]")
    A("v_mov_b32 v69, s56"); A("v_mov_b32 v70, s57"); A("v_cndmask_b32 v69, v69, v70, s[62:63]")
    A("v_mov_b32 v70, 0"); A("v_mov_b32 v71, 0")
    tagset(68)
    A("v_lshrrev_b32 v7, 5, v1"); A("v_lshlrev_b32 v7, 8, v7")
    A("s_lshl_b32 s60, s38, 9"); A("s_lshl_b32 s61, s39, 4"); A("s_add_u32 s60, s60, s61"); A(f"s_add_u32 s60, s60, {WS_ML}")
    base_add(46, 26, "s60")
    A("s_mov_b32 exec_lo, 1"); A("s_mov_b32 exec_hi, 1")
    A("global_store_dwordx4 v7, v[68:71], s[46:47] sc1")
    A("s_mov_b64 exec, -1")
    stamp(7)
    A("s_lshl_b32 s60, s38, 14"); A("s_lshl_b32 s61, s39, 10"); A("s_add_u32 s61, s61, s60"); A(f"s_add_u32 s61, s61, {WS_OS}")
    base_add(44, 26, "s61")
    A("s_lshl_b32 s60, s38, 1"); A("s_add_u32 s60, s60, s40"); A("s_lshl_b32 s60, s60, 8"); A(f"s_add_u32 s60, s60, {WS_ML}")
    base_add(46, 26, "s60")
    A("v_lshrrev_b32 v5, 2, v1"); A("v_lshlrev_b32 v5, 4, v5")
    lp = lab("opoll"); ld = lab("odone")
    A.label(lp)
    A("global_load_dwordx4 v[64:67], v4, s[44:45] sc1")
    A("global_load_dwordx4 v[68:71], v5, s[46:47] sc1")
    A("s_waitcnt vmcnt(0)")
    tagcheck(64, "v8", "v9", "v10")
    A("s_mov_b64 s[62:63], vcc")
    tagcheck(68, "v8", "v9", "v10")
    A("s_or_b64 vcc, vcc, s[62:63]")
    A(f"s_cbranch_vccz {ld}")
    A("s_sub_u32 s42, s42, 64")
    A(f"s_cbranch_scc0 {lp}")
    A.label(ld)
    stamp(8)
    untag(64); untag(68, 2)
    A("v_mov_b32 v8, v68")
    dpp("v_max_f32", ["v8"], "row_ror:4"); dpp("v_max_f32", ["v8"], "row_ror:8")
    butterfly16("v_max_f32", ["v8"], ["v9"])
    A("v_sub_f32 v8, v68, v8"); A(f"v_mul_f32 v8, {LOG2E:#x}, v8"); A("v_exp_f32 v8, v8")
    A("v_mul_f32 v69, v8, v69")
    for i in range(4): A(f"v_mul_f32 v{64+i}, v8, v{64+i}")
    z = ["v64", "v65", "v66", "v67", "v69"]
    dpp("v_add_f32", z, "row_ror:4"); dpp("v_add_f32", z, "row_ror:8")
    butterfly16("v_add_f32", z, ["v8", "v9", "v10", "v11", "v12"])
    A("v_rcp_f32 v8, v69")
    A("v_fma_f32 v9, -v69, v8, 1.0"); A("v_fma_f32 v8, v8, v9, v8")
    for i in range(4): A(f"v_mul_f32 v{64+i}, v{64+i}, v8")
    A("v_cvt_pk_bf16_f32 v8, v64, v65"); A("v_cvt_pk_bf16_f32 v9, v66, v67")
    A("v_lshrrev_b32 v10, 5, v1"); A("v_lshlrev_b32 v10, 2, v10"); A("v_and_b32 v11, 3, v1"); A("v_add_u32 v10, v10, v11")
    A("v_lshlrev_b32 v10, 3, v10")
    A("s_mov_b32 exec_lo, 0xf"); A("s_mov_b32 exec_hi, 0xf")
    A(f"ds_write_b64 v10, v[8:9] offset:{L_ZA}")
    A("s_mov_b64 exec, -1")
    signal(F_Z)
    stamp(9)
    A("s_branch L_vfinal")
    A.label("L_vgu")
    lnp = lab("nopub")
    A(f"s_cmp_ge_u32 s2, {ngu}")
    A(f"s_cbranch_scc1 {lnp}")
    A("s_mul_i32 s62, s2, 911"); A("s_lshr_b32 s62, s62, 16"); A("s_mul_i32 s63, s62, 72"); A("s_sub_u32 s63, s2, s63")
    A("s_mul_i32 s60, s62, 73728"); A("s_lshl_b32 s61, s63, 8"); A("s_add_u32 s60, s60, s61"); A(f"s_add_u32 s60, s60, {WS_GS}")
    base_add(44, 26, "s60")
    A("v_mul_u32_u24 v5, 18432, v17"); A("v_lshl_add_u32 v5, v16, 4, v5")
    A("v_and_b32 v6, 1, v17"); A("v_lshlrev_b32 v6, 9, v6"); A("v_lshrrev_b32 v7, 1, v17"); A("v_lshl_add_u32 v6, v7, 8, v6")
    A("v_lshl_add_u32 v6, v16, 4, v6")
    spin(C_RG, 8)
    for w in range(8): A(f"ds_read_b128 v[{64+4*w}:{67+4*w}], v6 offset:{L_RG+1024*w}")
    A("s_waitcnt lgkmcnt(0)")
    for w in range(1, 8):
        for i in range(4): A(f"v_add_f32 v{64+i}, v{64+i}, v{64+4*w+i}")
    tagset(64)
    A("global_store_dwordx4 v5, v[64:67], s[44:45] sc1")
    A.label(lnp)
    stamp(7)
    A("s_mul_i32 s60, s2, 18"); A("s_and_b32 s64, s60, 3"); A("s_lshr_b32 s60, s60, 2"); A("s_lshl_b32 s60, s60, 4")
    A(f"s_add_u32 s60, s60, {WS_GS}")
    base_add(44, 26, "s60")
    A("v_lshrrev_b32 v5, 2, v1"); A("v_mul_u32_u24 v5, 18432, v5"); A("v_and_b32 v6, 3, v1"); A("v_lshl_add_u32 v5, v6, 4, v5")
    A("v_mov_b32 v64, 0"); A("v_mov_b32 v65, 0"); A("v_mov_b32 v66, 0"); A("v_mov_b32 v67, 0")
    A("v_mov_b32 v68, 0"); A("v_mov_b32 v69, 0"); A("v_mov_b32 v70, 0"); A("v_mov_b32 v71, 0")
    lp = lab("gpoll"); ld = lab("gdone")
    A.label(lp)
    A("s_mov_b32 exec_hi, 0x0000ffff")
    A("global_load_dwordx4 v[64:67], v5, s[44:45] sc1")
    A("s_mov_b32 exec_lo, 0x11111111"); A("s_mov_b32 exec_hi, 0x00001111")
    A("global_load_dwordx4 v[68:71], v5, s[44:45] offset:64 sc1")
    A("s_waitcnt vmcnt(0)")
    tagcheck(68, "v8", "v9", "v10")
    A("s_mov_b64 s[62:63], vcc")
    A("s_mov_b32 exec_lo, -1"); A("s_mov_b32 exec_hi, 0x0000ffff")
    tagcheck(64, "v8", "v9", "v10")
    A("s_or_b64 vcc, vcc, s[62:63]")
    A("s_mov_b64 exec, -1")
    A(f"s_cbranch_vccz {ld}")
    A("s_sub_u32 s42, s42, 64")
    A(f"s_cbranch_scc0 {lp}")
    A.label(ld)
    stamp(8)
    untag(64, 8)
    gv = [f"v{64+i}" for i in range(8)]
    tv = [f"v{72+i}" for i in range(8)]
    butterfly16("v_add_f32", gv, tv)
    butterfly32("v_add_f32", gv, tv)
    for p in range(4): A(f"v_cvt_pk_bf16_f32 v{72+p}, v{64+2*p}, v{65+2*p}")
    for p in range(4):
        A(f"v_lshlrev_b32 v{64+2*p}, 16, v{72+p}"); A(f"v_and_b32 v{65+2*p}, 0xffff0000, v{72+p}")
    for i in range(8):
        A(f"v_mul_f32_dpp v{72+i}, v{64+i}, v{64+i} row_ror:8 row_mask:0xf bank_mask:0xf")
    for p in range(4): A(f"v_cvt_pk_bf16_f32 v{64+p}, v{72+2*p}, v{73+2*p}")
    A("v_bfe_u32 v8, v1, 2, 1"); A("v_lshlrev_b32 v8, 6, v8")
    A("v_lshlrev_b32 v9, 2, v6"); A("v_subrev_u32 v9, s64, v9")
    A("s_mov_b64 exec, 0xff")
    for s_ in range(2):
        for i in range(4):
            A(f"v_add_u32 v10, {16*s_+i}, v9")
            A("v_and_b32 v11, 3, v10"); A("v_lshlrev_b32 v11, 4, v11")
            A("v_lshrrev_b32 v12, 2, v10"); A("v_lshl_add_u32 v11, v12, 1, v11"); A("v_add_u32 v11, v11, v8")
            A("v_cmp_gt_u32 vcc, 18, v10")
            if s_ == 1:
                A("s_and_b64 vcc, vcc, 0x11")
            A(f"v_mov_b32 v12, {L_DUMMY-L_HA}")
            A("v_cndmask_b32 v11, v12, v11, vcc")
            src = f"v{64 + 2*s_ + (i >> 1)}"
            if i & 1: A(f"ds_write_b16_d16_hi v11, {src} offset:{L_HA}")
            else: A(f"ds_write_b16 v11, {src} offset:{L_HA}")
    A("s_mov_b64 exec, -1")
    signal(F_H)
    stamp(9)
    A.label("L_vfinal")
    A("s_cmp_ge_u32 s2, 144")
    A("s_cbranch_scc1 L_vend")
    A("s_lshl_b32 s60, s2, 13"); A("s_lshl_b32 s61, s31, 10"); A("s_add_u32 s60, s60, s61"); A(f"s_add_u32 s60, s60, {WS_FS}")
    base_add(44, 26, "s60")
    A("v_lshlrev_b32 v5, 4, v1")
    A("s_cmp_ge_u32 s2, 72"); A("s_cselect_b32 s60, 72, 0"); A("s_cselect_b32 s61, 1152, 0")
    A("s_sub_u32 s60, s2, s60"); A("s_lshl_b32 s60, s60, 4"); A("s_add_u32 s64, s60, s61")
    A("v_and_b32 v6, 1, v1"); A("v_lshlrev_b32 v6, 3, v6"); A("v_add_u32 v6, s64, v6")
    A("global_load_dwordx2 v[30:31], v6, s[4:5]")
    spin(C_F, 5)
    stamp(10)
    lp = lab("fpoll"); ld = lab("fdone")
    A.label(lp)
    A("global_load_dwordx4 v[64:67], v5, s[44:45] sc1")
    A("s_waitcnt vmcnt(0)")
    tagcheck(64, "v8", "v9", "v10")
    A(f"s_cbranch_vccz {ld}")
    A("s_sub_u32 s42, s42, 64")
    A(f"s_cbranch_scc0 {lp}")
    A.label(ld)
    stamp(11)
    untag(64)
    z = ["v64", "v65", "v66", "v67"]
    dpp("v_add_f32", z, "quad_perm:[2,3,0,1]")
    dpp("v_add_f32", z, "row_ror:4"); dpp("v_add_f32", z, "row_ror:8")
    butterfly16("v_add_f32", z, ["v8", "v9", "v10", "v11"])
    butterfly32("v_add_f32", z, ["v8", "v9", "v10", "v11"])
    A("v_and_b32 v7, 1, v1"); A("v_lshlrev_b32 v7, 4, v7")
    A("s_lshl_b32 s60, s31, 5"); A("v_add_u32 v8, s60, v7")
    A("s_mov_b64 exec, 3")
    A(f"ds_write_b128 v8, v[64:67] offset:{L_FR}")
    A("s_mov_b64 exec, -1")
    arrive(C_FR, "s60")
    A("s_cmp_lg_u32 s60, 7")
    A("s_cbranch_scc1 L_vend")
    for w in range(8): A(f"ds_read_b128 v[{64+4*w}:{67+4*w}], v7 offset:{L_FR+32*w}")
    A("s_waitcnt lgkmcnt(0)")
    for w in range(1, 8):
        for i in range(4): A(f"v_add_f32 v{64+i}, v{64+i}, v{64+4*w+i}")
    A("v_lshlrev_b32 v8, 16, v30"); A("v_and_b32 v9, 0xffff0000, v30")
    A("v_lshlrev_b32 v10, 16, v31"); A("v_and_b32 v11, 0xffff0000, v31")
    for i in range(4): A(f"v_add_f32 v{64+i}, v{64+i}, v{8+i}")
    A("v_cvt_pk_bf16_f32 v8, v64, v65"); A("v_cvt_pk_bf16_f32 v9, v66, v67")
    A("s_mov_b64 exec, 3")
    A("global_store_dwordx2 v6, v[8:9], s[22:23]")
    A("s_cmp_lg_u32 s2, 0")
    A("s_cbranch_scc1 L_vend2")
    A("s_mov_b64 exec, 1")
    A("v_mov_b32 v8, s28")
    A(f"global_store_dword {VZ}, v8, s[26:27] sc1")
    A.label("L_vend2")
    A("s_mov_b64 exec, -1")
    stamp(12)
    A.label("L_vend")
    stamp_dump("V")
    A.label("L_end")
    A("s_endpgm")
    lines, nn = A.finish()
    hdr = open("cdna_kernels/" + NAME + ".s.ref").read().split("; Override launch geometry")[0]
    out = hdr
    out += f"; @launch grid=(256,1,1) block=(1024,1,1) lds={LDS_BYTES}\n"
    out += f""".amdgcn_target "amdgcn-amd-amdhsa--gfx950"
.text
.globl {NAME}_kernel
.p2align 8
.type {NAME}_kernel,@function
{NAME}_kernel:
"""
    out += "\n".join(("    " + l) if not l.endswith(":") else l for l in lines)
    out += f"""
.section .rodata,"a"
.p2align 6
.amdhsa_kernel {NAME}_kernel
  .amdhsa_next_free_vgpr 128
  .amdhsa_next_free_sgpr 102
  .amdhsa_accum_offset 128
  .amdhsa_group_segment_fixed_size 0
  .amdhsa_kernarg_size 96
  .amdhsa_user_sgpr_count 2
  .amdhsa_user_sgpr_kernarg_segment_ptr 1
  .amdhsa_system_sgpr_workgroup_id_x 1
.end_amdhsa_kernel
"""
    return out, nn

if __name__ == "__main__":
    o, nn = gen()
    open("k1.s", "w").write(o)
    print("nops inserted:", nn, "lines:", o.count("\n"))
    o, nn = gen(diag=True)
    open("k1d.s", "w").write(o)
    o, nn = gen(diag=2)
    open("k1h.s", "w").write(o)
    o, nn = gen(diag=3)
    open("k1s.s", "w").write(o)
```

```python
import sys
from asmlib import Asm
NAME = "parallel_sum__gqa_block_cached__glu_gated_bilinear__decode"

WS_EPOCH = 0
WS_QS = 0x10000
WS_OS = 0x50000
WS_ML = 0x90000
WS_GS = 0xA0000
WS_FS = 0x100000
WS_STAMP = 0x800000
C_XN, C_QP, C_KISS, C_Q, C_P, C_VISS, C_RO, C_RG, F_Z, F_H, C_F, C_FR, C_GO, C_GISS = [4 * i for i in range(14)]
L_XN = 256
L_Q = 2560
L_P = 3072
L_ML = 5120
L_ZA = 5248
L_HA = 5312
L_DUMMY = 5440
L_FR = 6400
L_QP = 8192
L_RO = 16384
L_RG = 24576
LDS_BYTES = 32768
LOG2E = 0x3FB8AA3B
SCALE = 0x3DB504F3
NT = " nt"

def gen(diag=False, mimic=True, ngu=216, exp=None):
    A = Asm()
    uid = [0]
    def lab(p):
        uid[0] += 1; return f"L_{p}_{uid[0]}"
    VZ, VONE, VMASK = "v2", "v3", "v19"
    def stamp(i):
        if not diag: return
        assert i < 16
        A(f"s_memrealtime s[{70+2*i}:{71+2*i}]")
    def stamp_dump(role=None):
        if not diag: return
        if diag in (4, 5, 6): return
        if diag == 3:
            lskip = lab("nodump")
            A("s_waitcnt lgkmcnt(0)")
            A("s_mov_b64 exec, 1")
            if role == "K":
                A("s_cmp_lg_u32 s30, 0"); A(f"s_cbranch_scc1 {lskip}")
                A("s_not_b32 s60, s70"); A("v_mov_b32 v6, s60"); A(f"global_atomic_umax {VZ}, v6, s[24:25]")
                A("v_mov_b32 v7, s70"); A(f"global_atomic_umax {VZ}, v7, s[24:25] offset:4")
                A("s_and_b32 s60, s2, 7"); A("s_lshl_b32 s60, s60, 2"); A("v_mov_b32 v8, s60")
                A(f"global_atomic_umax v8, v7, s[24:25] offset:16")
            else:
                A("s_cmp_eq_u32 s94, 0"); A(f"s_cbranch_scc1 {lskip}")
                A("v_mov_b32 v7, s94"); A(f"global_atomic_umax {VZ}, v7, s[24:25] offset:8")
            A.label(lskip)
            A("s_mov_b64 exec, -1")
            return
        if diag == 2:
            lskip = lab("nodump")
            A("s_cmp_lg_u32 s2, 0"); A(f"s_cbranch_scc1 {lskip}")
            A("s_waitcnt lgkmcnt(0)")
            A("s_mov_b64 exec, 1")
            sel = {"K": [(1,2),(2,3),(3,4),(5,7),(7,8),(9,10)], "V": [(2,13),(3,5),(5,6),(8,9),(11,11),(12,12)]}[role]
            A("s_not_b32 s60, s70"); A("v_mov_b32 v6, s60"); A(f"global_atomic_umax {VZ}, v6, s[24:25]")
            A("v_mov_b32 v7, s70"); A(f"global_atomic_umax {VZ}, v7, s[24:25] offset:4")
            for k, (st, slot) in enumerate(sel):
                A(f"v_mov_b32 v{8+k}, s{70+2*st}"); A(f"global_atomic_umax {VZ}, v{8+k}, s[24:25] offset:{4*slot}")
            A("s_mov_b64 exec, -1")
            A.label(lskip)
            return
        A("s_waitcnt lgkmcnt(0)")
        A("s_mov_b64 exec, 1")
        A(f"s_lshl_b32 s60, s2, 12"); A("s_lshl_b32 s61, s30, 8"); A("s_add_u32 s60, s60, s61")
        A(f"s_add_u32 s60, s60, {WS_STAMP}")
        A("v_mov_b32 v4, s60")
        for i in range(16):
            A(f"v_mov_b32 v6, s{70+2*i}"); A(f"v_mov_b32 v7, s{71+2*i}")
            A(f"global_store_dwordx2 v4, v[6:7], s[26:27] offset:{8*i}")
            A("s_nop 1")
        A("s_mov_b64 exec, -1")

    def signal(cnt):
        A("s_waitcnt lgkmcnt(0)")
        A("s_mov_b64 exec, 1")
        A(f"ds_add_u32 {VZ}, {VONE} offset:{cnt}")
        A("s_mov_b64 exec, -1")
    def arrive(cnt, sdst, vt="v4"):
        A("s_waitcnt lgkmcnt(0)")
        A("s_mov_b64 exec, 1")
        A(f"ds_add_rtn_u32 {vt}, {VZ}, {VONE} offset:{cnt}")
        A("s_mov_b64 exec, -1")
        A("s_waitcnt lgkmcnt(0)")
        A(f"v_readfirstlane_b32 {sdst}, {vt}")
    def spin(cnt, n, vt="v4", sleep=1):
        l = lab("spin"); d = lab("spind")
        A.label(l)
        A(f"ds_read_b32 {vt}, {VZ} offset:{cnt}")
        A("s_waitcnt lgkmcnt(0)")
        A(f"v_readfirstlane_b32 s60, {vt}")
        A(f"s_cmp_ge_u32 s60, {n}")
        A(f"s_cbranch_scc1 {d}")
        A("s_sub_u32 s42, s42, 1")
        A(f"s_cbranch_scc1 {d}")
        if sleep: A(f"s_sleep {sleep}")
        A(f"s_branch {l}")
        A.label(d)
    def tagcheck(r, vt0, vt1, vt2):
        A(f"v_xor_b32 {vt0}, s32, v{r}")
        A(f"v_xor_b32 {vt1}, s33, v{r+1}")
        A(f"v_xor_b32 {vt2}, s34, v{r+2}")
        A(f"v_or3_b32 {vt0}, {vt0}, {vt1}, {vt2}")
        A(f"v_xor_b32 {vt1}, s35, v{r+3}")
        A(f"v_or_b32 {vt0}, {vt0}, {vt1}")
        A(f"v_and_b32 {vt0}, {VMASK}, {vt0}")
        A(f"v_cmp_ne_u32 vcc, 0, {vt0}")
    def tagset(r):
        for i in range(4):
            A(f"v_bfi_b32 v{r+i}, {VMASK}, s{32+i}, v{r+i}")
    def untag(r, n=4):
        for i in range(n):
            A(f"v_and_b32 v{r+i}, 0xfffff000, v{r+i}")
    def tags_from_epoch():
        A("s_waitcnt lgkmcnt(0)")
        A("s_add_u32 s28, s28, 1")
        A("s_and_b32 s32, s28, 0xfff")
        A("s_bfe_u32 s33, s28, 0xc000c")
        A("s_lshr_b64 s[60:61], s[28:29], 24"); A("s_and_b32 s34, s60, 0xfff")
        A("s_lshr_b64 s[60:61], s[28:29], 36"); A("s_and_b32 s35, s60, 0xfff")
    def butterfly16(op, regs, tmp):
        for r, t in zip(regs, tmp): A(f"v_mov_b32 {t}, {r}")
        for r, t in zip(regs, tmp): A(f"v_permlane16_swap_b32 {r}, {t}")
        for r, t in zip(regs, tmp): A(f"{op} {r}, {r}, {t}")
    def butterfly32(op, regs, tmp):
        for r, t in zip(regs, tmp): A(f"v_mov_b32 {t}, {r}")
        for r, t in zip(regs, tmp): A(f"v_permlane32_swap_b32 {r}, {t}")
        for r, t in zip(regs, tmp): A(f"{op} {r}, {r}, {t}")
    def dpp(op, regs, ctrl):
        for r in regs: A(f"{op}_dpp {r}, {r}, {r} {ctrl} row_mask:0xf bank_mask:0xf")
    def base_add(dst, src, off_sreg_or_imm):
        A(f"s_add_u32 s{dst}, s{src}, {off_sreg_or_imm}")
        A(f"s_addc_u32 s{dst+1}, s{src+1}, 0")

    A("s_cmp_ge_u32 s2, 256")
    A("s_cbranch_scc1 L_end")
    A("s_load_dwordx16 s[4:19], s[0:1], 0")
    A("s_load_dwordx8 s[20:27], s[0:1], 64")
    if diag:
        A("s_memrealtime s[70:71]")
        for i in range(72, 102): A(f"s_mov_b32 s{i}, 0")
        A("s_getreg_b32 s100, hwreg(HW_REG_XCC_ID)")
        A("s_getreg_b32 s98, hwreg(HW_REG_HW_ID)")
    A("v_lshrrev_b32 v4, 6, v0")
    A("v_and_b32 v1, 63, v0")
    A("v_readfirstlane_b32 s30, v4")
    A("s_lshr_b32 s40, s2, 7")
    A("s_bfe_u32 s38, s2, 0x40003")
    A("s_and_b32 s41, s2, 7")
    if exp == "rot":
        A("s_add_u32 s41, s41, s38"); A("s_and_b32 s41, s41, 7")
    A("s_andn2_b32 s3, s2, 7"); A("s_or_b32 s3, s3, s41")
    A("s_lshl_b32 s39, s40, 3")
    A("s_or_b32 s39, s39, s41")
    A("s_mov_b32 s36, 0x05040100")
    A("s_mov_b32 s37, 0x07060302")
    A("s_mov_b32 s42, 0x200000")
    A(f"v_mov_b32 {VZ}, 0")
    A(f"v_mov_b32 {VONE}, 1")
    A(f"v_mov_b32 {VMASK}, 0xfff")
    A("s_and_b32 s31, s30, 7")
    A("v_and_b32 v16, 15, v1")
    A("v_lshrrev_b32 v17, 4, v1")
    A("s_cmp_ge_u32 s30, 8")
    A("s_cbranch_scc1 L_vwave")

    A.c("K wave: keys [64w, 64w+64) of this workgroup's 512")
    A("v_bfe_u32 v4, v1, 2, 2")
    A("v_lshlrev_b32 v5, 8, v4")
    A("v_lshl_or_b32 v5, v17, 6, v5")
    A("v_and_b32 v4, 3, v1")
    A("v_lshl_or_b32 v5, v4, 4, v5")
    A("s_lshl_b32 s60, s3, 17")
    A("s_lshl_b32 s61, s31, 14")
    A("s_add_u32 s60, s60, s61")
    A("v_lshrrev_b32 v6, 3, v1")
    A("v_lshlrev_b32 v6, 10, v6")
    A("v_and_b32 v7, 7, v1")
    A("v_lshl_or_b32 v6, v7, 4, v6")
    A("s_lshl_b32 s62, s31, 7")
    A("v_add_u32 v6, s62, v6")
    A("s_waitcnt lgkmcnt(0)")
    A("s_load_dwordx2 s[28:29], s[26:27], 0")
    base_add(44, 6, "s60")
    if diag in (4, 5, 6):
        lx = lab("exp")
        A("s_cmp_lg_u32 s30, 0"); A(f"s_cbranch_scc1 {lx}")
        A("s_mov_b64 exec, 1")
        A("s_not_b32 s61, s70"); A("v_mov_b32 v8, s61"); A(f"global_atomic_umax {VZ}, v8, s[24:25]")
        A("v_mov_b32 v9, s70"); A(f"global_atomic_umax {VZ}, v9, s[24:25] offset:4")
        A("s_mov_b64 exec, -1")
        A.label(lx)
    A("s_barrier")
    for i in range(16):
        if i and i % 4 == 0:
            base_add(44, 44, 4096)
        A(f"global_load_dwordx4 v[{64+4*i}:{67+4*i}], v5, s[44:45] offset:{(i%4)*1024}{NT}")
    A("s_lshl_b32 s60, s38, 1"); A("s_add_u32 s60, s60, s40"); A("s_lshl_b32 s60, s60, 13")
    A(f"s_add_u32 s60, s60, {WS_QS}")
    base_add(46, 26, "s60")
    signal(C_KISS)
    A("s_setprio 3")
    tags_from_epoch()
    spin(C_KISS, 8, vt="v8", sleep=0)
    if exp != "noqpoll": A("global_load_dwordx4 v[20:23], v6, s[46:47] sc1" + (" nt" if exp == "qpollnt" else ""))
    signal(C_GO)
    stamp(1)
    lp = lab("qpoll"); ld = lab("qdone")
    A.label(lp)
    A("s_waitcnt vmcnt(0)")
    if diag:
        lq = lab("q1")
        A("s_cmp_lg_u32 s90, 0"); A(f"s_cbranch_scc1 {lq}"); stamp(10); A("s_waitcnt lgkmcnt(0)"); A.label(lq)
    tagcheck(20, "v8", "v9", "v10")
    if exp == "noqpoll": A(f"s_branch {ld}")
    A(f"s_cbranch_vccz {ld}")
    if diag: A("s_add_u32 s92, s92, 1")
    A("s_sub_u32 s42, s42, 64")
    A(f"s_cbranch_scc1 {ld}")
    A("global_load_dwordx4 v[20:23], v6, s[46:47] sc1")
    A(f"s_branch {lp}")
    A.label(ld)
    stamp(2)
    untag(20)
    q = ["v20", "v21", "v22", "v23"]
    dpp("v_add_f32", q, "row_ror:8")
    butterfly16("v_add_f32", q, ["v8", "v9", "v10", "v11"])
    butterfly32("v_add_f32", q, ["v8", "v9", "v10", "v11"])
    A("v_cvt_pk_bf16_f32 v8, v20, v21")
    A("v_cvt_pk_bf16_f32 v9, v22, v23")
    A("v_lshlrev_b32 v10, 3, v7")
    A("s_lshl_b32 s60, s31, 6")
    A("v_add_u32 v10, s60, v10")
    A("s_mov_b64 exec, 0xff")
    A(f"ds_write_b64 v10, v[8:9] offset:{L_Q}")
    A("s_mov_b64 exec, -1")
    signal(C_Q)
    for (r, val) in ((52, 0x22222222), (54, 0x44444444), (56, 0x88888888)):
        A(f"s_mov_b32 s{r}, {val:#x}"); A(f"s_mov_b32 s{r+1}, {val:#x}")
    A("s_mov_b32 s58, 0x00ff00ff"); A("s_mov_b32 s59, 0x00ff00ff")
    A("v_bfe_u32 v8, v16, 2, 1")
    A("v_lshlrev_b32 v8, 8, v8")
    A("v_lshl_or_b32 v8, v17, 6, v8")
    A("v_and_b32 v9, 3, v16")
    A("v_lshl_or_b32 v8, v9, 4, v8")
    spin(C_Q, 8)
    A(f"ds_read_b128 v[12:15], v8 offset:{L_Q}")
    A("s_waitcnt lgkmcnt(0)")
    for i in range(4):
        A(f"v_cndmask_b32 v{24+i}, 0, v{12+i}, s[58:59]")
    for i in range(4):
        A(f"v_cndmask_b32 v{28+i}, v{12+i}, 0, s[58:59]")
    for t in range(8):
        A(f"v_mfma_f32_16x16x32_bf16 v[{32+4*t}:{35+4*t}], v[24:27], v[{64+8*t}:{67+8*t}], 0")
    for t in range(8):
        A(f"v_mfma_f32_16x16x32_bf16 v[{32+4*t}:{35+4*t}], v[28:31], v[{68+8*t}:{71+8*t}], v[{32+4*t}:{35+4*t}]")
    S = [f"v{8+t}" for t in range(8)]
    for t in range(8): A(f"v_cndmask_b32 {S[t]}, v{32+4*t}, v{33+4*t}, s[52:53]")
    for t in range(8): A(f"v_cndmask_b32 {S[t]}, {S[t]}, v{34+4*t}, s[54:55]")
    for t in range(8): A(f"v_cndmask_b32 {S[t]}, {S[t]}, v{35+4*t}, s[56:57]")
    dpp("v_add_f32", S, "quad_perm:[1,0,3,2]")
    dpp("v_add_f32", S, "quad_perm:[2,3,0,1]")
    A(f"s_mov_b32 s60, {SCALE:#x}")
    if mimic:
        for p in range(4): A(f"v_cvt_pk_bf16_f32 v{32+p}, {S[2*p]}, {S[2*p+1]}")
        for p in range(4):
            A(f"v_lshlrev_b32 {S[2*p]}, 16, v{32+p}")
            A(f"v_and_b32 {S[2*p+1]}, 0xffff0000, v{32+p}")
        for t in range(8): A(f"v_mul_f32 {S[t]}, s60, {S[t]}")
        for p in range(4): A(f"v_cvt_pk_bf16_f32 v{32+p}, {S[2*p]}, {S[2*p+1]}")
        for p in range(4):
            A(f"v_lshlrev_b32 {S[2*p]}, 16, v{32+p}")
            A(f"v_and_b32 {S[2*p+1]}, 0xffff0000, v{32+p}")
    else:
        for t in range(8): A(f"v_mul_f32 {S[t]}, s60, {S[t]}")
    A(f"v_max3_f32 v32, {S[0]}, {S[1]}, {S[2]}")
    A(f"v_max3_f32 v33, {S[3]}, {S[4]}, {S[5]}")
    A(f"v_max3_f32 v32, v32, {S[6]}, {S[7]}")
    A("v_max_f32 v32, v32, v33")
    dpp("v_max_f32", ["v32"], "row_ror:4")
    dpp("v_max_f32", ["v32"], "row_ror:8")
    butterfly32("v_max_f32", ["v32"], ["v33"])
    A(f"s_mov_b32 s60, {LOG2E:#x}")
    A("v_mul_f32 v33, s60, v32")
    for t in range(8): A(f"v_fma_f32 {S[t]}, {S[t]}, s60, -v33")
    for t in range(8): A(f"v_exp_f32 {S[t]}, {S[t]}")
    A(f"v_add_f32 v34, {S[0]}, {S[1]}"); A(f"v_add_f32 v35, {S[2]}, {S[3]}")
    A(f"v_add_f32 v36, {S[4]}, {S[5]}"); A(f"v_add_f32 v37, {S[6]}, {S[7]}")
    A("v_add_f32 v34, v34, v35"); A("v_add_f32 v36, v36, v37"); A("v_add_f32 v33, v34, v36")
    dpp("v_add_f32", ["v33"], "row_ror:4")
    dpp("v_add_f32", ["v33"], "row_ror:8")
    butterfly32("v_add_f32", ["v33"], ["v34"])
    for t in range(8): A(f"v_mov_b32 v{40+t}, {S[t]}")
    for t in range(8): A(f"v_permlane32_swap_b32 {S[t]}, v{40+t}")
    for t in range(8): A(f"v_cvt_pk_bf16_f32 v{48+t}, {S[t]}, v{40+t}")
    A("s_mov_b32 s60, 0"); A("s_mov_b32 s61, -1")
    for i in range(4): A(f"v_cndmask_b32 v{48+i}, v{48+i}, v{52+i}, s[60:61]")
    A("v_lshlrev_b32 v8, 2, v1")
    A("s_lshl_b32 s62, s31, 8")
    A("v_add_u32 v8, s62, v8")
    A("s_mov_b32 exec_lo, 0x11111111"); A("s_mov_b32 exec_hi, 0x11111111")
    A(f"ds_write_b128 v8, v[48:51] offset:{L_P}")
    A("s_mov_b64 exec, 0x10001")
    A("v_lshrrev_b32 v9, 1, v1")
    A("s_lshl_b32 s62, s31, 4")
    A("v_add_u32 v9, s62, v9")
    A(f"ds_write_b64 v9, v[32:33] offset:{L_ML}")
    A("s_mov_b64 exec, -1")
    signal(C_P)
    stamp(3)
    A("s_mul_i32 s62, s2, 911"); A("s_lshr_b32 s62, s62, 16")
    A("s_mul_i32 s63, s62, 72"); A("s_sub_u32 s63, s2, s63")
    A("s_mul_i32 s64, s62, 192"); A("s_mul_i32 s65, s31, 24"); A("s_add_u32 s64, s64, s65")
    A("s_mul_i32 s65, s64, 9216"); A("s_lshl_b32 s66, s63, 7"); A("s_add_u32 s65, s65, s66")
    A("v_mul_u32_u24 v4, 55296, v17")
    A("v_and_b32 v5, 7, v16")
    A("v_lshl_add_u32 v4, v5, 4, v4")
    A("v_add_u32 v4, s65, v4")
    A("v_mov_b32 v8, s16"); A("v_mov_b32 v9, s17")
    A("v_mov_b32 v10, s18"); A("v_mov_b32 v11, s19")
    A("v_cndmask_b32 v8, v10, v8, s[58:59]")
    A("v_cndmask_b32 v9, v11, v9, s[58:59]")
    A("v_add_co_u32 v8, vcc, v8, v4")
    A("v_addc_co_u32 v9, vcc, 0, v9, vcc")
    A("s_mov_b32 s46, 9216"); A("s_mov_b32 s47, 0")
    A("v_lshlrev_b32 v12, 4, v16")
    A("s_lshl_b32 s66, s31, 8")
    A("v_add_u32 v12, s66, v12")
    A("v_mul_u32_u24 v13, 4608, v17"); A("v_add_u32 v13, v13, v12")
    A("v_mul_u32_u24 v14, 1152, v17"); A("v_add_u32 v14, v14, v12")
    A("s_lshl_b32 s66, s38, 8"); A("s_lshl_b32 s67, s39, 4"); A("s_add_u32 s66, s66, s67")
    A("s_mul_i32 s66, s66, 1152")
    base_add(48, 12, "s66")
    A("s_mul_i32 s66, s2, 20736")
    base_add(50, 20, "s66")
    for i in range(4): A(f"v_mov_b32 v{120+i}, 0")
    spin(C_VISS, 8, vt="v15", sleep=0)
    A("s_setprio 0")
    lnogu = lab("nogu")
    A(f"s_cmp_ge_u32 s2, {ngu}")
    A(f"s_cbranch_scc1 {lnogu}")
    for j in range(6):
        A(f"global_load_dwordx4 v[{64+4*j}:{67+4*j}], v[8:9], off{NT}")
        if j < 5: A("v_lshl_add_u64 v[8:9], v[8:9], 0, s[46:47]")
    A.label(lnogu)
    signal(C_GISS)
    lnowo = lab("nowo")
    A("s_cmp_ge_u32 s31, 5")
    A(f"s_cbranch_scc1 {lnowo}")
    spin(C_GISS, 8, vt="v15", sleep=0)
    A("s_cmp_eq_u32 s31, 4")
    A("s_cselect_b32 s60, 0x00ff00ff, -1")
    A("s_mov_b32 exec_lo, s60"); A("s_mov_b32 exec_hi, s60")
    for j in range(4):
        A(f"global_load_dwordx4 v[{88+4*j}:{91+4*j}], v13, s[48:49] offset:{1152*j}{NT}")
    for j in range(4):
        A(f"global_load_dwordx4 v[{104+4*j}:{107+4*j}], v14, s[50:51]{NT}")
        A("v_add_u32 v14, 4608, v14")
    A("s_mov_b32 exec_hi, 0")
    A("global_load_dwordx4 v[120:123], v14, s[50:51]" + NT)
    A("s_mov_b64 exec, -1")
    A.label(lnowo)
    A("s_setprio 2")
    stamp(4)
    lgudone = lab("gudone")
    A(f"s_cmp_ge_u32 s2, {ngu}")
    A(f"s_cbranch_scc1 {lgudone}")
    A("v_and_b32 v4, 1, v1")
    A("v_mul_u32_u24 v4, 1152, v4")
    A("v_mul_u32_u24 v5, 12, v17")
    A("v_add_u32 v4, v4, v5")
    A("s_lshl_b32 s64, s64, 1")
    A("v_add_u32 v4, s64, v4")
    A(f"ds_read_b32 v24, v4 offset:{L_XN}")
    A(f"ds_read_b32 v25, v4 offset:{L_XN+4}")
    A(f"ds_read_b32 v26, v4 offset:{L_XN+8}")
    A("v_mov_b32 v27, 0")
    A("v_mov_b32 v11, 0"); A("v_mov_b32 v15, 0")
    lw9 = lab("w9"); lw0 = lab("w0")
    A("s_cmp_ge_u32 s31, 5"); A(f"s_cbranch_scc1 {lw0}")
    A("s_waitcnt vmcnt(9) lgkmcnt(0)"); A(f"s_branch {lw9}")
    A.label(lw0); A("s_waitcnt vmcnt(0) lgkmcnt(0)")
    A.label(lw9)
    stamp(5)
    def perms(f, setreg, L, npairs):
        c = f >> 1; sel = "s37" if f & 1 else "s36"
        for i in range(npairs):
            A(f"v_perm_b32 v{setreg+i}, v{L[2*i+1]+c}, v{L[2*i]+c}, {sel}")
    Lg = [64 + 4*j for j in range(6)]
    sets = [8, 12]
    perms(0, sets[0], Lg, 3)
    for f in range(8):
        if f + 1 < 8: perms(f+1, sets[(f+1) & 1], Lg, 3)
        s = sets[f & 1]
        A(f"v_mfma_f32_16x16x32_bf16 v[{32+4*f}:{35+4*f}], v[24:27], v[{s}:{s+3}], 0")
    for b in range(2):
        for f in range(8): A(f"v_mov_b32 v{64+8*b+f}, v{32+4*f+b}")
    A("v_lshlrev_b32 v4, 5, v16")
    A("s_lshl_b32 s60, s31, 10")
    A("v_add_u32 v4, s60, v4")
    A("s_mov_b64 exec, 0xffff")
    for b in range(2):
        A(f"ds_write_b128 v4, v[{64+8*b}:{67+8*b}] offset:{L_RG+512*b}")
        A(f"ds_write_b128 v4, v[{68+8*b}:{71+8*b}] offset:{L_RG+512*b+16}")
    A("s_mov_b64 exec, -1")
    signal(C_RG)
    A.label(lgudone)
    stamp(6)
    A("s_cmp_ge_u32 s31, 5")
    A("s_cbranch_scc1 L_kend")
    A("s_waitcnt vmcnt(0)")
    stamp(7)
    Lw = [88 + 4*j for j in range(4)]
    Ld = [104 + 4*j for j in range(4)]
    for f in range(8):
        c = f >> 1; sel = "s37" if f & 1 else "s36"
        for i in range(2): A(f"v_perm_b32 v{32+2*f+i}, v{Lw[2*i+1]+c}, v{Lw[2*i]+c}, {sel}")
    for f in range(8):
        c = f >> 1; sel = "s37" if f & 1 else "s36"
        for i in range(2): A(f"v_perm_b32 v{48+4*f+i}, v{Ld[2*i+1]+c}, v{Ld[2*i]+c}, {sel}")
        if f & 1: A(f"v_lshrrev_b32 v{48+4*f+2}, 16, v{120+c}")
        else: A(f"v_and_b32 v{48+4*f+2}, 0xffff, v{120+c}")
        A(f"v_mov_b32 v{48+4*f+3}, 0")
    A("v_and_b32 v4, 1, v1")
    A("v_lshlrev_b32 v4, 2, v4"); A("v_add_u32 v4, v4, v17")
    A("v_lshlrev_b32 v5, 3, v4")
    A("v_lshlrev_b32 v6, 4, v4")
    A("v_and_b32 v7, 1, v17"); A("v_mul_u32_u24 v7, 72, v7"); A("v_add_u32 v7, v7, v16")
    A("s_lshl_b32 s60, s31, 4"); A("v_add_u32 v7, s60, v7")
    A("v_lshlrev_b32 v7, 13, v7")
    A("v_lshrrev_b32 v8, 1, v17"); A("v_lshl_add_u32 v7, v8, 4, v7")
    A("s_lshl_b32 s60, s2, 5"); A(f"s_add_u32 s60, s60, {WS_FS}")
    base_add(44, 26, "s60")
    spin(F_Z, 1, vt="v15")
    A(f"ds_read_b64 v[8:9], v5 offset:{L_ZA}")
    A("s_waitcnt lgkmcnt(0)")
    for f in range(8):
        A(f"v_mfma_f32_16x16x16_bf16 v[{80+4*f}:{83+4*f}], v[8:9], v[{32+2*f}:{33+2*f}], 0")
    stamp(8)
    spin(F_H, 1, vt="v15")
    A(f"ds_read_b128 v[12:15], v6 offset:{L_HA}")
    A("s_waitcnt lgkmcnt(0)")
    for f in range(8):
        A(f"v_mfma_f32_16x16x32_bf16 v[{80+4*f}:{83+4*f}], v[12:15], v[{48+4*f}:{51+4*f}], v[{80+4*f}:{83+4*f}]")
    A("s_mov_b32 s60, 0xffff0000"); A("s_mov_b32 s61, 0xffff0000")
    A("s_mov_b32 s62, 0"); A("s_mov_b32 s63, -1")
    for i in range(4):
        A(f"v_cndmask_b32 v{32+i}, v{80+4*i}, v{81+4*i}, s[60:61]")
    for i in range(4):
        A(f"v_cndmask_b32 v{36+i}, v{96+4*i}, v{97+4*i}, s[60:61]")
    for i in range(4):
        A(f"v_cndmask_b32 v{32+i}, v{32+i}, v{36+i}, s[62:63]")
    tagset(32)
    A("s_cmp_eq_u32 s31, 4")
    A("s_cselect_b32 s60, 0x00ff00ff, -1")
    A("s_mov_b32 exec_lo, s60"); A("s_mov_b32 exec_hi, s60")
    A("global_store_dwordx4 v7, v[32:35], s[44:45] sc1")
    A("s_mov_b64 exec, -1")
    signal(C_F)
    stamp(9)
    A.label("L_kend")
    stamp_dump("K")
    A("s_endpgm")

    A.label("L_vwave")
    A("s_setprio 3")
    A("s_cmp_ge_u32 s31, 6")
    A("s_cbranch_scc1 L_v67")
    A("s_lshr_b32 s60, s39, 1"); A("s_mul_i32 s60, s60, 72"); A("s_mul_i32 s61, s31, 12"); A("s_add_u32 s64, s60, s61")
    A("s_lshl_b32 s60, s64, 13"); A("s_lshl_b32 s61, s38, 9"); A("s_add_u32 s60, s60, s61")
    A("s_and_b32 s61, s39, 1"); A("s_lshl_b32 s61, s61, 8"); A("s_add_u32 s60, s60, s61")
    A("v_lshlrev_b32 v4, 13, v17"); A("v_lshl_add_u32 v4, v16, 4, v4")
    A("s_waitcnt lgkmcnt(0)")
    A("s_load_dwordx2 s[28:29], s[26:27], 0")
    base_add(44, 10, "s60")
    for j in range(3):
        A(f"global_load_dwordx4 v[{64+4*j}:{67+4*j}], v4, s[44:45]{NT}")
        if j < 2: base_add(44, 44, 32768)
    A("s_barrier")
    A("v_and_b32 v4, 1, v1"); A("v_mul_u32_u24 v4, 1152, v4")
    A("v_lshl_add_u32 v4, v17, 1, v4")
    A("s_lshl_b32 s60, s64, 1"); A("v_add_u32 v4, s60, v4")
    spin(C_XN, 1, vt="v5")
    A(f"ds_read_u16 v8, v4 offset:{L_XN}")
    A(f"ds_read_u16 v10, v4 offset:{L_XN+8}")
    A(f"ds_read_u16 v9, v4 offset:{L_XN+16}")
    A("s_waitcnt lgkmcnt(0)")
    A("v_lshl_or_b32 v8, v10, 16, v8")
    A("s_waitcnt vmcnt(0)")
    stamp(1)
    sets = [10, 12]
    def qfrag(f):
        c = f >> 1; s = sets[f & 1]; sel = "s37" if f & 1 else "s36"
        A(f"v_perm_b32 v{s}, v{68+c}, v{64+c}, {sel}")
        if f & 1: A(f"v_lshrrev_b32 v{s+1}, 16, v{72+c}")
        else: A(f"v_and_b32 v{s+1}, 0xffff, v{72+c}")
    qfrag(0)
    for f in range(8):
        if f + 1 < 8: qfrag(f + 1)
        s = sets[f & 1]
        A(f"v_mfma_f32_16x16x16_bf16 v[{32+4*f}:{35+4*f}], v[8:9], v[{s}:{s+1}], 0")
    for b in range(2):
        for f in range(8): A(f"v_mov_b32 v{64+8*b+f}, v{32+4*f+b}")
    A("v_lshlrev_b32 v4, 5, v16")
    A("s_lshl_b32 s60, s31, 10"); A("v_add_u32 v4, s60, v4")
    A("s_mov_b64 exec, 0xffff")
    for b in range(2):
        A(f"ds_write_b128 v4, v[{64+8*b}:{67+8*b}] offset:{L_QP+512*b}")
        A(f"ds_write_b128 v4, v[{68+8*b}:{71+8*b}] offset:{L_QP+512*b+16}")
    A("s_mov_b64 exec, -1")
    arrive(C_QP, "s60")
    A("s_cmp_lg_u32 s60, 5")
    A("s_cbranch_scc1 L_vmain")
    A("v_lshlrev_b32 v4, 4, v1")
    for w in range(6): A(f"ds_read_b128 v[{64+4*w}:{67+4*w}], v4 offset:{L_QP+1024*w}")
    tags_from_epoch()
    for w in range(1, 6):
        for i in range(4): A(f"v_add_f32 v{64+i}, v{64+i}, v{64+4*w+i}")
    tagset(64)
    A("v_lshrrev_b32 v5, 5, v1"); A("v_lshlrev_b32 v5, 13, v5")
    A("v_and_b32 v6, 31, v1"); A("v_lshl_add_u32 v5, v6, 4, v5")
    A("s_lshl_b32 s60, s38, 14"); A("s_lshr_b32 s61, s39, 1"); A("s_lshl_b32 s61, s61, 10"); A("s_add_u32 s60, s60, s61")
    A("s_and_b32 s61, s39, 1"); A("s_lshl_b32 s61, s61, 9"); A("s_add_u32 s60, s60, s61")
    A(f"s_add_u32 s60, s60, {WS_QS}")
    base_add(44, 26, "s60")
    A("global_store_dwordx4 v5, v[64:67], s[44:45] sc1")
    stamp(2)
    A("s_mov_b32 s43, 1")
    A("s_branch L_vmain2")
    A.label("L_v67")
    A("s_cmp_eq_u32 s31, 7")
    A("s_cbranch_scc1 L_v7")
    A("v_lshlrev_b32 v4, 2, v1")
    A(f"ds_write_b32 v4, {VZ}")
    A(f"ds_write_b32 v4, {VZ} offset:{L_HA}")
    A("s_waitcnt lgkmcnt(0)")
    A("s_load_dwordx2 s[28:29], s[26:27], 0")
    A("s_barrier")
    A("s_branch L_vmain")
    A.label("L_v7")
    A("v_lshrrev_b32 v4, 5, v1"); A("v_mul_u32_u24 v4, 1152, v4")
    A("v_and_b32 v5, 31, v1"); A("v_lshl_add_u32 v4, v5, 2, v4")
    A("s_waitcnt lgkmcnt(0)")
    A("s_load_dwordx2 s[28:29], s[26:27], 0")
    for t in range(9): A(f"global_load_dword v{64+t}, v4, s[4:5] offset:{128*t}")
    A("s_barrier")
    A("s_waitcnt vmcnt(0)")
    stamp(1)
    X = [f"v{80+i}" for i in range(18)]
    for t in range(9):
        A(f"v_lshlrev_b32 {X[2*t]}, 16, v{64+t}")
        A(f"v_and_b32 {X[2*t+1]}, 0xffff0000, v{64+t}")
    def sum18(vals, dst, sq=False):
        if sq:
            for i in range(9):
                A(f"v_mul_f32 v{32+i}, {vals[2*i]}, {vals[2*i]}")
            for i in range(9):
                A(f"v_fmac_f32 v{32+i}, {vals[2*i+1]}, {vals[2*i+1]}")
        else:
            for i in range(9): A(f"v_add_f32 v{32+i}, {vals[2*i]}, {vals[2*i+1]}")
        for i in range(4): A(f"v_add_f32 v{32+i}, v{32+i}, v{36+i}")
        A("v_add_f32 v32, v32, v33"); A("v_add_f32 v34, v34, v35"); A("v_add_f32 v32, v32, v40")
        A(f"v_add_f32 {dst}, v32, v34")
        dpp("v_add_f32", [dst], "quad_perm:[1,0,3,2]")
        dpp("v_add_f32", [dst], "quad_perm:[2,3,0,1]")
        dpp("v_add_f32", [dst], "row_ror:4")
        dpp("v_add_f32", [dst], "row_ror:8")
        butterfly16("v_add_f32", [dst], ["v33"])
    sum18(X, "v8")
    A("s_mov_b32 s60, 0x3ae38e39")
    A("v_mul_f32 v8, s60, v8")
    D = [f"v{100+i}" for i in range(18)]
    for i in range(18): A(f"v_sub_f32 {D[i]}, {X[i]}, v8")
    sum18(D, "v9", sq=True)
    A("v_mul_f32 v9, s60, v9")
    def bf16r(r):
        A(f"v_cvt_pk_bf16_f32 {r}, {r}, {r}"); A(f"v_and_b32 {r}, 0xffff0000, {r}")
    bf16r("v8"); bf16r("v9")
    A("v_add_f32 v9, 0x3727c5ac, v9")
    bf16r("v9")
    A("v_sqrt_f32 v9, v9")
    bf16r("v9")
    A("v_rcp_f32 v10, v9")
    A("v_fma_f32 v11, -v9, v10, 1.0")
    A("v_fma_f32 v10, v10, v11, v10")
    for i in range(18): A(f"v_sub_f32 {D[i]}, {X[i]}, v8")
    for t in range(9): A(f"v_cvt_pk_bf16_f32 v{32+t}, {D[2*t]}, {D[2*t+1]}")
    for t in range(9):
        A(f"v_lshlrev_b32 {D[2*t]}, 16, v{32+t}")
        A(f"v_and_b32 {D[2*t+1]}, 0xffff0000, v{32+t}")
    for i in range(18): A(f"v_mul_f32 {D[i]}, {D[i]}, v10")
    for t in range(9): A(f"v_cvt_pk_bf16_f32 v{32+t}, {D[2*t]}, {D[2*t+1]}")
    for t in range(9): A(f"ds_write_b32 v4, v{32+t} offset:{L_XN+128*t}")
    signal(C_XN)
    stamp(2)
    A.label("L_vmain")
    tags_from_epoch()
    A.label("L_vmain2")
    A("s_lshl_b32 s60, s3, 17"); A("s_lshl_b32 s61, s31, 14"); A("s_add_u32 s60, s60, s61")
    base_add(44, 8, "s60")
    A("v_lshlrev_b32 v5, 4, v1")
    A("s_setprio 0")
    spin(C_GO, 8)
    for i in range(16):
        if i and i % 4 == 0: base_add(44, 44, 4096)
        A(f"global_load_dwordx4 v[{64+4*i}:{67+4*i}], v5, s[44:45] offset:{(i%4)*1024}{NT}")
    signal(C_VISS)
    A("s_setprio 3")
    stamp(3)
    A("v_and_b32 v6, 1, v1"); A("v_lshlrev_b32 v6, 2, v6"); A("v_add_u32 v6, v6, v17"); A("v_lshlrev_b32 v6, 4, v6")
    A("s_lshl_b32 s60, s31, 8"); A("v_add_u32 v6, s60, v6")
    A("v_and_b32 v7, 7, v1"); A("v_lshlrev_b32 v7, 4, v7"); A("v_bfe_u32 v8, v1, 3, 1"); A("v_lshl_add_u32 v7, v8, 3, v7")
    spin(C_P, 8)
    A(f"ds_read_b128 v[20:23], v6 offset:{L_P}")
    A(f"ds_read_b128 v[24:27], v6 offset:{L_P+128}")
    A(f"ds_read_b64 v[28:29], v7 offset:{L_ML}")
    A("s_waitcnt lgkmcnt(0)")
    stamp(4)
    A("v_mov_b32 v30, v28")
    dpp("v_max_f32", ["v30"], "quad_perm:[1,0,3,2]")
    dpp("v_max_f32", ["v30"], "quad_perm:[2,3,0,1]")
    dpp("v_max_f32", ["v30"], "row_half_mirror")
    A("v_and_b32 v30, 0xfffff000, v30")
    A("v_sub_f32 v31, v28, v30")
    A(f"v_mul_f32 v31, {LOG2E:#x}, v31")
    A("v_exp_f32 v31, v31")
    A("v_mul_f32 v29, v31, v29")
    dpp("v_add_f32", ["v29"], "quad_perm:[1,0,3,2]")
    dpp("v_add_f32", ["v29"], "quad_perm:[2,3,0,1]")
    dpp("v_add_f32", ["v29"], "row_half_mirror")
    A("s_add_u32 s60, s31, 8")
    A("v_readlane_b32 s52, v31, s31")
    A("v_readlane_b32 s53, v31, s60")
    A("v_readlane_b32 s54, v30, 0"); A("v_readlane_b32 s55, v30, 8")
    A("v_readlane_b32 s56, v29, 0"); A("v_readlane_b32 s57, v29, 8")
    sets = [8, 12]
    for T in range(2):
        A(f"s_waitcnt vmcnt({8 if T == 0 else 0})")
        if T == 1: stamp(5)
        Lv = [64 + 32*T + 4*j for j in range(8)]
        perms(0, sets[0], Lv, 4)
        for f in range(8):
            if f + 1 < 8: perms(f+1, sets[(f+1) & 1], Lv, 4)
            s = sets[f & 1]
            C = "0" if T == 0 else f"v[{32+4*f}:{35+4*f}]"
            A(f"v_mfma_f32_16x16x32_bf16 v[{32+4*f}:{35+4*f}], v[{20+4*T}:{23+4*T}], v[{s}:{s+3}], {C}")
    for h in range(2):
        for f in range(8): A(f"v_mul_f32 v{64+8*h+f}, s{52+h}, v{32+4*f+h}")
    A("v_lshlrev_b32 v4, 5, v16")
    A("s_lshl_b32 s60, s31, 10"); A("v_add_u32 v4, s60, v4")
    A("s_mov_b64 exec, 0xffff")
    for h in range(2):
        A(f"ds_write_b128 v4, v[{64+8*h}:{67+8*h}] offset:{L_RO+512*h}")
        A(f"ds_write_b128 v4, v[{68+8*h}:{71+8*h}] offset:{L_RO+512*h+16}")
    A("s_mov_b64 exec, -1")
    arrive(C_RO, "s60")
    A("s_cmp_eq_u32 s60, 0")
    A("s_cbranch_scc1 L_vgu")
    A("s_cmp_lg_u32 s60, 7")
    A("s_cbranch_scc1 L_vfinal")
    stamp(6)
    A("v_lshlrev_b32 v4, 4, v1")
    for w in range(8): A(f"ds_read_b128 v[{64+4*w}:{67+4*w}], v4 offset:{L_RO+1024*w}")
    A("v_lshrrev_b32 v5, 2, v1"); A("v_lshlrev_b32 v5, 10, v5"); A("v_and_b32 v6, 3, v1"); A("v_lshl_add_u32 v5, v6, 4, v5")
    A("s_lshl_b32 s60, s38, 14"); A("s_lshl_b32 s61, s39, 6"); A("s_add_u32 s61, s61, s60"); A(f"s_add_u32 s61, s61, {WS_OS}")
    base_add(44, 26, "s61")
    A("s_waitcnt lgkmcnt(0)")
    for w in range(1, 8):
        for i in range(4): A(f"v_add_f32 v{64+i}, v{64+i}, v{64+4*w+i}")
    tagset(64)
    A("global_store_dwordx4 v5, v[64:67], s[44:45] sc1")
    A("s_mov_b32 s62, 0"); A("s_mov_b32 s63, -1")
    A("v_mov_b32 v68, s54"); A("v_mov_b32 v70, s55"); A("v_cndmask_b32 v68, v68, v70, s[62:63]")
    A("v_mov_b32 v69, s56"); A("v_mov_b32 v70, s57"); A("v_cndmask_b32 v69, v69, v70, s[62:63]")
    A("v_mov_b32 v70, 0"); A("v_mov_b32 v71, 0")
    tagset(68)
    A("v_lshrrev_b32 v7, 5, v1"); A("v_lshlrev_b32 v7, 8, v7")
    A("s_lshl_b32 s60, s38, 9"); A("s_lshl_b32 s61, s39, 4"); A("s_add_u32 s60, s60, s61"); A(f"s_add_u32 s60, s60, {WS_ML}")
    base_add(46, 26, "s60")
    A("s_mov_b32 exec_lo, 1"); A("s_mov_b32 exec_hi, 1")
    A("global_store_dwordx4 v7, v[68:71], s[46:47] sc1")
    A("s_mov_b64 exec, -1")
    stamp(7)
    A("s_lshl_b32 s60, s38, 14"); A("s_lshl_b32 s61, s39, 10"); A("s_add_u32 s61, s61, s60"); A(f"s_add_u32 s61, s61, {WS_OS}")
    base_add(44, 26, "s61")
    A("s_lshl_b32 s60, s38, 1"); A("s_add_u32 s60, s60, s40"); A("s_lshl_b32 s60, s60, 8"); A(f"s_add_u32 s60, s60, {WS_ML}")
    base_add(46, 26, "s60")
    A("v_lshrrev_b32 v5, 2, v1"); A("v_lshlrev_b32 v5, 4, v5")
    lp = lab("opoll"); ld = lab("odone")
    A.label(lp)
    A("global_load_dwordx4 v[64:67], v4, s[44:45] sc1")
    A("global_load_dwordx4 v[68:71], v5, s[46:47] sc1")
    A("s_waitcnt vmcnt(0)")
    tagcheck(64, "v8", "v9", "v10")
    A("s_mov_b64 s[62:63], vcc")
    tagcheck(68, "v8", "v9", "v10")
    A("s_or_b64 vcc, vcc, s[62:63]")
    A(f"s_cbranch_vccz {ld}")
    A("s_sub_u32 s42, s42, 64")
    A(f"s_cbranch_scc0 {lp}")
    A.label(ld)
    stamp(8)
    untag(64); untag(68, 2)
    A("v_mov_b32 v8, v68")
    dpp("v_max_f32", ["v8"], "row_ror:4"); dpp("v_max_f32", ["v8"], "row_ror:8")
    butterfly16("v_max_f32", ["v8"], ["v9"])
    A("v_sub_f32 v8, v68, v8"); A(f"v_mul_f32 v8, {LOG2E:#x}, v8"); A("v_exp_f32 v8, v8")
    A("v_mul_f32 v69, v8, v69")
    for i in range(4): A(f"v_mul_f32 v{64+i}, v8, v{64+i}")
    z = ["v64", "v65", "v66", "v67", "v69"]
    dpp("v_add_f32", z, "row_ror:4"); dpp("v_add_f32", z, "row_ror:8")
    butterfly16("v_add_f32", z, ["v8", "v9", "v10", "v11", "v12"])
    A("v_rcp_f32 v8, v69")
    A("v_fma_f32 v9, -v69, v8, 1.0"); A("v_fma_f32 v8, v8, v9, v8")
    for i in range(4): A(f"v_mul_f32 v{64+i}, v{64+i}, v8")
    A("v_cvt_pk_bf16_f32 v8, v64, v65"); A("v_cvt_pk_bf16_f32 v9, v66, v67")
    A("v_lshrrev_b32 v10, 5, v1"); A("v_lshlrev_b32 v10, 2, v10"); A("v_and_b32 v11, 3, v1"); A("v_add_u32 v10, v10, v11")
    A("v_lshlrev_b32 v10, 3, v10")
    A("s_mov_b32 exec_lo, 0xf"); A("s_mov_b32 exec_hi, 0xf")
    A(f"ds_write_b64 v10, v[8:9] offset:{L_ZA}")
    A("s_mov_b64 exec, -1")
    signal(F_Z)
    stamp(9)
    A("s_branch L_vfinal")
    A.label("L_vgu")
    lnp = lab("nopub")
    A(f"s_cmp_ge_u32 s2, {ngu}")
    A(f"s_cbranch_scc1 {lnp}")
    A("s_mul_i32 s62, s2, 911"); A("s_lshr_b32 s62, s62, 16"); A("s_mul_i32 s63, s62, 72"); A("s_sub_u32 s63, s2, s63")
    A("s_mul_i32 s60, s62, 73728"); A("s_lshl_b32 s61, s63, 8"); A("s_add_u32 s60, s60, s61"); A(f"s_add_u32 s60, s60, {WS_GS}")
    base_add(44, 26, "s60")
    A("v_mul_u32_u24 v5, 18432, v17"); A("v_lshl_add_u32 v5, v16, 4, v5")
    A("v_and_b32 v6, 1, v17"); A("v_lshlrev_b32 v6, 9, v6"); A("v_lshrrev_b32 v7, 1, v17"); A("v_lshl_add_u32 v6, v7, 8, v6")
    A("v_lshl_add_u32 v6, v16, 4, v6")
    spin(C_RG, 8)
    for w in range(8): A(f"ds_read_b128 v[{64+4*w}:{67+4*w}], v6 offset:{L_RG+1024*w}")
    A("s_waitcnt lgkmcnt(0)")
    for w in range(1, 8):
        for i in range(4): A(f"v_add_f32 v{64+i}, v{64+i}, v{64+4*w+i}")
    tagset(64)
    A("global_store_dwordx4 v5, v[64:67], s[44:45] sc1")
    A.label(lnp)
    stamp(7)
    A("s_mul_i32 s60, s2, 18"); A("s_and_b32 s64, s60, 3"); A("s_lshr_b32 s60, s60, 2"); A("s_lshl_b32 s60, s60, 4")
    A(f"s_add_u32 s60, s60, {WS_GS}")
    base_add(44, 26, "s60")
    A("v_lshrrev_b32 v5, 2, v1"); A("v_mul_u32_u24 v5, 18432, v5"); A("v_and_b32 v6, 3, v1"); A("v_lshl_add_u32 v5, v6, 4, v5")
    A("v_mov_b32 v64, 0"); A("v_mov_b32 v65, 0"); A("v_mov_b32 v66, 0"); A("v_mov_b32 v67, 0")
    A("v_mov_b32 v68, 0"); A("v_mov_b32 v69, 0"); A("v_mov_b32 v70, 0"); A("v_mov_b32 v71, 0")
    lp = lab("gpoll"); ld = lab("gdone")
    A.label(lp)
    A("s_mov_b32 exec_hi, 0x0000ffff")
    A("global_load_dwordx4 v[64:67], v5, s[44:45] sc1")
    A("s_mov_b32 exec_lo, 0x11111111"); A("s_mov_b32 exec_hi, 0x00001111")
    A("global_load_dwordx4 v[68:71], v5, s[44:45] offset:64 sc1")
    A("s_waitcnt vmcnt(0)")
    tagcheck(68, "v8", "v9", "v10")
    A("s_mov_b64 s[62:63], vcc")
    A("s_mov_b32 exec_lo, -1"); A("s_mov_b32 exec_hi, 0x0000ffff")
    tagcheck(64, "v8", "v9", "v10")
    A("s_or_b64 vcc, vcc, s[62:63]")
    A("s_mov_b64 exec, -1")
    A(f"s_cbranch_vccz {ld}")
    A("s_sub_u32 s42, s42, 64")
    A(f"s_cbranch_scc0 {lp}")
    A.label(ld)
    stamp(8)
    untag(64, 8)
    gv = [f"v{64+i}" for i in range(8)]
    tv = [f"v{72+i}" for i in range(8)]
    butterfly16("v_add_f32", gv, tv)
    butterfly32("v_add_f32", gv, tv)
    for p in range(4): A(f"v_cvt_pk_bf16_f32 v{72+p}, v{64+2*p}, v{65+2*p}")
    for p in range(4):
        A(f"v_lshlrev_b32 v{64+2*p}, 16, v{72+p}"); A(f"v_and_b32 v{65+2*p}, 0xffff0000, v{72+p}")
    for i in range(8):
        A(f"v_mul_f32_dpp v{72+i}, v{64+i}, v{64+i} row_ror:8 row_mask:0xf bank_mask:0xf")
    for p in range(4): A(f"v_cvt_pk_bf16_f32 v{64+p}, v{72+2*p}, v{73+2*p}")
    A("v_bfe_u32 v8, v1, 2, 1"); A("v_lshlrev_b32 v8, 6, v8")
    A("v_lshlrev_b32 v9, 2, v6"); A("v_subrev_u32 v9, s64, v9")
    A("s_mov_b64 exec, 0xff")
    for s_ in range(2):
        for i in range(4):
            A(f"v_add_u32 v10, {16*s_+i}, v9")
            A("v_and_b32 v11, 3, v10"); A("v_lshlrev_b32 v11, 4, v11")
            A("v_lshrrev_b32 v12, 2, v10"); A("v_lshl_add_u32 v11, v12, 1, v11"); A("v_add_u32 v11, v11, v8")
            A("v_cmp_gt_u32 vcc, 18, v10")
            if s_ == 1:
                A("s_and_b64 vcc, vcc, 0x11")
            A(f"v_mov_b32 v12, {L_DUMMY-L_HA}")
            A("v_cndmask_b32 v11, v12, v11, vcc")
            src = f"v{64 + 2*s_ + (i >> 1)}"
            if i & 1: A(f"ds_write_b16_d16_hi v11, {src} offset:{L_HA}")
            else: A(f"ds_write_b16 v11, {src} offset:{L_HA}")
    A("s_mov_b64 exec, -1")
    signal(F_H)
    stamp(9)
    A.label("L_vfinal")
    A("s_cmp_ge_u32 s2, 144")
    A("s_cbranch_scc1 L_vend")
    A("s_lshl_b32 s60, s2, 13"); A("s_lshl_b32 s61, s31, 10"); A("s_add_u32 s60, s60, s61"); A(f"s_add_u32 s60, s60, {WS_FS}")
    base_add(44, 26, "s60")
    A("v_lshlrev_b32 v5, 4, v1")
    A("s_cmp_ge_u32 s2, 72"); A("s_cselect_b32 s60, 72, 0"); A("s_cselect_b32 s61, 1152, 0")
    A("s_sub_u32 s60, s2, s60"); A("s_lshl_b32 s60, s60, 4"); A("s_add_u32 s64, s60, s61")
    A("v_and_b32 v6, 1, v1"); A("v_lshlrev_b32 v6, 3, v6"); A("v_add_u32 v6, s64, v6")
    A("global_load_dwordx2 v[30:31], v6, s[4:5]")
    spin(C_F, 5)
    stamp(10)
    lp = lab("fpoll"); ld = lab("fdone")
    A.label(lp)
    A("global_load_dwordx4 v[64:67], v5, s[44:45] sc1")
    A("s_waitcnt vmcnt(0)")
    tagcheck(64, "v8", "v9", "v10")
    A(f"s_cbranch_vccz {ld}")
    A("s_sub_u32 s42, s42, 64")
    A(f"s_cbranch_scc0 {lp}")
    A.label(ld)
    stamp(11)
    untag(64)
    z = ["v64", "v65", "v66", "v67"]
    dpp("v_add_f32", z, "quad_perm:[2,3,0,1]")
    dpp("v_add_f32", z, "row_ror:4"); dpp("v_add_f32", z, "row_ror:8")
    butterfly16("v_add_f32", z, ["v8", "v9", "v10", "v11"])
    butterfly32("v_add_f32", z, ["v8", "v9", "v10", "v11"])
    A("v_and_b32 v7, 1, v1"); A("v_lshlrev_b32 v7, 4, v7")
    A("s_lshl_b32 s60, s31, 5"); A("v_add_u32 v8, s60, v7")
    A("s_mov_b64 exec, 3")
    A(f"ds_write_b128 v8, v[64:67] offset:{L_FR}")
    A("s_mov_b64 exec, -1")
    arrive(C_FR, "s60")
    A("s_cmp_lg_u32 s60, 7")
    A("s_cbranch_scc1 L_vend")
    for w in range(8): A(f"ds_read_b128 v[{64+4*w}:{67+4*w}], v7 offset:{L_FR+32*w}")
    A("s_waitcnt lgkmcnt(0)")
    for w in range(1, 8):
        for i in range(4): A(f"v_add_f32 v{64+i}, v{64+i}, v{64+4*w+i}")
    A("v_lshlrev_b32 v8, 16, v30"); A("v_and_b32 v9, 0xffff0000, v30")
    A("v_lshlrev_b32 v10, 16, v31"); A("v_and_b32 v11, 0xffff0000, v31")
    for i in range(4): A(f"v_add_f32 v{64+i}, v{64+i}, v{8+i}")
    A("v_cvt_pk_bf16_f32 v8, v64, v65"); A("v_cvt_pk_bf16_f32 v9, v66, v67")
    A("s_mov_b64 exec, 3")
    A("global_store_dwordx2 v6, v[8:9], s[22:23]")
    A("s_cmp_lg_u32 s2, 0")
    A("s_cbranch_scc1 L_vend2")
    A("s_mov_b64 exec, 1")
    A("v_mov_b32 v8, s28")
    A(f"global_store_dword {VZ}, v8, s[26:27] sc1")
    if diag in (4, 5):
        A(f"global_load_dwordx2 v[10:11], {VZ}, s[24:25] sc1")
        A("s_memrealtime s[98:99]")
        A("s_waitcnt vmcnt(0) lgkmcnt(0)")
        A("v_readfirstlane_b32 s60, v10"); A("v_readfirstlane_b32 s61, v11")
        A("s_not_b32 s60, s60")
        if diag == 4:
            A("s_sub_u32 s61, s61, s60"); A("s_lshl_b32 s61, s61, 2")
        else:
            A("s_sub_u32 s61, s98, s60")
        A("s_min_u32 s61, s61, 20000")
        A("s_add_u32 s61, s61, s98")
        A.label("L_expspin")
        A("s_memrealtime s[96:97]")
        A("s_waitcnt lgkmcnt(0)")
        A("s_sub_u32 s62, s96, s61")
        A("s_cmp_lt_i32 s62, 0")
        A("s_cbranch_scc1 L_expspin")
    A.label("L_vend2")
    A("s_mov_b64 exec, -1")
    stamp(12)
    A.label("L_vend")
    stamp_dump("V")
    A.label("L_end")
    A("s_endpgm")
    lines, nn = A.finish()
    hdr = open("cdna_kernels/" + NAME + ".s.ref").read().split("; Override launch geometry")[0]
    out = hdr
    out += f"; @launch grid=(256,1,1) block=(1024,1,1) lds={LDS_BYTES}\n"
    out += f""".amdgcn_target "amdgcn-amd-amdhsa--gfx950"
.text
.globl {NAME}_kernel
.p2align 8
.type {NAME}_kernel,@function
{NAME}_kernel:
"""
    out += "\n".join(("    " + l) if not l.endswith(":") else l for l in lines)
    out += f"""
.section .rodata,"a"
.p2align 6
.amdhsa_kernel {NAME}_kernel
  .amdhsa_next_free_vgpr 128
  .amdhsa_next_free_sgpr 102
  .amdhsa_accum_offset 128
  .amdhsa_group_segment_fixed_size 0
  .amdhsa_kernarg_size 96
  .amdhsa_user_sgpr_count 2
  .amdhsa_user_sgpr_kernarg_segment_ptr 1
  .amdhsa_system_sgpr_workgroup_id_x 1
.end_amdhsa_kernel
"""
    return out, nn

if __name__ == "__main__":
    o, nn = gen()
    open("k1.s", "w").write(o)
    print("nops inserted:", nn, "lines:", o.count("\n"))
    o, nn = gen(diag=True)
    open("k1d.s", "w").write(o)
    o, nn = gen(exp="rot")
    open("k1_rot.s", "w").write(o)
    for e in ("rot",):
        o, nn = gen(diag=True, exp=e)
        open(f"k1d_{e}.s", "w").write(o)
```

```python
import sys
from asmlib import Asm
NAME = "parallel_sum__gqa_block_cached__glu_gated_bilinear__decode"

WS_EPOCH = 0
WS_CTR = 0x2000
WS_QS = 0x10000
WS_OS = 0x50000
WS_ML = 0x90000
WS_GS = 0xA0000
WS_FS = 0x100000
WS_STAMP = 0x800000
(C_XN, C_QP, C_KISS, C_GISS, C_Q, C_RO, C_RG, F_Z, F_H, C_F, C_FR, C_END) = [4 * i for i in range(12)]
L_PSEQ = 64
L_PCON = 96
L_TIDX = 128
ZERO_BYTES = 512
L_XN = 512
L_Q = 2816
L_P = 3328
L_AL = 5376
L_ML = 5504
L_ZA = 5632
L_HA = 5696
L_DUMMY = 5824
L_FR = 6144
L_QP = 8192
L_RO = 16384
L_RG = 24576
LDS_BYTES = 32768
LOG2E = 0x3FB8AA3B
SCALE = 0x3DB504F3
NEGBIG = 0xFF000000
NT = " nt"
MAXT = 16
NDYN = 64
TEND = 0xFFFF

def gen(diag=False, mimic=True, ngu=216, exp=None, QPOLL_AT=6, FIRST_AT=8):
    A = Asm()
    uid = [0]
    def lab(p):
        uid[0] += 1; return f"L_{p}_{uid[0]}"
    VZ, VONE, VMASK = "v2", "v3", "v19"
    def stamp(i):
        if not diag: return
        assert i < 16
        A(f"s_memrealtime s[{70+2*i}:{71+2*i}]")
    def stamp_once(i):
        if not diag: return
        l = lab("so")
        A(f"s_cmp_lg_u32 s{70+2*i}, 0"); A(f"s_cbranch_scc1 {l}"); A(f"s_memrealtime s[{70+2*i}:{71+2*i}]"); A("s_waitcnt lgkmcnt(0)"); A.label(l)
    def stamp_idx(base, n):
        if not diag: return
        for k in range(n):
            l = lab("si")
            A(f"s_cmp_lg_u32 s43, {k}"); A(f"s_cbranch_scc1 {l}"); A(f"s_memrealtime s[{70+2*(base+k)}:{71+2*(base+k)}]"); A("s_waitcnt lgkmcnt(0)"); A.label(l)
    def stamp_dump():
        if not diag: return
        A("s_waitcnt lgkmcnt(0)")
        A("s_mov_b64 exec, 1")
        A(f"s_lshl_b32 s60, s2, 12"); A("s_lshl_b32 s61, s30, 8"); A("s_add_u32 s60, s60, s61")
        A(f"s_add_u32 s60, s60, {WS_STAMP}")
        A("v_mov_b32 v4, s60")
        for i in range(16):
            A(f"v_mov_b32 v6, s{70+2*i}"); A(f"v_mov_b32 v7, s{71+2*i}")
            A(f"global_store_dwordx2 v4, v[6:7], s[26:27] offset:{8*i}")
            A("s_nop 1")
        A("s_mov_b64 exec, -1")
    def signal(cnt, vaddr=None):
        A("s_waitcnt lgkmcnt(0)")
        A("s_mov_b64 exec, 1")
        A(f"ds_add_u32 {vaddr or VZ}, {VONE} offset:{cnt}")
        A("s_mov_b64 exec, -1")
    def arrive(cnt, sdst, vt="v4"):
        A("s_waitcnt lgkmcnt(0)")
        A("s_mov_b64 exec, 1")
        A(f"ds_add_rtn_u32 {vt}, {VZ}, {VONE} offset:{cnt}")
        A("s_mov_b64 exec, -1")
        A("s_waitcnt lgkmcnt(0)")
        A(f"v_readfirstlane_b32 {sdst}, {vt}")
    def spin(cnt, n, vt="v4", sleep=1, vaddr=None, sdst="s60", cmp="s_cmp_ge_u32"):
        l = lab("spin"); d = lab("spind")
        A.label(l)
        A(f"ds_read_b32 {vt}, {vaddr or VZ} offset:{cnt}")
        A("s_waitcnt lgkmcnt(0)")
        A(f"v_readfirstlane_b32 {sdst}, {vt}")
        A(f"{cmp} {sdst}, {n}")
        A(f"s_cbranch_scc1 {d}")
        A("s_sub_u32 s42, s42, 1")
        A(f"s_cbranch_scc1 {d}")
        if sleep: A(f"s_sleep {sleep}")
        A(f"s_branch {l}")
        A.label(d)
    def tagcheck(r, vt0, vt1, vt2):
        A(f"v_xor_b32 {vt0}, s32, v{r}")
        A(f"v_xor_b32 {vt1}, s33, v{r+1}")
        A(f"v_xor_b32 {vt2}, s34, v{r+2}")
        A(f"v_or3_b32 {vt0}, {vt0}, {vt1}, {vt2}")
        A(f"v_xor_b32 {vt1}, s35, v{r+3}")
        A(f"v_or_b32 {vt0}, {vt0}, {vt1}")
        A(f"v_and_b32 {vt0}, {VMASK}, {vt0}")
        A(f"v_cmp_ne_u32 vcc, 0, {vt0}")
    def tagset(r):
        for i in range(4): A(f"v_bfi_b32 v{r+i}, {VMASK}, s{32+i}, v{r+i}")
    def untag(r, n=4):
        for i in range(n): A(f"v_and_b32 v{r+i}, 0xfffff000, v{r+i}")
    def tags_from_epoch():
        A("s_waitcnt lgkmcnt(0)")
        A("s_add_u32 s28, s28, 1")
        A("s_and_b32 s32, s28, 0xfff")
        A("s_bfe_u32 s33, s28, 0xc000c")
        A("s_lshr_b64 s[60:61], s[28:29], 24"); A("s_and_b32 s34, s60, 0xfff")
        A("s_lshr_b64 s[60:61], s[28:29], 36"); A("s_and_b32 s35, s60, 0xfff")
    def butterfly(kind, op, regs, tmp):
        for r, t in zip(regs, tmp): A(f"v_mov_b32 {t}, {r}")
        for r, t in zip(regs, tmp): A(f"v_permlane{kind}_swap_b32 {r}, {t}")
        for r, t in zip(regs, tmp): A(f"{op} {r}, {r}, {t}")
    def dpp(op, regs, ctrl):
        for r in regs: A(f"{op}_dpp {r}, {r}, {r} {ctrl} row_mask:0xf bank_mask:0xf")
    def base_add(dst, src, off):
        A(f"s_add_u32 s{dst}, s{src}, {off}")
        A(f"s_addc_u32 s{dst+1}, s{src+1}, 0")
    def perms(f, setreg, L, npairs):
        c = f >> 1; sel = "s37" if f & 1 else "s36"
        for i in range(npairs):
            A(f"v_perm_b32 v{setreg+i}, v{L[2*i+1]+c}, v{L[2*i]+c}, {sel}")
    def lds_write1(vaddr, vdata, off):
        A("s_mov_b64 exec, 1")
        A(f"ds_write_b32 {vaddr}, {vdata} offset:{off}")
        A("s_mov_b64 exec, -1")
    def tile_loads(buf, voff, base_src, s_tile):
        A(f"s_lshl_b32 s60, {s_tile}, 13"); A("s_add_u32 s60, s60, s3")
        base_add(44, base_src, "s60")
        for i in range(8):
            if i == 4: base_add(44, 44, 4096)
            A(f"global_load_dwordx4 v[{buf+4*i}:{buf+3+4*i}], {voff}, s[44:45] offset:{(i%4)*1024}{NT}")

    def ticket_req():
        A("s_mov_b32 s66, 1"); A("s_mov_b32 s67, 0")
        A("s_atomic_add_x2 s[66:67], s[50:51], 0 glc")
    def ticket_fin(sdst):
        lr = lab("tk"); lo = lab("tko"); le = lab("tke"); lx = lab("tkx")
        A(f"s_cmp_ge_u32 s49, {MAXT}"); A(f"s_cbranch_scc1 {le}")
        A.label(lr)
        A("s_waitcnt lgkmcnt(0)")
        A("s_lshr_b32 s68, s66, 16"); A("s_cmp_eq_u32 s67, s28"); A("s_cselect_b32 s69, 1, 0")
        A("s_and_b32 s61, s29, 0xffff"); A("s_cmp_eq_u32 s68, s61"); A("s_cselect_b32 s68, s69, 0")
        A("s_cmp_lg_u32 s68, 0"); A(f"s_cbranch_scc1 {lo}")
        A("s_sub_u32 s42, s42, 4096"); A(f"s_cbranch_scc1 {le}")
        ticket_req()
        A(f"s_branch {lr}")
        A.label(lo)
        A("s_and_b32 s66, s66, 0xffff")
        A(f"s_cmp_ge_u32 s66, {NDYN}"); A(f"s_cbranch_scc1 {le}")
        A(f"s_add_u32 {sdst}, s66, 64")
        A(f"s_branch {lx}")
        A.label(le)
        A(f"s_mov_b32 {sdst}, {TEND}")
        A.label(lx)
        A("s_add_u32 s49, s49, 1")
        A(f"v_mov_b32 v12, {sdst}")
        lds_write1("v18", "v12", L_TIDX)
        A("v_add_u32 v18, 4, v18")
    def ticket_req_if():
        l = lab("tq")
        A(f"s_cmp_ge_u32 s49, {MAXT}"); A(f"s_cbranch_scc1 {l}")
        ticket_req()
        A.label(l)
    A("s_cmp_ge_u32 s2, 256")
    A("s_cbranch_scc1 L_end")
    A("s_load_dwordx16 s[4:19], s[0:1], 0")
    A("s_load_dwordx8 s[20:27], s[0:1], 64")
    if diag:
        A("s_memrealtime s[70:71]")
        for i in range(72, 102): A(f"s_mov_b32 s{i}, 0")
        A("s_getreg_b32 s100, hwreg(HW_REG_XCC_ID)")
    A("v_lshrrev_b32 v4, 6, v0")
    A("v_and_b32 v1, 63, v0")
    A("v_readfirstlane_b32 s30, v4")
    A("s_lshr_b32 s40, s2, 7")
    A("s_bfe_u32 s38, s2, 0x40003")
    A("s_and_b32 s41, s2, 7")
    A("s_lshl_b32 s39, s40, 3")
    A("s_or_b32 s39, s39, s41")
    A("s_lshr_b32 s3, s2, 3"); A("s_lshl_b32 s3, s3, 20")
    A("s_mov_b32 s36, 0x05040100")
    A("s_mov_b32 s37, 0x07060302")
    A("s_mov_b32 s42, 0x200000")
    A(f"v_mov_b32 {VZ}, 0")
    A(f"v_mov_b32 {VONE}, 1")
    A(f"v_mov_b32 {VMASK}, 0xfff")
    A("s_and_b32 s31, s30, 7")
    A("v_and_b32 v16, 15, v1")
    A("v_lshrrev_b32 v17, 4, v1")
    A("s_cmp_ge_u32 s30, 8")
    A("s_cbranch_scc1 L_vwave")

    A("v_bfe_u32 v4, v1, 2, 2")
    A("v_lshlrev_b32 v5, 8, v4")
    A("v_lshl_or_b32 v5, v17, 6, v5")
    A("v_and_b32 v4, 3, v1")
    A("v_lshl_or_b32 v5, v4, 4, v5")
    A("s_lshl_b32 s64, s41, 3"); A("s_lshl_b32 s61, s31, 1"); A("s_add_u32 s64, s64, s61")
    A("s_waitcnt lgkmcnt(0)")
    A("s_load_dwordx2 s[28:29], s[26:27], 0")
    A("s_barrier")
    A("s_cmp_ge_u32 s31, 4")
    A("s_cbranch_scc1 L_kdyn0")
    tile_loads(64, "v5", 6, "s64")
    A("s_add_u32 s64, s64, 1")
    tile_loads(96, "v5", 6, "s64")
    signal(C_KISS)
    A("s_setprio 2")
    tags_from_epoch()
    A("v_lshrrev_b32 v6, 3, v1"); A("v_lshlrev_b32 v6, 10, v6")
    A("v_and_b32 v7, 7, v1"); A("v_lshl_or_b32 v6, v7, 4, v6")
    A("s_lshl_b32 s62, s31, 8"); A("v_add_u32 v6, s62, v6")
    A("s_lshl_b32 s60, s38, 1"); A("s_add_u32 s60, s60, s40"); A("s_lshl_b32 s60, s60, 13")
    A(f"s_add_u32 s60, s60, {WS_QS}")
    base_add(46, 26, "s60")
    spin(C_GISS, QPOLL_AT, vt="v8")
    stamp(1)
    A("s_setprio 3")
    lp = lab("qpoll"); ld = lab("qdone")
    A.label(lp)
    A("global_load_dwordx4 v[20:23], v6, s[46:47] sc1")
    A("global_load_dwordx4 v[24:27], v6, s[46:47] offset:128 sc1")
    A("s_waitcnt vmcnt(0)")
    tagcheck(20, "v8", "v9", "v10")
    A("s_mov_b64 s[62:63], vcc")
    tagcheck(24, "v8", "v9", "v10")
    A("s_or_b64 vcc, vcc, s[62:63]")
    A(f"s_cbranch_vccz {ld}")
    A("s_sub_u32 s42, s42, 64")
    A(f"s_cbranch_scc0 {lp}")
    A.label(ld)
    untag(20, 8)
    q = [f"v{20+i}" for i in range(8)]
    tq = [f"v{32+i}" for i in range(8)]
    dpp("v_add_f32", q, "row_ror:8")
    butterfly(16, "v_add_f32", q, tq)
    butterfly(32, "v_add_f32", q, tq)
    for p in range(4): A(f"v_cvt_pk_bf16_f32 v{8+p}, v{20+2*p}, v{21+2*p}")
    A("v_lshlrev_b32 v12, 3, v7")
    A("s_lshl_b32 s60, s31, 7"); A("v_add_u32 v12, s60, v12")
    A("s_mov_b64 exec, 0xff")
    A(f"ds_write_b64 v12, v[8:9] offset:{L_Q}")
    A(f"ds_write_b64 v12, v[10:11] offset:{L_Q+64}")
    A("s_mov_b64 exec, -1")
    signal(C_Q)
    A("s_setprio 2")
    A("s_branch L_kq")
    A.label("L_kdyn0")
    tags_from_epoch()
    A("s_lshr_b32 s60, s2, 3"); A("s_lshl_b32 s60, s60, 8"); A(f"s_add_u32 s60, s60, {WS_CTR}")
    base_add(50, 26, "s60")
    A("s_sub_u32 s60, s31, 4"); A("s_mul_i32 s60, s60, 72"); A("v_mov_b32 v18, s60")
    A("s_mov_b32 s49, 0")
    spin(C_GISS, FIRST_AT, vt="v8")
    stamp(1)
    A("s_setprio 2")
    ticket_req()
    ticket_fin("s64")
    stamp(3)
    A("s_setprio 1")
    lnt = lab("qnt")
    A(f"s_cmp_eq_u32 s64, {TEND}"); A(f"s_cbranch_scc1 {lnt}")
    tile_loads(64, "v5", 6, "s64")
    A.label(lnt)
    A("s_setprio 2")
    A.label("L_kq")
    for (r, val) in ((52, 0x22222222), (54, 0x44444444), (56, 0x88888888)):
        A(f"s_mov_b32 s{r}, {val:#x}"); A(f"s_mov_b32 s{r+1}, {val:#x}")
    A("s_mov_b32 s58, 0x00ff00ff"); A("s_mov_b32 s59, 0x00ff00ff")
    A("v_bfe_u32 v8, v16, 2, 1"); A("v_lshlrev_b32 v8, 8, v8"); A("v_lshl_or_b32 v8, v17, 6, v8")
    A("v_and_b32 v9, 3, v16"); A("v_lshl_or_b32 v8, v9, 4, v8")
    A(f"v_mov_b32 v20, {NEGBIG:#x}")
    A("v_mov_b32 v21, 0")
    A("s_lshl_b32 s60, s31, 2"); A("v_mov_b32 v22, s60")
    A("v_lshrrev_b32 v23, 2, v1"); A("v_lshlrev_b32 v23, 4, v23"); A("s_lshl_b32 s60, s31, 8"); A("v_add_u32 v23, s60, v23")
    A("s_mov_b32 s43, 0")
    spin(C_Q, 4, vt="v10", sleep=0)
    A(f"ds_read_b128 v[12:15], v8 offset:{L_Q}")
    A("s_waitcnt lgkmcnt(0)")
    for i in range(4): A(f"v_cndmask_b32 v{24+i}, 0, v{12+i}, s[58:59]")
    for i in range(4): A(f"v_cndmask_b32 v{28+i}, v{12+i}, 0, s[58:59]")
    stamp(2)
    A("s_mov_b32 s65, 1")
    A("s_cmp_ge_u32 s31, 4")
    A("s_cbranch_scc0 L_kstatic")
    A(f"s_cmp_eq_u32 s64, {TEND}")
    A("s_cbranch_scc1 L_kfin_dyn")
    def qk(buf):
        S = ["v8", "v9", "v10", "v11"]
        for t in range(4):
            A(f"v_mfma_f32_16x16x32_bf16 v[{32+4*t}:{35+4*t}], v[24:27], v[{buf+8*t}:{buf+3+8*t}], 0")
        for t in range(4):
            A(f"v_mfma_f32_16x16x32_bf16 v[{32+4*t}:{35+4*t}], v[28:31], v[{buf+4+8*t}:{buf+7+8*t}], v[{32+4*t}:{35+4*t}]")
        for t in range(4): A(f"v_cndmask_b32 {S[t]}, v{32+4*t}, v{33+4*t}, s[52:53]")
        for t in range(4): A(f"v_cndmask_b32 {S[t]}, {S[t]}, v{34+4*t}, s[54:55]")
        for t in range(4): A(f"v_cndmask_b32 {S[t]}, {S[t]}, v{35+4*t}, s[56:57]")
        dpp("v_add_f32", S, "quad_perm:[1,0,3,2]")
        dpp("v_add_f32", S, "quad_perm:[2,3,0,1]")
        A(f"s_mov_b32 s60, {SCALE:#x}")
        if mimic:
            for p in range(2): A(f"v_cvt_pk_bf16_f32 v{48+p}, {S[2*p]}, {S[2*p+1]}")
            for p in range(2):
                A(f"v_lshlrev_b32 {S[2*p]}, 16, v{48+p}"); A(f"v_and_b32 {S[2*p+1]}, 0xffff0000, v{48+p}")
            for t in range(4): A(f"v_mul_f32 {S[t]}, s60, {S[t]}")
            for p in range(2): A(f"v_cvt_pk_bf16_f32 v{48+p}, {S[2*p]}, {S[2*p+1]}")
            for p in range(2):
                A(f"v_lshlrev_b32 {S[2*p]}, 16, v{48+p}"); A(f"v_and_b32 {S[2*p+1]}, 0xffff0000, v{48+p}")
        else:
            for t in range(4): A(f"v_mul_f32 {S[t]}, s60, {S[t]}")
        A(f"v_max3_f32 v48, {S[0]}, {S[1]}, {S[2]}")
        A(f"v_max3_f32 v48, v48, {S[3]}, v20")
        dpp("v_max_f32", ["v48"], "row_ror:4")
        dpp("v_max_f32", ["v48"], "row_ror:8")
        butterfly(32, "v_max_f32", ["v48"], ["v49"])
        A(f"s_mov_b32 s60, {LOG2E:#x}")
        A("v_sub_f32 v50, v20, v48"); A("v_mul_f32 v50, s60, v50")
        A("v_mul_f32 v49, s60, v48")
        for t in range(4): A(f"v_fma_f32 {S[t]}, {S[t]}, s60, -v49")
        A("v_exp_f32 v50, v50")
        for t in range(4): A(f"v_exp_f32 {S[t]}, {S[t]}")
        A("v_mov_b32 v20, v48")
        A(f"v_add_f32 v51, {S[0]}, {S[1]}"); A(f"v_add_f32 v52, {S[2]}, {S[3]}"); A("v_add_f32 v51, v51, v52")
        dpp("v_add_f32", ["v51"], "row_ror:4")
        dpp("v_add_f32", ["v51"], "row_ror:8")
        butterfly(32, "v_add_f32", ["v51"], ["v52"])
        A("v_fma_f32 v21, v21, v50, v51")
        for t in range(4): A(f"v_mov_b32 v{52+t}, {S[t]}")
        for t in range(4): A(f"v_permlane32_swap_b32 {S[t]}, v{52+t}")
        for t in range(4): A(f"v_cvt_pk_bf16_f32 v{56+t}, {S[t]}, v{52+t}")
    A.label("L_kstatic")
    A.label("L_kloop")
    lst = lab("kst"); lgo = lab("kgo")
    A("s_cmp_ge_u32 s31, 4"); A(f"s_cbranch_scc0 {lst}")
    A("s_waitcnt vmcnt(0)")
    stamp_once(4)
    stamp_idx(7, 3)
    A(f"s_branch {lgo}")
    A.label(lst)
    lw1 = lab("kw1")
    A("s_cmp_lg_u32 s43, 0"); A(f"s_cbranch_scc1 {lw1}")
    A("s_waitcnt vmcnt(8)"); stamp_once(4); A(f"s_branch {lgo}")
    A.label(lw1)
    A("s_waitcnt vmcnt(0)"); A("s_mov_b32 s65, 0")
    A.label(lgo)
    lnw = lab("knw")
    A("s_cmp_lt_u32 s43, 2"); A(f"s_cbranch_scc1 {lnw}")
    A("s_sub_u32 s61, s43, 1")
    spin(L_PCON, "s61", vt="v12", sleep=0, vaddr="v22")
    A.label(lnw)
    lq1 = lab("kq1"); lq2 = lab("kq2")
    A("s_cmp_ge_u32 s31, 4"); A(f"s_cbranch_scc0 {lq1}")
    ticket_req_if()
    qk(64); A(f"s_branch {lq2}")
    A.label(lq1)
    lq3 = lab("kq3")
    A("s_bitcmp1_b32 s43, 0"); A(f"s_cbranch_scc1 {lq3}")
    qk(64); A(f"s_branch {lq2}")
    A.label(lq3)
    qk(96)
    A.label(lq2)
    A("s_and_b32 s60, s43, 1"); A("s_lshl_b32 s61, s60, 7"); A("v_add_u32 v12, s61, v23")
    A("s_mov_b32 exec_lo, 0x11111111"); A("s_mov_b32 exec_hi, 0")
    A(f"ds_write_b128 v12, v[56:59] offset:{L_P}")
    A("s_mov_b64 exec, 0x10001")
    A("v_lshrrev_b32 v13, 2, v1")
    A("s_lshl_b32 s61, s31, 4"); A("s_lshl_b32 s60, s60, 3"); A("s_add_u32 s60, s60, s61"); A("v_add_u32 v14, s60, v13")
    A(f"ds_write_b32 v14, v50 offset:{L_AL}")
    A("v_lshlrev_b32 v13, 1, v13"); A("v_add_u32 v13, s61, v13")
    A(f"ds_write_b64 v13, v[20:21] offset:{L_ML}")
    A("s_mov_b64 exec, -1")
    signal(L_PSEQ, vaddr="v22")
    stamp_once(5)
    A("s_add_u32 s43, s43, 1")
    lsx = lab("ksx")
    A("s_cmp_ge_u32 s31, 4"); A(f"s_cbranch_scc0 {lsx}")
    if diag:
        A("s_sub_u32 s43, s43, 1"); stamp_idx(10, 3); A("s_add_u32 s43, s43, 1")
    ticket_fin("s64")
    A(f"s_cmp_eq_u32 s64, {TEND}"); A("s_cbranch_scc1 L_kfin_dyn")
    A("s_setprio 1")
    tile_loads(64, "v5", 6, "s64")
    A("s_setprio 2")
    A("s_branch L_kloop")
    A.label(lsx)
    A("s_cmp_lg_u32 s65, 0")
    A("s_cbranch_scc1 L_kloop")
    A("s_branch L_ktail")
    A.label("L_kfin_dyn")
    A("s_mov_b64 exec, 0x10001")
    A("v_lshrrev_b32 v13, 1, v1"); A("s_lshl_b32 s61, s31, 4"); A("v_add_u32 v13, s61, v13")
    A(f"ds_write_b64 v13, v[20:21] offset:{L_ML}")
    A("s_mov_b64 exec, -1")
    signal(C_END)
    stamp(6)
    if diag: A("s_mov_b32 s98, s43")
    A("s_branch L_kend")
    def wd_loads(sT):
        for j in range(4):
            A(f"global_load_dwordx4 v[{88+4*j}:{91+4*j}], v13, s[48:49] offset:{1152*j}{NT}")
        for j in range(4):
            A(f"global_load_dwordx4 v[{104+4*j}:{107+4*j}], v14, s[50:51]{NT}")
            A("v_add_u32 v14, 4608, v14")
        A("s_mov_b32 exec_hi, 0")
        A("global_load_dwordx4 v[120:123], v14, s[50:51]" + NT)
        A("s_mov_b64 exec, -1")
    def wd_setup(sT):
        A("v_lshlrev_b32 v12, 4, v16"); A(f"s_lshl_b32 s66, {sT}, 8"); A("v_add_u32 v12, s66, v12")
        A("v_mul_u32_u24 v13, 4608, v17"); A("v_add_u32 v13, v13, v12")
        A("v_mul_u32_u24 v14, 1152, v17"); A("v_add_u32 v14, v14, v12")
        A("s_lshl_b32 s66, s38, 8"); A("s_lshl_b32 s67, s39, 4"); A("s_add_u32 s66, s66, s67"); A("s_mul_i32 s66, s66, 1152")
        base_add(48, 12, "s66")
        A("s_mul_i32 s66, s2, 20736")
        base_add(50, 20, "s66")
        for i in range(4): A(f"v_mov_b32 v{120+i}, 0")
    def wd_compute(sT, half):
        A("s_waitcnt vmcnt(0)")
        stamp(7)
        Lw = [88 + 4*j for j in range(4)]; Ld = [104 + 4*j for j in range(4)]
        for f in range(8):
            c = f >> 1; sel = "s37" if f & 1 else "s36"
            for i in range(2): A(f"v_perm_b32 v{32+2*f+i}, v{Lw[2*i+1]+c}, v{Lw[2*i]+c}, {sel}")
        for f in range(8):
            c = f >> 1; sel = "s37" if f & 1 else "s36"
            for i in range(2): A(f"v_perm_b32 v{48+4*f+i}, v{Ld[2*i+1]+c}, v{Ld[2*i]+c}, {sel}")
            if f & 1: A(f"v_lshrrev_b32 v{48+4*f+2}, 16, v{120+c}")
            else: A(f"v_and_b32 v{48+4*f+2}, 0xffff, v{120+c}")
            A(f"v_mov_b32 v{48+4*f+3}, 0")
        A("v_and_b32 v4, 1, v1"); A("v_lshlrev_b32 v4, 2, v4"); A("v_add_u32 v4, v4, v17")
        A("v_lshlrev_b32 v5, 3, v4"); A("v_lshlrev_b32 v6, 4, v4")
        A("v_and_b32 v7, 1, v17"); A("v_mul_u32_u24 v7, 72, v7"); A("v_add_u32 v7, v7, v16")
        A(f"s_lshl_b32 s60, {sT}, 4"); A("v_add_u32 v7, s60, v7")
        A("v_lshlrev_b32 v7, 13, v7")
        A("v_lshrrev_b32 v8, 1, v17"); A("v_lshl_add_u32 v7, v8, 4, v7")
        A("s_lshl_b32 s60, s2, 5"); A(f"s_add_u32 s60, s60, {WS_FS}")
        base_add(44, 26, "s60")
        spin(F_H, 1, vt="v15", sleep=0)
        A(f"ds_read_b128 v[12:15], v6 offset:{L_HA}")
        A("s_waitcnt lgkmcnt(0)")
        for f in range(8):
            A(f"v_mfma_f32_16x16x32_bf16 v[{80+4*f}:{83+4*f}], v[12:15], v[{48+4*f}:{51+4*f}], 0")
        spin(F_Z, 1, vt="v10", sleep=0)
        stamp(8)
        A(f"ds_read_b64 v[8:9], v5 offset:{L_ZA}")
        A("s_waitcnt lgkmcnt(0)")
        for f in range(8):
            A(f"v_mfma_f32_16x16x16_bf16 v[{80+4*f}:{83+4*f}], v[8:9], v[{32+2*f}:{33+2*f}], v[{80+4*f}:{83+4*f}]")
        A("s_mov_b32 s60, 0xffff0000"); A("s_mov_b32 s61, 0xffff0000")
        A("s_mov_b32 s62, 0"); A("s_mov_b32 s63, -1")
        for i in range(4): A(f"v_cndmask_b32 v{32+i}, v{80+4*i}, v{81+4*i}, s[60:61]")
        for i in range(4): A(f"v_cndmask_b32 v{36+i}, v{96+4*i}, v{97+4*i}, s[60:61]")
        for i in range(4): A(f"v_cndmask_b32 v{32+i}, v{32+i}, v{36+i}, s[62:63]")
        tagset(32)
        if half: A("s_mov_b32 exec_lo, 0x00ff00ff"); A("s_mov_b32 exec_hi, 0x00ff00ff")
        A("global_store_dwordx4 v7, v[32:35], s[44:45] sc1")
        if half: A("s_mov_b64 exec, -1")
        signal(C_F)
        stamp(9)
    A.label("L_ktail")
    wd_setup("s31")
    spin(C_END, 4, vt="v15")
    A("s_setprio 0")
    wd_loads("s31")
    A("s_setprio 2")
    stamp(6)
    wd_compute("s31", False)
    A.label("L_kend")
    stamp_dump()
    A("s_endpgm")

    A.label("L_vwave")
    A("s_setprio 3")
    A("s_cmp_ge_u32 s31, 6")
    A("s_cbranch_scc1 L_v67")
    A("s_lshr_b32 s60, s39, 1"); A("s_mul_i32 s60, s60, 72"); A("s_mul_i32 s61, s31, 12"); A("s_add_u32 s64, s60, s61")
    A("s_lshl_b32 s60, s64, 13"); A("s_lshl_b32 s61, s38, 9"); A("s_add_u32 s60, s60, s61")
    A("s_and_b32 s61, s39, 1"); A("s_lshl_b32 s61, s61, 8"); A("s_add_u32 s60, s60, s61")
    A("v_lshlrev_b32 v4, 13, v17"); A("v_lshl_add_u32 v4, v16, 4, v4")
    A("s_waitcnt lgkmcnt(0)")
    A("s_load_dwordx2 s[28:29], s[26:27], 0")
    base_add(44, 10, "s60")
    for j in range(3):
        A(f"global_load_dwordx4 v[{64+4*j}:{67+4*j}], v4, s[44:45]{NT}")
        if j < 2: base_add(44, 44, 32768)
    A("s_barrier")
    A("v_and_b32 v4, 1, v1"); A("v_mul_u32_u24 v4, 1152, v4")
    A("v_lshl_add_u32 v4, v17, 1, v4")
    A("s_lshl_b32 s60, s64, 1"); A("v_add_u32 v4, s60, v4")
    tags_from_epoch()
    spin(C_XN, 2, vt="v5", sleep=0)
    A(f"ds_read_u16 v8, v4 offset:{L_XN}")
    A(f"ds_read_u16 v10, v4 offset:{L_XN+8}")
    A(f"ds_read_u16 v9, v4 offset:{L_XN+16}")
    A("s_waitcnt lgkmcnt(0)")
    A("v_lshl_or_b32 v8, v10, 16, v8")
    A("s_waitcnt vmcnt(0)")
    stamp(1)
    sets = [10, 12]
    def qfrag(f):
        c = f >> 1; s = sets[f & 1]; sel = "s37" if f & 1 else "s36"
        A(f"v_perm_b32 v{s}, v{68+c}, v{64+c}, {sel}")
        if f & 1: A(f"v_lshrrev_b32 v{s+1}, 16, v{72+c}")
        else: A(f"v_and_b32 v{s+1}, 0xffff, v{72+c}")
    qfrag(0)
    for f in range(8):
        if f + 1 < 8: qfrag(f + 1)
        s = sets[f & 1]
        A(f"v_mfma_f32_16x16x16_bf16 v[{32+4*f}:{35+4*f}], v[8:9], v[{s}:{s+1}], 0")
    for b in range(2):
        for f in range(8): A(f"v_mov_b32 v{64+8*b+f}, v{32+4*f+b}")
    A("v_lshlrev_b32 v4, 5, v16")
    A("s_lshl_b32 s60, s31, 10"); A("v_add_u32 v4, s60, v4")
    A("s_mov_b64 exec, 0xffff")
    for b in range(2):
        A(f"ds_write_b128 v4, v[{64+8*b}:{67+8*b}] offset:{L_QP+512*b}")
        A(f"ds_write_b128 v4, v[{68+8*b}:{71+8*b}] offset:{L_QP+512*b+16}")
    A("s_mov_b64 exec, -1")
    arrive(C_QP, "s60")
    A("s_cmp_lg_u32 s60, 5")
    A("s_cbranch_scc1 L_vgu0")
    A("v_lshlrev_b32 v4, 4, v1")
    for w in range(6): A(f"ds_read_b128 v[{64+4*w}:{67+4*w}], v4 offset:{L_QP+1024*w}")
    A("v_lshrrev_b32 v5, 5, v1"); A("v_lshlrev_b32 v5, 13, v5")
    A("v_and_b32 v6, 31, v1"); A("v_lshl_add_u32 v5, v6, 4, v5")
    A("s_lshl_b32 s60, s38, 14"); A("s_lshr_b32 s61, s39, 1"); A("s_lshl_b32 s61, s61, 10"); A("s_add_u32 s60, s60, s61")
    A("s_and_b32 s61, s39, 1"); A("s_lshl_b32 s61, s61, 9"); A("s_add_u32 s60, s60, s61")
    A(f"s_add_u32 s60, s60, {WS_QS}")
    base_add(44, 26, "s60")
    A("s_waitcnt lgkmcnt(0)")
    for w in range(1, 6):
        for i in range(4): A(f"v_add_f32 v{64+i}, v{64+i}, v{64+4*w+i}")
    tagset(64)
    A("global_store_dwordx4 v5, v[64:67], s[44:45] sc1")
    stamp(2)
    A("s_branch L_vgu0")
    A.label("L_v67")
    A("s_sub_u32 s64, s31, 6"); A("s_mul_i32 s64, s64, 1152")
    A("v_lshlrev_b32 v4, 2, v1"); A("v_add_u32 v5, s64, v4")
    for i in range(10): A(f"v_mov_b32 v{64+i}, 0")
    A("s_waitcnt lgkmcnt(0)")
    A("s_load_dwordx2 s[28:29], s[26:27], 0")
    for t in range(4): A(f"global_load_dword v{64+t}, v5, s[4:5] offset:{256*t}")
    A("s_mov_b32 exec_hi, 0")
    A("global_load_dword v68, v5, s[4:5] offset:1024")
    A("s_mov_b64 exec, -1")
    lz = lab("noz")
    A("s_cmp_lg_u32 s31, 6"); A(f"s_cbranch_scc1 {lz}")
    A(f"ds_write_b32 v4, {VZ}"); A(f"ds_write_b32 v4, {VZ} offset:256")
    A(f"ds_write_b32 v4, {VZ} offset:{L_HA}")
    A("s_waitcnt lgkmcnt(0)")
    A.label(lz)
    A("s_barrier")
    tags_from_epoch()
    lz = lab("noc")
    A("s_cmp_lg_u32 s31, 6"); A(f"s_cbranch_scc1 {lz}")
    A("s_cmp_lg_u32 s41, 0"); A(f"s_cbranch_scc1 {lz}")
    A("s_lshl_b32 s60, s29, 16"); A("v_mov_b32 v8, s60"); A("v_mov_b32 v9, s28")
    A("s_lshr_b32 s60, s2, 3"); A("s_lshl_b32 s60, s60, 8"); A(f"s_add_u32 s60, s60, {WS_CTR}"); A("v_mov_b32 v10, s60")
    A("s_mov_b64 exec, 1")
    A("global_store_dwordx2 v10, v[8:9], s[26:27] sc1")
    A("s_mov_b64 exec, -1")
    A.label(lz)
    A("s_waitcnt vmcnt(1)")
    lx = lab("xw")
    A("s_cmp_lg_u32 s31, 6"); A("s_cselect_b32 s60, 1, 0"); A("s_cmp_lg_u32 s41, 0"); A("s_cselect_b32 s60, 1, s60")
    A("s_cmp_eq_u32 s60, 0"); A(f"s_cbranch_scc1 {lx}")
    A("s_waitcnt vmcnt(0)")
    A.label(lx)
    stamp(1)
    X = [f"v{80+i}" for i in range(10)]
    for t in range(5):
        A(f"v_lshlrev_b32 {X[2*t]}, 16, v{64+t}")
        A(f"v_and_b32 {X[2*t+1]}, 0xffff0000, v{64+t}")
    def red64(dst):
        dpp("v_add_f32", [dst], "quad_perm:[1,0,3,2]")
        dpp("v_add_f32", [dst], "quad_perm:[2,3,0,1]")
        dpp("v_add_f32", [dst], "row_ror:4")
        dpp("v_add_f32", [dst], "row_ror:8")
        butterfly(16, "v_add_f32", [dst], ["v33"])
        butterfly(32, "v_add_f32", [dst], ["v33"])
    for i in range(5): A(f"v_add_f32 v{34+i}, {X[2*i]}, {X[2*i+1]}")
    A("v_add_f32 v34, v34, v35"); A("v_add_f32 v36, v36, v37"); A("v_add_f32 v34, v34, v38"); A("v_add_f32 v8, v34, v36")
    red64("v8")
    A("s_mov_b32 s60, 0x3ae38e39")
    A("v_mul_f32 v8, s60, v8")
    D = [f"v{100+i}" for i in range(10)]
    for i in range(8): A(f"v_sub_f32 {D[i]}, {X[i]}, v8")
    A(f"v_mov_b32 {D[8]}, 0"); A(f"v_mov_b32 {D[9]}, 0")
    A("s_mov_b32 exec_hi, 0")
    for i in (8, 9): A(f"v_sub_f32 {D[i]}, {X[i]}, v8")
    A("s_mov_b64 exec, -1")
    for i in range(5): A(f"v_mul_f32 v{34+i}, {D[2*i]}, {D[2*i]}")
    for i in range(5): A(f"v_fmac_f32 v{34+i}, {D[2*i+1]}, {D[2*i+1]}")
    A("v_add_f32 v34, v34, v35"); A("v_add_f32 v36, v36, v37"); A("v_add_f32 v34, v34, v38"); A("v_add_f32 v9, v34, v36")
    red64("v9")
    A("v_mul_f32 v9, s60, v9")
    def bf16r(r):
        A(f"v_cvt_pk_bf16_f32 {r}, {r}, {r}"); A(f"v_and_b32 {r}, 0xffff0000, {r}")
    bf16r("v8"); bf16r("v9")
    A("v_add_f32 v9, 0x3727c5ac, v9")
    bf16r("v9")
    A("v_sqrt_f32 v9, v9")
    bf16r("v9")
    A("v_rcp_f32 v10, v9")
    A("v_fma_f32 v11, -v9, v10, 1.0")
    A("v_fma_f32 v10, v10, v11, v10")
    for i in range(10): A(f"v_sub_f32 {D[i]}, {X[i]}, v8")
    for t in range(5): A(f"v_cvt_pk_bf16_f32 v{34+t}, {D[2*t]}, {D[2*t+1]}")
    for t in range(5):
        A(f"v_lshlrev_b32 {D[2*t]}, 16, v{34+t}"); A(f"v_and_b32 {D[2*t+1]}, 0xffff0000, v{34+t}")
    for i in range(10): A(f"v_mul_f32 {D[i]}, {D[i]}, v10")
    for t in range(5): A(f"v_cvt_pk_bf16_f32 v{34+t}, {D[2*t]}, {D[2*t+1]}")
    for t in range(4): A(f"ds_write_b32 v5, v{34+t} offset:{L_XN+256*t}")
    A("s_mov_b32 exec_hi, 0")
    A(f"ds_write_b32 v5, v38 offset:{L_XN+1024}")
    A("s_mov_b64 exec, -1")
    signal(C_XN)
    stamp(2)
    A.label("L_vgu0")
    A("s_mul_i32 s62, s2, 911"); A("s_lshr_b32 s62, s62, 16")
    A("s_mul_i32 s63, s62, 72"); A("s_sub_u32 s63, s2, s63")
    A("s_mul_i32 s64, s62, 192"); A("s_mul_i32 s65, s31, 24"); A("s_add_u32 s64, s64, s65")
    A("s_mul_i32 s65, s64, 9216"); A("s_lshl_b32 s66, s63, 7"); A("s_add_u32 s65, s65, s66")
    A("v_mul_u32_u24 v4, 55296, v17"); A("v_and_b32 v5, 7, v16"); A("v_lshl_add_u32 v4, v5, 4, v4"); A("v_add_u32 v4, s65, v4")
    A("s_mov_b32 s58, 0x00ff00ff"); A("s_mov_b32 s59, 0x00ff00ff")
    A("v_mov_b32 v8, s16"); A("v_mov_b32 v9, s17"); A("v_mov_b32 v10, s18"); A("v_mov_b32 v11, s19")
    A("v_cndmask_b32 v8, v10, v8, s[58:59]"); A("v_cndmask_b32 v9, v11, v9, s[58:59]")
    A("v_add_co_u32 v8, vcc, v8, v4"); A("v_addc_co_u32 v9, vcc, 0, v9, vcc")
    A("s_mov_b32 s46, 9216"); A("s_mov_b32 s47, 0")
    A("v_lshlrev_b32 v5, 4, v1")
    A("s_lshl_b32 s67, s41, 3"); A("s_lshl_b32 s61, s31, 1"); A("s_add_u32 s67, s67, s61")
    spin(C_KISS, 4, vt="v12", sleep=0)
    A("s_setprio 0")
    lng = lab("nogu")
    A(f"s_cmp_ge_u32 s2, {ngu}"); A(f"s_cbranch_scc1 {lng}")
    for j in range(6):
        A(f"global_load_dwordx4 v[{96+4*j}:{99+4*j}], v[8:9], off{NT}")
        if j < 5: A("v_lshl_add_u64 v[8:9], v[8:9], 0, s[46:47]")
    A.label(lng)
    signal(C_GISS)
    lns = lab("nost")
    A("s_cmp_ge_u32 s31, 4"); A(f"s_cbranch_scc1 {lns}")
    tile_loads(64, "v5", 8, "s67")
    A.label(lns)
    A("s_setprio 3")
    stamp(3)
    lgd = lab("gud")
    A(f"s_cmp_ge_u32 s2, {ngu}"); A(f"s_cbranch_scc1 {lgd}")
    A("v_and_b32 v4, 1, v1"); A("v_mul_u32_u24 v4, 1152, v4"); A("v_mul_u32_u24 v6, 12, v17"); A("v_add_u32 v4, v4, v6")
    A("s_lshl_b32 s64, s64, 1"); A("v_add_u32 v4, s64, v4")
    spin(C_XN, 2, vt="v24", sleep=0)
    A(f"ds_read_b32 v24, v4 offset:{L_XN}"); A(f"ds_read_b32 v25, v4 offset:{L_XN+4}"); A(f"ds_read_b32 v26, v4 offset:{L_XN+8}")
    A("v_mov_b32 v27, 0"); A("v_mov_b32 v11, 0"); A("v_mov_b32 v15, 0")
    lw8 = lab("w8"); lw0 = lab("w0")
    A("s_cmp_ge_u32 s31, 4"); A(f"s_cbranch_scc1 {lw0}")
    A("s_waitcnt vmcnt(8) lgkmcnt(0)"); A(f"s_branch {lw8}")
    A.label(lw0); A("s_waitcnt vmcnt(0) lgkmcnt(0)")
    A.label(lw8)
    Lg = [96 + 4*j for j in range(6)]
    sets = [8, 12]
    perms(0, sets[0], Lg, 3)
    for f in range(8):
        if f + 1 < 8: perms(f+1, sets[(f+1) & 1], Lg, 3)
        s = sets[f & 1]
        A(f"v_mfma_f32_16x16x32_bf16 v[{32+4*f}:{35+4*f}], v[24:27], v[{s}:{s+3}], 0")
    for b in range(2):
        for f in range(8): A(f"v_mov_b32 v{96+8*b+f}, v{32+4*f+b}")
    A("v_lshlrev_b32 v4, 5, v16"); A("s_lshl_b32 s60, s31, 10"); A("v_add_u32 v4, s60, v4")
    A("s_mov_b64 exec, 0xffff")
    for b in range(2):
        A(f"ds_write_b128 v4, v[{96+8*b}:{99+8*b}] offset:{L_RG+512*b}")
        A(f"ds_write_b128 v4, v[{100+8*b}:{103+8*b}] offset:{L_RG+512*b+16}")
    A("s_mov_b64 exec, -1")
    arrive(C_RG, "s60")
    A("s_cmp_lg_u32 s60, 7"); A(f"s_cbranch_scc1 {lgd}")
    A("s_mul_i32 s60, s62, 73728"); A("s_lshl_b32 s61, s63, 8"); A("s_add_u32 s60, s60, s61"); A(f"s_add_u32 s60, s60, {WS_GS}")
    base_add(44, 26, "s60")
    A("v_mul_u32_u24 v7, 18432, v17"); A("v_lshl_add_u32 v7, v16, 4, v7")
    A("v_and_b32 v6, 1, v17"); A("v_lshlrev_b32 v6, 9, v6"); A("v_lshrrev_b32 v8, 1, v17"); A("v_lshl_add_u32 v6, v8, 8, v6")
    A("v_lshl_add_u32 v6, v16, 4, v6")
    for w in range(8): A(f"ds_read_b128 v[{96+4*w}:{99+4*w}], v6 offset:{L_RG+1024*w}")
    A("s_waitcnt lgkmcnt(0)")
    for w in range(1, 8):
        for i in range(4): A(f"v_add_f32 v{96+i}, v{96+i}, v{96+4*w+i}")
    tagset(96)
    A("global_store_dwordx4 v7, v[96:99], s[44:45] sc1")
    A("s_mov_b32 s48, 1")
    A("s_branch L_vpv0")
    A.label(lgd)
    A("s_mov_b32 s48, 0")
    A.label("L_vpv0")
    stamp(4)
    A("v_and_b32 v6, 1, v1"); A("v_lshlrev_b32 v6, 2, v6"); A("v_add_u32 v6, v6, v17"); A("v_lshlrev_b32 v6, 4, v6")
    A("s_lshl_b32 s60, s31, 8"); A("v_add_u32 v6, s60, v6")
    A("s_lshl_b32 s60, s31, 2"); A("v_mov_b32 v22, s60")
    A("s_lshl_b32 s60, s31, 4"); A("v_mov_b32 v23, s60")
    for i in range(32): A(f"v_mov_b32 v{32+i}, 0")
    A("s_mov_b32 s43, 0")
    A("s_cmp_ge_u32 s31, 4"); A("s_cbranch_scc1 L_vdyn0")
    A("s_add_u32 s67, s67, 1")
    A("s_setprio 2")
    tile_loads(96, "v5", 8, "s67")
    A("s_setprio 3")
    A("s_mov_b32 s65, 1")
    A("s_branch L_vloop")
    A.label("L_vdyn0")
    A("s_sub_u32 s60, s31, 4"); A("s_mul_i32 s60, s60, 72"); A("v_mov_b32 v18, s60")
    A.label("L_vnext")
    spin(L_TIDX, 0, vt="v12", sleep=0, vaddr="v18", sdst="s67", cmp="s_cmp_lg_u32")
    A("v_add_u32 v18, 4, v18")
    A(f"s_cmp_ge_u32 s67, 128"); A("s_cbranch_scc1 L_vfin")
    A("s_setprio 1")
    tile_loads(64, "v5", 8, "s67")
    A("s_setprio 3")
    A.label("L_vloop")
    lst = lab("vst"); lgo = lab("vgo")
    A("s_cmp_ge_u32 s31, 4"); A(f"s_cbranch_scc0 {lst}")
    A("s_waitcnt vmcnt(0)")
    A(f"s_branch {lgo}")
    A.label(lst)
    lw1 = lab("vw1")
    A("s_cmp_lg_u32 s43, 0"); A(f"s_cbranch_scc1 {lw1}")
    A("s_waitcnt vmcnt(8)"); A(f"s_branch {lgo}")
    A.label(lw1)
    A("s_waitcnt vmcnt(0)"); A("s_mov_b32 s65, 0")
    A.label(lgo)
    A("s_add_u32 s61, s43, 1")
    spin(L_PSEQ, "s61", vt="v12", sleep=0, vaddr="v22")
    A("s_and_b32 s60, s43, 1"); A("s_lshl_b32 s61, s60, 7"); A("v_add_u32 v12, s61, v6")
    A("s_lshl_b32 s61, s60, 3"); A("v_add_u32 v13, s61, v23")
    A(f"ds_read_b128 v[24:27], v12 offset:{L_P}")
    A(f"ds_read_b64 v[28:29], v13 offset:{L_AL}")
    A("s_waitcnt lgkmcnt(0)")
    A("s_mov_b64 exec, 1"); A(f"ds_add_u32 v22, {VONE} offset:{L_PCON}"); A("s_mov_b64 exec, -1")
    for f in range(8):
        A(f"v_mul_f32 v{32+4*f}, v{32+4*f}, v28"); A(f"v_mul_f32 v{33+4*f}, v{33+4*f}, v29")
    sets = [8, 12]
    def pv(buf):
        Lv = [buf + 4*j for j in range(8)]
        perms(0, sets[0], Lv, 4)
        for f in range(8):
            if f + 1 < 8: perms(f+1, sets[(f+1) & 1], Lv, 4)
            s = sets[f & 1]
            A(f"v_mfma_f32_16x16x32_bf16 v[{32+4*f}:{35+4*f}], v[24:27], v[{s}:{s+3}], v[{32+4*f}:{35+4*f}]")
    l1 = lab("pv1"); l2 = lab("pv2"); l0 = lab("pv0")
    A("s_cmp_ge_u32 s31, 4"); A(f"s_cbranch_scc1 {l0}")
    A("s_bitcmp1_b32 s43, 0"); A(f"s_cbranch_scc1 {l1}")
    A.label(l0)
    pv(64); A(f"s_branch {l2}")
    A.label(l1)
    pv(96)
    A.label(l2)
    stamp_once(5)
    A("s_add_u32 s43, s43, 1")
    A("s_cmp_ge_u32 s31, 4"); A("s_cbranch_scc1 L_vnext")
    A("s_cmp_lg_u32 s65, 0")
    A("s_cbranch_scc1 L_vloop")
    A.label("L_vfin")
    stamp(6)
    for h in range(2):
        for f in range(8): A(f"v_mov_b32 v{64+8*h+f}, v{32+4*f+h}")
    A("v_lshlrev_b32 v4, 5, v16"); A("s_lshl_b32 s60, s31, 10"); A("v_add_u32 v4, s60, v4")
    A("s_mov_b64 exec, 0xffff")
    for h in range(2):
        A(f"ds_write_b128 v4, v[{64+8*h}:{67+8*h}] offset:{L_RO+512*h}")
        A(f"ds_write_b128 v4, v[{68+8*h}:{71+8*h}] offset:{L_RO+512*h+16}")
    A("s_mov_b64 exec, -1")
    arrive(C_RO, "s60")
    A("s_cmp_lg_u32 s60, 7")
    A("s_cbranch_scc1 L_vrole")
    spin(C_END, 4, vt="v4", sleep=0)
    A("v_and_b32 v7, 7, v1"); A("v_lshlrev_b32 v7, 4, v7"); A("v_lshrrev_b32 v8, 5, v1"); A("v_lshl_add_u32 v7, v8, 3, v7")
    A(f"ds_read_b64 v[28:29], v7 offset:{L_ML}")
    A("v_lshlrev_b32 v4, 4, v1")
    for w in range(8): A(f"ds_read_b128 v[{64+4*w}:{67+4*w}], v4 offset:{L_RO+1024*w}")
    A("v_lshrrev_b32 v5, 2, v1"); A("v_lshlrev_b32 v5, 10, v5"); A("v_and_b32 v6, 3, v1"); A("v_lshl_add_u32 v5, v6, 4, v5")
    A("s_lshl_b32 s60, s38, 14"); A("s_lshl_b32 s61, s39, 6"); A("s_add_u32 s61, s61, s60"); A(f"s_add_u32 s61, s61, {WS_OS}")
    base_add(44, 26, "s61")
    A("s_waitcnt lgkmcnt(8)")
    A("v_mov_b32 v30, v28")
    dpp("v_max_f32", ["v30"], "quad_perm:[1,0,3,2]")
    dpp("v_max_f32", ["v30"], "quad_perm:[2,3,0,1]")
    dpp("v_max_f32", ["v30"], "row_half_mirror")
    A("v_and_b32 v30, 0xfffff000, v30")
    A("v_sub_f32 v31, v28, v30"); A(f"v_mul_f32 v31, {LOG2E:#x}, v31"); A("v_exp_f32 v31, v31")
    A("v_mul_f32 v29, v31, v29")
    dpp("v_add_f32", ["v29"], "quad_perm:[1,0,3,2]")
    dpp("v_add_f32", ["v29"], "quad_perm:[2,3,0,1]")
    dpp("v_add_f32", ["v29"], "row_half_mirror")
    A("s_waitcnt lgkmcnt(0)")
    for w in range(8):
        A(f"v_mov_b32_dpp v{8+(w&3)+0}, v31 row_newbcast:{w} row_mask:0xf bank_mask:0xf")
        if w == 0:
            for i in range(4): A(f"v_mul_f32 v{64+i}, v{64+i}, v8")
        else:
            for i in range(4): A(f"v_fmac_f32 v{64+i}, v{64+4*w+i}, v{8+(w&3)}")
    tagset(64)
    A("global_store_dwordx4 v5, v[64:67], s[44:45] sc1")
    A("v_mov_b32 v68, v30"); A("v_mov_b32 v69, v29"); A("v_mov_b32 v70, 0"); A("v_mov_b32 v71, 0")
    tagset(68)
    A("v_lshrrev_b32 v7, 5, v1"); A("v_lshlrev_b32 v7, 8, v7")
    A("s_lshl_b32 s60, s38, 9"); A("s_lshl_b32 s61, s39, 4"); A("s_add_u32 s60, s60, s61"); A(f"s_add_u32 s60, s60, {WS_ML}")
    base_add(46, 26, "s60")
    A("s_mov_b32 exec_lo, 1"); A("s_mov_b32 exec_hi, 1")
    A("global_store_dwordx4 v7, v[68:71], s[46:47] sc1")
    A("s_mov_b64 exec, -1")
    stamp(7)
    A("s_lshl_b32 s60, s38, 14"); A("s_lshl_b32 s61, s39, 10"); A("s_add_u32 s61, s61, s60"); A(f"s_add_u32 s61, s61, {WS_OS}")
    base_add(44, 26, "s61")
    A("s_lshl_b32 s60, s38, 1"); A("s_add_u32 s60, s60, s40"); A("s_lshl_b32 s60, s60, 8"); A(f"s_add_u32 s60, s60, {WS_ML}")
    base_add(46, 26, "s60")
    A("v_lshrrev_b32 v5, 2, v1"); A("v_lshlrev_b32 v5, 4, v5")
    lp = lab("opoll"); ld = lab("odone")
    A.label(lp)
    A("global_load_dwordx4 v[64:67], v4, s[44:45] sc1")
    A("global_load_dwordx4 v[68:71], v5, s[46:47] sc1")
    A("s_waitcnt vmcnt(0)")
    tagcheck(64, "v8", "v9", "v10")
    A("s_mov_b64 s[62:63], vcc")
    tagcheck(68, "v8", "v9", "v10")
    A("s_or_b64 vcc, vcc, s[62:63]")
    A(f"s_cbranch_vccz {ld}")
    A("s_sub_u32 s42, s42, 64")
    A(f"s_cbranch_scc0 {lp}")
    A.label(ld)
    stamp(8)
    untag(64); untag(68, 2)
    A("v_mov_b32 v8, v68")
    dpp("v_max_f32", ["v8"], "row_ror:4"); dpp("v_max_f32", ["v8"], "row_ror:8")
    butterfly(16, "v_max_f32", ["v8"], ["v9"])
    A("v_sub_f32 v8, v68, v8"); A(f"v_mul_f32 v8, {LOG2E:#x}, v8"); A("v_exp_f32 v8, v8")
    A("v_mul_f32 v69, v8, v69")
    for i in range(4): A(f"v_mul_f32 v{64+i}, v8, v{64+i}")
    z = ["v64", "v65", "v66", "v67", "v69"]
    dpp("v_add_f32", z, "row_ror:4"); dpp("v_add_f32", z, "row_ror:8")
    butterfly(16, "v_add_f32", z, ["v8", "v9", "v10", "v11", "v12"])
    A("v_rcp_f32 v8, v69")
    A("v_fma_f32 v9, -v69, v8, 1.0"); A("v_fma_f32 v8, v8, v9, v8")
    for i in range(4): A(f"v_mul_f32 v{64+i}, v{64+i}, v8")
    A("v_cvt_pk_bf16_f32 v8, v64, v65"); A("v_cvt_pk_bf16_f32 v9, v66, v67")
    A("v_lshrrev_b32 v10, 5, v1"); A("v_lshlrev_b32 v10, 2, v10"); A("v_and_b32 v11, 3, v1"); A("v_add_u32 v10, v10, v11")
    A("v_lshlrev_b32 v10, 3, v10")
    A("s_mov_b32 exec_lo, 0xf"); A("s_mov_b32 exec_hi, 0xf")
    A(f"ds_write_b64 v10, v[8:9] offset:{L_ZA}")
    A("s_mov_b64 exec, -1")
    signal(F_Z)
    stamp(9)
    A.label("L_vrole")
    A("s_cmp_eq_u32 s31, 0"); A("s_cbranch_scc1 L_vwd")
    A("s_cmp_lg_u32 s31, 1"); A("s_cbranch_scc1 L_vfinal")
    A("s_mul_i32 s60, s2, 18"); A("s_and_b32 s64, s60, 3"); A("s_lshr_b32 s60, s60, 2"); A("s_lshl_b32 s60, s60, 4")
    A(f"s_add_u32 s60, s60, {WS_GS}")
    base_add(44, 26, "s60")
    A("v_lshrrev_b32 v5, 2, v1"); A("v_mul_u32_u24 v5, 18432, v5"); A("v_and_b32 v6, 3, v1"); A("v_lshl_add_u32 v5, v6, 4, v5")
    for i in range(8): A(f"v_mov_b32 v{64+i}, 0")
    lp = lab("gpoll"); ld = lab("gdone")
    A.label(lp)
    A("s_mov_b32 exec_hi, 0x0000ffff")
    A("global_load_dwordx4 v[64:67], v5, s[44:45] sc1")
    A("s_mov_b32 exec_lo, 0x11111111"); A("s_mov_b32 exec_hi, 0x00001111")
    A("global_load_dwordx4 v[68:71], v5, s[44:45] offset:64 sc1")
    A("s_waitcnt vmcnt(0)")
    tagcheck(68, "v8", "v9", "v10")
    A("s_mov_b64 s[62:63], vcc")
    A("s_mov_b32 exec_lo, -1"); A("s_mov_b32 exec_hi, 0x0000ffff")
    tagcheck(64, "v8", "v9", "v10")
    A("s_or_b64 vcc, vcc, s[62:63]")
    A("s_mov_b64 exec, -1")
    A(f"s_cbranch_vccz {ld}")
    A("s_sleep 8")
    A("s_sub_u32 s42, s42, 64")
    A(f"s_cbranch_scc0 {lp}")
    A.label(ld)
    untag(64, 8)
    gv = [f"v{64+i}" for i in range(8)]; tv = [f"v{72+i}" for i in range(8)]
    butterfly(16, "v_add_f32", gv, tv)
    butterfly(32, "v_add_f32", gv, tv)
    for p in range(4): A(f"v_cvt_pk_bf16_f32 v{72+p}, v{64+2*p}, v{65+2*p}")
    for p in range(4):
        A(f"v_lshlrev_b32 v{64+2*p}, 16, v{72+p}"); A(f"v_and_b32 v{65+2*p}, 0xffff0000, v{72+p}")
    for i in range(8):
        A(f"v_mul_f32_dpp v{72+i}, v{64+i}, v{64+i} row_ror:8 row_mask:0xf bank_mask:0xf")
    for p in range(4): A(f"v_cvt_pk_bf16_f32 v{64+p}, v{72+2*p}, v{73+2*p}")
    A("v_bfe_u32 v8, v1, 2, 1"); A("v_lshlrev_b32 v8, 6, v8")
    A("v_lshlrev_b32 v9, 2, v6"); A("v_subrev_u32 v9, s64, v9")
    A("s_mov_b64 exec, 0xff")
    for s_ in range(2):
        for i in range(4):
            A(f"v_add_u32 v10, {16*s_+i}, v9")
            A("v_and_b32 v11, 3, v10"); A("v_lshlrev_b32 v11, 4, v11")
            A("v_lshrrev_b32 v12, 2, v10"); A("v_lshl_add_u32 v11, v12, 1, v11"); A("v_add_u32 v11, v11, v8")
            A("v_cmp_gt_u32 vcc, 18, v10")
            if s_ == 1: A("s_and_b64 vcc, vcc, 0x11")
            A(f"v_mov_b32 v12, {L_DUMMY-L_HA}")
            A("v_cndmask_b32 v11, v12, v11, vcc")
            src = f"v{64 + 2*s_ + (i >> 1)}"
            if i & 1: A(f"ds_write_b16_d16_hi v11, {src} offset:{L_HA}")
            else: A(f"ds_write_b16 v11, {src} offset:{L_HA}")
    A("s_mov_b64 exec, -1")
    signal(F_H)
    stamp(13)
    A("s_branch L_vfinal")
    A.label("L_vwd")
    A("s_mov_b32 s43, 4")
    wd_setup("s43")
    spin(C_END, 4, vt="v15")
    A("s_setprio 0")
    A("s_mov_b32 exec_lo, 0x00ff00ff"); A("s_mov_b32 exec_hi, 0x00ff00ff")
    wd_loads("s43")
    A("s_setprio 3")
    wd_compute("s43", True)
    A.label("L_vfinal")
    A("s_cmp_ge_u32 s2, 144")
    A("s_cbranch_scc1 L_vend")
    A("s_lshl_b32 s60, s2, 13"); A("s_lshl_b32 s61, s31, 10"); A("s_add_u32 s60, s60, s61"); A(f"s_add_u32 s60, s60, {WS_FS}")
    base_add(44, 26, "s60")
    A("v_lshlrev_b32 v5, 4, v1")
    A("s_cmp_ge_u32 s2, 72"); A("s_cselect_b32 s60, 72, 0"); A("s_cselect_b32 s61, 1152, 0")
    A("s_sub_u32 s60, s2, s60"); A("s_lshl_b32 s60, s60, 4"); A("s_add_u32 s64, s60, s61")
    A("v_and_b32 v6, 1, v1"); A("v_lshlrev_b32 v6, 3, v6"); A("v_add_u32 v6, s64, v6")
    A("global_load_dwordx2 v[30:31], v6, s[4:5]")
    spin(C_F, 5)
    stamp(10)
    lp = lab("fpoll"); ld = lab("fdone")
    A.label(lp)
    A("global_load_dwordx4 v[64:67], v5, s[44:45] sc1")
    A("s_waitcnt vmcnt(0)")
    tagcheck(64, "v8", "v9", "v10")
    A(f"s_cbranch_vccz {ld}")
    A("s_sub_u32 s42, s42, 64")
    A(f"s_cbranch_scc0 {lp}")
    A.label(ld)
    stamp(11)
    untag(64)
    z = ["v64", "v65", "v66", "v67"]
    dpp("v_add_f32", z, "quad_perm:[2,3,0,1]")
    dpp("v_add_f32", z, "row_ror:4"); dpp("v_add_f32", z, "row_ror:8")
    butterfly(16, "v_add_f32", z, ["v8", "v9", "v10", "v11"])
    butterfly(32, "v_add_f32", z, ["v8", "v9", "v10", "v11"])
    A("v_and_b32 v7, 1, v1"); A("v_lshlrev_b32 v7, 4, v7")
    A("s_lshl_b32 s60, s31, 5"); A("v_add_u32 v8, s60, v7")
    A("s_mov_b64 exec, 3")
    A(f"ds_write_b128 v8, v[64:67] offset:{L_FR}")
    A("s_mov_b64 exec, -1")
    arrive(C_FR, "s60")
    A("s_cmp_lg_u32 s60, 7")
    A("s_cbranch_scc1 L_vend")
    for w in range(8): A(f"ds_read_b128 v[{64+4*w}:{67+4*w}], v7 offset:{L_FR+32*w}")
    A("s_waitcnt lgkmcnt(0)")
    for w in range(1, 8):
        for i in range(4): A(f"v_add_f32 v{64+i}, v{64+i}, v{64+4*w+i}")
    A("v_lshlrev_b32 v8, 16, v30"); A("v_and_b32 v9, 0xffff0000, v30")
    A("v_lshlrev_b32 v10, 16, v31"); A("v_and_b32 v11, 0xffff0000, v31")
    for i in range(4): A(f"v_add_f32 v{64+i}, v{64+i}, v{8+i}")
    A("v_cvt_pk_bf16_f32 v8, v64, v65"); A("v_cvt_pk_bf16_f32 v9, v66, v67")
    A("s_mov_b64 exec, 3")
    A("global_store_dwordx2 v6, v[8:9], s[22:23]")
    A("s_cmp_lg_u32 s2, 0")
    A("s_cbranch_scc1 L_vend2")
    A("s_mov_b64 exec, 1")
    A("v_mov_b32 v8, s28")
    A(f"global_store_dword {VZ}, v8, s[26:27] sc1")
    A.label("L_vend2")
    A("s_mov_b64 exec, -1")
    stamp(12)
    A.label("L_vend")
    stamp_dump()
    A.label("L_end")
    A("s_endpgm")
    lines, nn = A.finish()
    hdr = open("cdna_kernels/" + NAME + ".s.ref").read().split("; Override launch geometry")[0]
    out = hdr
    out += f"; @launch grid=(256,1,1) block=(1024,1,1) lds={LDS_BYTES}\n"
    out += f""".amdgcn_target "amdgcn-amd-amdhsa--gfx950"
.text
.globl {NAME}_kernel
.p2align 8
.type {NAME}_kernel,@function
{NAME}_kernel:
"""
    out += "\n".join(("    " + l) if not l.endswith(":") else l for l in lines)
    out += f"""
.section .rodata,"a"
.p2align 6
.amdhsa_kernel {NAME}_kernel
  .amdhsa_next_free_vgpr 128
  .amdhsa_next_free_sgpr 102
  .amdhsa_accum_offset 128
  .amdhsa_group_segment_fixed_size 0
  .amdhsa_kernarg_size 96
  .amdhsa_user_sgpr_count 2
  .amdhsa_user_sgpr_kernarg_segment_ptr 1
  .amdhsa_system_sgpr_workgroup_id_x 1
.end_amdhsa_kernel
"""
    return out, nn

if __name__ == "__main__":
    o, nn = gen()
    open("k3.s", "w").write(o)
    print("nops inserted:", nn, "lines:", o.count("\n"))
    o, nn = gen(diag=True)
    open("k3d.s", "w").write(o)
    for (qa, fa) in ((4, 6), (6, 8), (8, 8), (4,4)):
        o, nn = gen(diag=True, QPOLL_AT=qa, FIRST_AT=fa)
        open(f"k3d_q{qa}f{fa}.s", "w").write(o)
```

```python
import sys
from asmlib import Asm
NAME = "parallel_sum__gqa_block_cached__glu_gated_bilinear__decode"

WS_EPOCH = 0
WS_CTR = 0x2000
WS_QS = 0x10000
WS_OS = 0x50000
WS_GS = 0xA0000
WS_FS = 0x100000
WS_STAMP = 0x800000
(C_XN, C_QP, C_KISS, C_GISS, C_Q, C_RO, C_RG, F_Z, F_H, C_F, C_FR, C_END, F_OP) = [4 * i for i in range(13)]
L_PSEQ = 64
L_PCON = 96
L_TIDX = 128
ZERO_BYTES = 512
L_XN = 512
L_Q = 2816
L_P = 3328
L_AL = 5376
L_ML = 5504
L_ZA = 5632
L_HA = 5696
L_DUMMY = 5824
L_FR = 6144
L_QP = 8192
L_RO = 16384
L_RG = 24576
LDS_BYTES = 32768
LOG2E = 0x3FB8AA3B
SCALE = 0x3DB504F3
NEGBIG = 0xFF000000
NT = " nt"
MAXT = 16
NDYN = 64
TEND = 0xFFFF

def gen(diag=False, mimic=True, ngu=216, exp=None, QPOLL_AT=8, FIRST_AT=8, VWAIT=True, WD_AT=4, FSP=4):
    A = Asm()
    uid = [0]
    def lab(p):
        uid[0] += 1; return f"L_{p}_{uid[0]}"
    VZ, VONE, VMASK = "v2", "v3", "v19"
    def stamp(i):
        if not diag: return
        assert i < 16
        A(f"s_memrealtime s[{70+2*i}:{71+2*i}]")
    def stamp_once(i):
        if not diag: return
        l = lab("so")
        A(f"s_cmp_lg_u32 s{70+2*i}, 0"); A(f"s_cbranch_scc1 {l}"); A(f"s_memrealtime s[{70+2*i}:{71+2*i}]"); A("s_waitcnt lgkmcnt(0)"); A.label(l)
    def stamp_idx(base, n):
        if not diag: return
        for k in range(n):
            l = lab("si")
            A(f"s_cmp_lg_u32 s43, {k}"); A(f"s_cbranch_scc1 {l}"); A(f"s_memrealtime s[{70+2*(base+k)}:{71+2*(base+k)}]"); A("s_waitcnt lgkmcnt(0)"); A.label(l)
    def stamp_dump():
        if not diag: return
        A("s_waitcnt lgkmcnt(0)")
        A("s_mov_b64 exec, 1")
        A(f"s_lshl_b32 s60, s2, 12"); A("s_lshl_b32 s61, s30, 8"); A("s_add_u32 s60, s60, s61")
        A(f"s_add_u32 s60, s60, {WS_STAMP}")
        A("v_mov_b32 v4, s60")
        for i in range(16):
            A(f"v_mov_b32 v6, s{70+2*i}"); A(f"v_mov_b32 v7, s{71+2*i}")
            A(f"global_store_dwordx2 v4, v[6:7], s[26:27] offset:{8*i}")
            A("s_nop 1")
        A("s_mov_b64 exec, -1")
    def signal(cnt, vaddr=None):
        A("s_waitcnt lgkmcnt(0)")
        A("s_mov_b64 exec, 1")
        A(f"ds_add_u32 {vaddr or VZ}, {VONE} offset:{cnt}")
        A("s_mov_b64 exec, -1")
    def arrive(cnt, sdst, vt="v4"):
        A("s_waitcnt lgkmcnt(0)")
        A("s_mov_b64 exec, 1")
        A(f"ds_add_rtn_u32 {vt}, {VZ}, {VONE} offset:{cnt}")
        A("s_mov_b64 exec, -1")
        A("s_waitcnt lgkmcnt(0)")
        A(f"v_readfirstlane_b32 {sdst}, {vt}")
    def spin(cnt, n, vt="v4", sleep=1, vaddr=None, sdst="s60", cmp="s_cmp_ge_u32"):
        l = lab("spin"); d = lab("spind")
        A.label(l)
        A(f"ds_read_b32 {vt}, {vaddr or VZ} offset:{cnt}")
        A("s_waitcnt lgkmcnt(0)")
        A(f"v_readfirstlane_b32 {sdst}, {vt}")
        A(f"{cmp} {sdst}, {n}")
        A(f"s_cbranch_scc1 {d}")
        A("s_sub_u32 s42, s42, 1")
        A(f"s_cbranch_scc1 {d}")
        if sleep: A(f"s_sleep {sleep}")
        A(f"s_branch {l}")
        A.label(d)
    def tagcheck(r, vt0, vt1, vt2):
        A(f"v_xor_b32 {vt0}, s32, v{r}")
        A(f"v_xor_b32 {vt1}, s33, v{r+1}")
        A(f"v_xor_b32 {vt2}, s34, v{r+2}")
        A(f"v_or3_b32 {vt0}, {vt0}, {vt1}, {vt2}")
        A(f"v_xor_b32 {vt1}, s35, v{r+3}")
        A(f"v_or_b32 {vt0}, {vt0}, {vt1}")
        A(f"v_and_b32 {vt0}, {VMASK}, {vt0}")
        A(f"v_cmp_ne_u32 vcc, 0, {vt0}")
    def tagbad(grans, t0, t1, t2):
        first = True
        for r in grans:
            A(f"v_xor_b32 {t1}, s32, v{r}"); A(f"v_xor_b32 {t2}, s33, v{r+1}")
            if first: A(f"v_or_b32 {t0}, {t1}, {t2}")
            else: A(f"v_or3_b32 {t0}, {t0}, {t1}, {t2}")
            A(f"v_xor_b32 {t1}, s34, v{r+2}"); A(f"v_xor_b32 {t2}, s35, v{r+3}")
            A(f"v_or3_b32 {t0}, {t0}, {t1}, {t2}")
            first = False
        A(f"v_and_b32 {t0}, {VMASK}, {t0}")
        A(f"v_cmp_ne_u32 vcc, 0, {t0}")
    def poll_pipe(loads, res, sets, mask_lo="-1", mask_hi="-1", temps=("v8", "v9", "v10")):
        nl = len(loads); NS = len(sets)
        def issue(k):
            for i, (va, sb, ex) in enumerate(loads):
                A(f"global_load_dwordx4 v[{sets[k]+4*i}:{sets[k]+4*i+3}], {va}, {sb}{ex} sc1")
        A(f"s_mov_b32 s62, {mask_lo}"); A(f"s_mov_b32 s63, {mask_hi}")
        A("s_mov_b64 exec, s[62:63]")
        for k in range(NS): issue(k)
        A("s_mov_b64 exec, -1")
        lp = lab("pp"); ld = lab("ppd")
        A.label(lp)
        for k in range(NS):
            A(f"s_waitcnt vmcnt({(NS-1)*nl})")
            tagbad([sets[k]+4*i for i in range(nl)], *temps)
            ls = lab("pps")
            A("s_andn2_b64 s[66:67], s[62:63], vcc")
            A(f"s_cbranch_scc0 {ls}")
            A("s_mov_b64 exec, s[66:67]")
            for i in range(nl):
                for j in range(4): A(f"v_mov_b32 v{res[i]+j}, v{sets[k]+4*i+j}")
            A("s_and_b64 s[62:63], s[62:63], vcc")
            A("s_mov_b64 exec, -1")
            A(f"s_cbranch_scc0 {ld}")
            A.label(ls)
            A("s_mov_b64 exec, s[62:63]")
            issue(k)
            A("s_mov_b64 exec, -1")
        A("s_sub_u32 s42, s42, 64")
        A(f"s_cbranch_scc0 {lp}")
        A.label(ld)
        A("s_mov_b64 exec, -1")
    def tagset(r):
        for i in range(4): A(f"v_bfi_b32 v{r+i}, {VMASK}, s{32+i}, v{r+i}")
    def untag(r, n=4):
        for i in range(n): A(f"v_and_b32 v{r+i}, 0xfffff000, v{r+i}")
    def tags_from_epoch():
        A("s_waitcnt lgkmcnt(0)")
        A("s_add_u32 s28, s28, 1")
        A("s_and_b32 s32, s28, 0xfff")
        A("s_bfe_u32 s33, s28, 0xc000c")
        A("s_lshr_b64 s[60:61], s[28:29], 24"); A("s_and_b32 s34, s60, 0xfff")
        A("s_lshr_b64 s[60:61], s[28:29], 36"); A("s_and_b32 s35, s60, 0xfff")
    def butterfly(kind, op, regs, tmp):
        for r, t in zip(regs, tmp): A(f"v_mov_b32 {t}, {r}")
        for r, t in zip(regs, tmp): A(f"v_permlane{kind}_swap_b32 {r}, {t}")
        for r, t in zip(regs, tmp): A(f"{op} {r}, {r}, {t}")
    def dpp(op, regs, ctrl):
        for r in regs: A(f"{op}_dpp {r}, {r}, {r} {ctrl} row_mask:0xf bank_mask:0xf")
    def base_add(dst, src, off):
        A(f"s_add_u32 s{dst}, s{src}, {off}")
        A(f"s_addc_u32 s{dst+1}, s{src+1}, 0")
    def perms(f, setreg, L, npairs):
        c = f >> 1; sel = "s37" if f & 1 else "s36"
        for i in range(npairs):
            A(f"v_perm_b32 v{setreg+i}, v{L[2*i+1]+c}, v{L[2*i]+c}, {sel}")
    def lds_write1(vaddr, vdata, off):
        A("s_mov_b64 exec, 1")
        A(f"ds_write_b32 {vaddr}, {vdata} offset:{off}")
        A("s_mov_b64 exec, -1")
    def tile_loads(buf, voff, base_src, s_tile):
        A(f"s_lshl_b32 s60, {s_tile}, 13"); A("s_add_u32 s60, s60, s3")
        base_add(44, base_src, "s60")
        for i in range(8):
            if i == 4: base_add(44, 44, 4096)
            A(f"global_load_dwordx4 v[{buf+4*i}:{buf+3+4*i}], {voff}, s[44:45] offset:{(i%4)*1024}{NT}")

    def ticket_req():
        A("s_mov_b32 s66, 1"); A("s_mov_b32 s67, 0")
        A("s_atomic_add_x2 s[66:67], s[50:51], 0 glc")
    def ticket_fin(sdst):
        lr = lab("tk"); lo = lab("tko"); le = lab("tke"); lx = lab("tkx")
        A(f"s_cmp_ge_u32 s49, {MAXT}"); A(f"s_cbranch_scc1 {le}")
        A.label(lr)
        A("s_waitcnt lgkmcnt(0)")
        A("s_lshr_b32 s68, s66, 16"); A("s_cmp_eq_u32 s67, s28"); A("s_cselect_b32 s69, 1, 0")
        A("s_and_b32 s61, s29, 0xffff"); A("s_cmp_eq_u32 s68, s61"); A("s_cselect_b32 s68, s69, 0")
        A("s_cmp_lg_u32 s68, 0"); A(f"s_cbranch_scc1 {lo}")
        A("s_sub_u32 s42, s42, 4096"); A(f"s_cbranch_scc1 {le}")
        ticket_req()
        A(f"s_branch {lr}")
        A.label(lo)
        A("s_and_b32 s66, s66, 0xffff")
        A(f"s_cmp_ge_u32 s66, {NDYN}"); A(f"s_cbranch_scc1 {le}")
        A(f"s_add_u32 {sdst}, s66, 64")
        A(f"s_branch {lx}")
        A.label(le)
        A(f"s_mov_b32 {sdst}, {TEND}")
        A.label(lx)
        A("s_add_u32 s49, s49, 1")
        A(f"v_mov_b32 v12, {sdst}")
        lds_write1("v18", "v12", L_TIDX)
        A("v_add_u32 v18, 4, v18")
    def ticket_req_if():
        l = lab("tq")
        A(f"s_cmp_ge_u32 s49, {MAXT}"); A(f"s_cbranch_scc1 {l}")
        ticket_req()
        A.label(l)
    A("s_cmp_ge_u32 s2, 256")
    A("s_cbranch_scc1 L_end")
    A("s_load_dwordx16 s[4:19], s[0:1], 0")
    A("s_load_dwordx8 s[20:27], s[0:1], 64")
    if diag:
        A("s_memrealtime s[70:71]")
        for i in range(72, 102): A(f"s_mov_b32 s{i}, 0")
        A("s_getreg_b32 s100, hwreg(HW_REG_XCC_ID)")
    A("v_lshrrev_b32 v4, 6, v0")
    A("v_and_b32 v1, 63, v0")
    A("v_readfirstlane_b32 s30, v4")
    A("s_lshr_b32 s40, s2, 7")
    A("s_bfe_u32 s38, s2, 0x40003")
    A("s_and_b32 s41, s2, 7")
    A("s_lshl_b32 s39, s40, 3")
    A("s_or_b32 s39, s39, s41")
    A("s_lshr_b32 s3, s2, 3"); A("s_lshl_b32 s3, s3, 20")
    A("s_mov_b32 s36, 0x05040100")
    A("s_mov_b32 s37, 0x07060302")
    A("s_mov_b32 s42, 0x200000")
    A(f"v_mov_b32 {VZ}, 0")
    A(f"v_mov_b32 {VONE}, 1")
    A(f"v_mov_b32 {VMASK}, 0xfff")
    A("s_and_b32 s31, s30, 7")
    A("v_and_b32 v16, 15, v1")
    A("v_lshrrev_b32 v17, 4, v1")
    A("s_cmp_ge_u32 s30, 8")
    A("s_cbranch_scc1 L_vwave")

    A("v_bfe_u32 v4, v1, 2, 2")
    A("v_lshlrev_b32 v5, 8, v4")
    A("v_lshl_or_b32 v5, v17, 6, v5")
    A("v_and_b32 v4, 3, v1")
    A("v_lshl_or_b32 v5, v4, 4, v5")
    A("s_lshl_b32 s64, s41, 3"); A("s_lshl_b32 s61, s31, 1"); A("s_add_u32 s64, s64, s61")
    A("s_waitcnt lgkmcnt(0)")
    A("s_load_dwordx2 s[28:29], s[26:27], 0")
    A("s_barrier")
    A("s_cmp_ge_u32 s31, 4")
    A("s_cbranch_scc1 L_kdyn0")
    A("s_setprio 2")
    tile_loads(64, "v5", 6, "s64")
    A("s_add_u32 s64, s64, 1")
    tile_loads(96, "v5", 6, "s64")
    signal(C_KISS)
    A("s_setprio 2")
    tags_from_epoch()
    A("v_lshrrev_b32 v6, 3, v1"); A("v_lshlrev_b32 v6, 10, v6")
    A("v_and_b32 v7, 7, v1"); A("v_lshl_or_b32 v6, v7, 4, v6")
    A("s_lshl_b32 s62, s31, 8"); A("v_add_u32 v6, s62, v6")
    A("s_lshl_b32 s60, s38, 1"); A("s_add_u32 s60, s60, s40"); A("s_lshl_b32 s60, s60, 13")
    A(f"s_add_u32 s60, s60, {WS_QS}")
    base_add(46, 26, "s60")
    spin(C_GISS, QPOLL_AT, vt="v8")
    stamp(1)
    A("s_setprio 3")
    lp = lab("qpoll"); ld = lab("qdone")
    A.label(lp)
    A("global_load_dwordx4 v[20:23], v6, s[46:47] sc1")
    A("global_load_dwordx4 v[24:27], v6, s[46:47] offset:128 sc1")
    A("s_waitcnt vmcnt(0)")
    tagcheck(20, "v8", "v9", "v10")
    A("s_mov_b64 s[62:63], vcc")
    tagcheck(24, "v8", "v9", "v10")
    A("s_or_b64 vcc, vcc, s[62:63]")
    A(f"s_cbranch_vccz {ld}")
    A("s_sub_u32 s42, s42, 64")
    A(f"s_cbranch_scc0 {lp}")
    A.label(ld)
    untag(20, 8)
    q = [f"v{20+i}" for i in range(8)]
    tq = [f"v{32+i}" for i in range(8)]
    dpp("v_add_f32", q, "row_ror:8")
    butterfly(16, "v_add_f32", q, tq)
    butterfly(32, "v_add_f32", q, tq)
    for p in range(4): A(f"v_cvt_pk_bf16_f32 v{8+p}, v{20+2*p}, v{21+2*p}")
    A("v_lshlrev_b32 v12, 3, v7")
    A("s_lshl_b32 s60, s31, 7"); A("v_add_u32 v12, s60, v12")
    A("s_mov_b64 exec, 0xff")
    A(f"ds_write_b64 v12, v[8:9] offset:{L_Q}")
    A(f"ds_write_b64 v12, v[10:11] offset:{L_Q+64}")
    A("s_mov_b64 exec, -1")
    signal(C_Q)
    A("s_setprio 2")
    A("s_branch L_kq")
    A.label("L_kdyn0")
    tags_from_epoch()
    A("s_lshr_b32 s60, s2, 3"); A("s_lshl_b32 s60, s60, 8"); A(f"s_add_u32 s60, s60, {WS_CTR}")
    base_add(50, 26, "s60")
    A("s_sub_u32 s60, s31, 4"); A("s_mul_i32 s60, s60, 72"); A("v_mov_b32 v18, s60")
    A("s_mov_b32 s49, 0")
    spin(C_GISS, FIRST_AT, vt="v8")
    stamp(1)
    A("s_setprio 2")
    ticket_req()
    ticket_fin("s64")
    stamp(3)
    A("s_setprio 1")
    lnt = lab("qnt")
    A(f"s_cmp_eq_u32 s64, {TEND}"); A(f"s_cbranch_scc1 {lnt}")
    tile_loads(64, "v5", 6, "s64")
    A.label(lnt)
    A("s_setprio 2")
    A.label("L_kq")
    for (r, val) in ((52, 0x22222222), (54, 0x44444444), (56, 0x88888888)):
        A(f"s_mov_b32 s{r}, {val:#x}"); A(f"s_mov_b32 s{r+1}, {val:#x}")
    A("s_mov_b32 s58, 0x00ff00ff"); A("s_mov_b32 s59, 0x00ff00ff")
    A("v_bfe_u32 v8, v16, 2, 1"); A("v_lshlrev_b32 v8, 8, v8"); A("v_lshl_or_b32 v8, v17, 6, v8")
    A("v_and_b32 v9, 3, v16"); A("v_lshl_or_b32 v8, v9, 4, v8")
    A(f"v_mov_b32 v20, {NEGBIG:#x}")
    A("v_mov_b32 v21, 0")
    A("s_lshl_b32 s60, s31, 2"); A("v_mov_b32 v22, s60")
    A("v_lshrrev_b32 v23, 2, v1"); A("v_lshlrev_b32 v23, 4, v23"); A("s_lshl_b32 s60, s31, 8"); A("v_add_u32 v23, s60, v23")
    A("s_mov_b32 s43, 0")
    spin(C_Q, 4, vt="v10", sleep=0)
    A(f"ds_read_b128 v[12:15], v8 offset:{L_Q}")
    A("s_waitcnt lgkmcnt(0)")
    for i in range(4): A(f"v_cndmask_b32 v{24+i}, 0, v{12+i}, s[58:59]")
    for i in range(4): A(f"v_cndmask_b32 v{28+i}, v{12+i}, 0, s[58:59]")
    stamp(2)
    A("s_mov_b32 s65, 1")
    A("s_cmp_ge_u32 s31, 4")
    A("s_cbranch_scc0 L_kstatic")
    A(f"s_cmp_eq_u32 s64, {TEND}")
    A("s_cbranch_scc1 L_kfin_dyn")
    def qk(buf):
        S = ["v8", "v9", "v10", "v11"]
        for t in range(4):
            A(f"v_mfma_f32_16x16x32_bf16 v[{32+4*t}:{35+4*t}], v[24:27], v[{buf+8*t}:{buf+3+8*t}], 0")
        for t in range(4):
            A(f"v_mfma_f32_16x16x32_bf16 v[{32+4*t}:{35+4*t}], v[28:31], v[{buf+4+8*t}:{buf+7+8*t}], v[{32+4*t}:{35+4*t}]")
        for t in range(4): A(f"v_cndmask_b32 {S[t]}, v{32+4*t}, v{33+4*t}, s[52:53]")
        for t in range(4): A(f"v_cndmask_b32 {S[t]}, {S[t]}, v{34+4*t}, s[54:55]")
        for t in range(4): A(f"v_cndmask_b32 {S[t]}, {S[t]}, v{35+4*t}, s[56:57]")
        dpp("v_add_f32", S, "quad_perm:[1,0,3,2]")
        dpp("v_add_f32", S, "quad_perm:[2,3,0,1]")
        A(f"s_mov_b32 s60, {SCALE:#x}")
        if mimic:
            for p in range(2): A(f"v_cvt_pk_bf16_f32 v{48+p}, {S[2*p]}, {S[2*p+1]}")
            for p in range(2):
                A(f"v_lshlrev_b32 {S[2*p]}, 16, v{48+p}"); A(f"v_and_b32 {S[2*p+1]}, 0xffff0000, v{48+p}")
            for t in range(4): A(f"v_mul_f32 {S[t]}, s60, {S[t]}")
            for p in range(2): A(f"v_cvt_pk_bf16_f32 v{48+p}, {S[2*p]}, {S[2*p+1]}")
            for p in range(2):
                A(f"v_lshlrev_b32 {S[2*p]}, 16, v{48+p}"); A(f"v_and_b32 {S[2*p+1]}, 0xffff0000, v{48+p}")
        else:
            for t in range(4): A(f"v_mul_f32 {S[t]}, s60, {S[t]}")
        A(f"v_max3_f32 v48, {S[0]}, {S[1]}, {S[2]}")
        A(f"v_max3_f32 v48, v48, {S[3]}, v20")
        dpp("v_max_f32", ["v48"], "row_ror:4")
        dpp("v_max_f32", ["v48"], "row_ror:8")
        butterfly(32, "v_max_f32", ["v48"], ["v49"])
        A(f"s_mov_b32 s60, {LOG2E:#x}")
        A("v_sub_f32 v50, v20, v48"); A("v_mul_f32 v50, s60, v50")
        A("v_mul_f32 v49, s60, v48")
        for t in range(4): A(f"v_fma_f32 {S[t]}, {S[t]}, s60, -v49")
        A("v_exp_f32 v50, v50")
        for t in range(4): A(f"v_exp_f32 {S[t]}, {S[t]}")
        A("v_mov_b32 v20, v48")
        A(f"v_add_f32 v51, {S[0]}, {S[1]}"); A(f"v_add_f32 v52, {S[2]}, {S[3]}"); A("v_add_f32 v51, v51, v52")
        dpp("v_add_f32", ["v51"], "row_ror:4")
        dpp("v_add_f32", ["v51"], "row_ror:8")
        butterfly(32, "v_add_f32", ["v51"], ["v52"])
        A("v_fma_f32 v21, v21, v50, v51")
        for t in range(4): A(f"v_mov_b32 v{52+t}, {S[t]}")
        for t in range(4): A(f"v_permlane32_swap_b32 {S[t]}, v{52+t}")
        for t in range(4): A(f"v_cvt_pk_bf16_f32 v{56+t}, {S[t]}, v{52+t}")
    A.label("L_kstatic")
    A.label("L_kloop")
    lst = lab("kst"); lgo = lab("kgo")
    A("s_cmp_ge_u32 s31, 4"); A(f"s_cbranch_scc0 {lst}")
    A("s_waitcnt vmcnt(0)")
    stamp_once(4)
    stamp_idx(7, 3)
    A(f"s_branch {lgo}")
    A.label(lst)
    lw1 = lab("kw1")
    A("s_cmp_lg_u32 s43, 0"); A(f"s_cbranch_scc1 {lw1}")
    A("s_waitcnt vmcnt(8)"); stamp_once(4); A(f"s_branch {lgo}")
    A.label(lw1)
    A("s_waitcnt vmcnt(0)"); A("s_mov_b32 s65, 0")
    A.label(lgo)
    lnw = lab("knw")
    A("s_cmp_lt_u32 s43, 2"); A(f"s_cbranch_scc1 {lnw}")
    A("s_sub_u32 s61, s43, 1")
    spin(L_PCON, "s61", vt="v12", sleep=0, vaddr="v22")
    A.label(lnw)
    lq1 = lab("kq1"); lq2 = lab("kq2")
    A("s_cmp_ge_u32 s31, 4"); A(f"s_cbranch_scc0 {lq1}")
    ticket_req_if()
    qk(64); A(f"s_branch {lq2}")
    A.label(lq1)
    lq3 = lab("kq3")
    A("s_bitcmp1_b32 s43, 0"); A(f"s_cbranch_scc1 {lq3}")
    qk(64); A(f"s_branch {lq2}")
    A.label(lq3)
    qk(96)
    A.label(lq2)
    A("s_and_b32 s60, s43, 1"); A("s_lshl_b32 s61, s60, 7"); A("v_add_u32 v12, s61, v23")
    A("s_mov_b32 exec_lo, 0x11111111"); A("s_mov_b32 exec_hi, 0")
    A(f"ds_write_b128 v12, v[56:59] offset:{L_P}")
    A("s_mov_b64 exec, 0x10001")
    A("v_lshrrev_b32 v13, 2, v1")
    A("s_lshl_b32 s61, s31, 4"); A("s_lshl_b32 s60, s60, 3"); A("s_add_u32 s60, s60, s61"); A("v_add_u32 v14, s60, v13")
    A(f"ds_write_b32 v14, v50 offset:{L_AL}")
    A("v_lshlrev_b32 v13, 1, v13"); A("v_add_u32 v13, s61, v13")
    A(f"ds_write_b64 v13, v[20:21] offset:{L_ML}")
    A("s_mov_b64 exec, -1")
    signal(L_PSEQ, vaddr="v22")
    stamp_once(5)
    A("s_add_u32 s43, s43, 1")
    lsx = lab("ksx")
    A("s_cmp_ge_u32 s31, 4"); A(f"s_cbranch_scc0 {lsx}")
    if diag:
        A("s_sub_u32 s43, s43, 1"); stamp_idx(10, 3); A("s_add_u32 s43, s43, 1")
    ticket_fin("s64")
    A(f"s_cmp_eq_u32 s64, {TEND}"); A("s_cbranch_scc1 L_kfin_dyn")
    A("s_setprio 1")
    tile_loads(64, "v5", 6, "s64")
    A("s_setprio 2")
    A("s_branch L_kloop")
    A.label(lsx)
    A("s_cmp_lg_u32 s65, 0")
    A("s_cbranch_scc1 L_kloop")
    A("s_branch L_ktail")
    A.label("L_kfin_dyn")
    signal(C_END)
    stamp(6)
    if diag: A("s_mov_b32 s98, s43")
    A("s_branch L_kend")
    def wd_loads(sT):
        for j in range(4):
            A(f"global_load_dwordx4 v[{88+4*j}:{91+4*j}], v13, s[48:49] offset:{1152*j}{NT}")
        for j in range(4):
            A(f"global_load_dwordx4 v[{104+4*j}:{107+4*j}], v14, s[50:51]{NT}")
            A("v_add_u32 v14, 4608, v14")
        A("s_mov_b32 exec_hi, 0")
        A("global_load_dwordx4 v[120:123], v14, s[50:51]" + NT)
        A("s_mov_b64 exec, -1")
    def wd_setup(sT):
        A("v_lshlrev_b32 v12, 4, v16"); A(f"s_lshl_b32 s66, {sT}, 8"); A("v_add_u32 v12, s66, v12")
        A("v_mul_u32_u24 v13, 4608, v17"); A("v_add_u32 v13, v13, v12")
        A("v_mul_u32_u24 v14, 1152, v17"); A("v_add_u32 v14, v14, v12")
        A("s_lshl_b32 s66, s38, 8"); A("s_lshl_b32 s67, s39, 4"); A("s_add_u32 s66, s66, s67"); A("s_mul_i32 s66, s66, 1152")
        base_add(48, 12, "s66")
        A("s_mul_i32 s66, s2, 20736")
        base_add(50, 20, "s66")
        for i in range(4): A(f"v_mov_b32 v{120+i}, 0")
    def wd_compute(sT, half):
        A("s_waitcnt vmcnt(0)")
        stamp(7)
        Lw = [88 + 4*j for j in range(4)]; Ld = [104 + 4*j for j in range(4)]
        for f in range(8):
            c = f >> 1; sel = "s37" if f & 1 else "s36"
            for i in range(2): A(f"v_perm_b32 v{32+2*f+i}, v{Lw[2*i+1]+c}, v{Lw[2*i]+c}, {sel}")
        for f in range(8):
            c = f >> 1; sel = "s37" if f & 1 else "s36"
            for i in range(2): A(f"v_perm_b32 v{48+4*f+i}, v{Ld[2*i+1]+c}, v{Ld[2*i]+c}, {sel}")
            if f & 1: A(f"v_lshrrev_b32 v{48+4*f+2}, 16, v{120+c}")
            else: A(f"v_and_b32 v{48+4*f+2}, 0xffff, v{120+c}")
            A(f"v_mov_b32 v{48+4*f+3}, 0")
        A("v_and_b32 v4, 1, v1"); A("v_lshlrev_b32 v4, 2, v4"); A("v_add_u32 v4, v4, v17")
        A("v_lshlrev_b32 v5, 3, v4"); A("v_lshlrev_b32 v6, 4, v4")
        sh = {2: 1, 4: 2, 8: 3}[FSP]
        per_row = 16 // FSP
        A(f"v_lshrrev_b32 v7, {sh}, v16")
        if half: A(f"v_lshl_add_u32 v7, v17, {3-sh}, v7"); A(f"v_add_u32 v7, {16*per_row}, v7")
        else:
            A(f"v_lshl_add_u32 v7, v17, {4-sh}, v7"); A(f"s_mul_i32 s60, {sT}, {4*per_row}"); A("v_add_u32 v7, s60, v7")
        A(f"v_lshlrev_b32 v7, {12+sh}, v7")
        A(f"v_and_b32 v8, {FSP-1}, v16"); A("v_lshl_add_u32 v7, v8, 4, v7")
        A(f"s_lshl_b32 s60, s2, {4+sh}"); A(f"s_add_u32 s60, s60, {WS_FS}")
        base_add(44, 26, "s60")
        spin(F_H, 1, vt="v15", sleep=0)
        A(f"ds_read_b128 v[12:15], v6 offset:{L_HA}")
        A("s_waitcnt lgkmcnt(0)")
        for f in range(8):
            A(f"v_mfma_f32_16x16x32_bf16 v[{80+4*f}:{83+4*f}], v[12:15], v[{48+4*f}:{51+4*f}], 0")
        spin(F_Z, 1, vt="v10", sleep=0)
        stamp(8)
        A(f"ds_read_b64 v[8:9], v5 offset:{L_ZA}")
        A("s_waitcnt lgkmcnt(0)")
        for f in range(8):
            A(f"v_mfma_f32_16x16x16_bf16 v[{80+4*f}:{83+4*f}], v[8:9], v[{32+2*f}:{33+2*f}], v[{80+4*f}:{83+4*f}]")
        A("s_mov_b32 s60, 0xffff0000"); A("s_mov_b32 s61, 0xffff0000")
        A("s_mov_b32 s62, 0"); A("s_mov_b32 s63, -1")
        for i in range(4): A(f"v_cndmask_b32 v{32+i}, v{80+4*i}, v{81+4*i}, s[60:61]")
        for i in range(4): A(f"v_cndmask_b32 v{36+i}, v{96+4*i}, v{97+4*i}, s[60:61]")
        for i in range(4): A(f"v_cndmask_b32 v{32+i}, v{32+i}, v{36+i}, s[62:63]")
        tagset(32)
        if half: A("s_mov_b32 exec_lo, 0x00ff00ff"); A("s_mov_b32 exec_hi, 0x00ff00ff")
        A("global_store_dwordx4 v7, v[32:35], s[44:45] sc1")
        if half: A("s_mov_b64 exec, -1")
        signal(C_F)
        stamp(9)
    A.label("L_ktail")
    wd_setup("s31")
    if WD_AT == 9: spin(F_OP, 1, vt="v15")
    elif WD_AT == 8: spin(C_RO, 8, vt="v15")
    elif WD_AT: spin(C_END, WD_AT, vt="v15")
    A("s_setprio 0")
    wd_loads("s31")
    A("s_setprio 2")
    stamp(6)
    wd_compute("s31", False)
    A.label("L_kend")
    stamp_dump()
    A("s_endpgm")

    A.label("L_vwave")
    A("s_setprio 3")
    A("s_cmp_ge_u32 s31, 6")
    A("s_cbranch_scc1 L_v67")
    A("s_lshr_b32 s60, s39, 1"); A("s_mul_i32 s60, s60, 72"); A("s_mul_i32 s61, s31, 12"); A("s_add_u32 s64, s60, s61")
    A("s_lshl_b32 s60, s64, 13"); A("s_lshl_b32 s61, s38, 9"); A("s_add_u32 s60, s60, s61")
    A("s_and_b32 s61, s39, 1"); A("s_lshl_b32 s61, s61, 8"); A("s_add_u32 s60, s60, s61")
    A("v_lshlrev_b32 v4, 13, v17"); A("v_lshl_add_u32 v4, v16, 4, v4")
    A("s_waitcnt lgkmcnt(0)")
    A("s_load_dwordx2 s[28:29], s[26:27], 0")
    base_add(44, 10, "s60")
    for j in range(3):
        A(f"global_load_dwordx4 v[{64+4*j}:{67+4*j}], v4, s[44:45]{NT}")
        if j < 2: base_add(44, 44, 32768)
    A("s_barrier")
    A("v_and_b32 v4, 1, v1"); A("v_mul_u32_u24 v4, 1152, v4")
    A("v_lshl_add_u32 v4, v17, 1, v4")
    A("s_lshl_b32 s60, s64, 1"); A("v_add_u32 v4, s60, v4")
    tags_from_epoch()
    spin(C_XN, 2, vt="v5", sleep=0)
    A(f"ds_read_u16 v8, v4 offset:{L_XN}")
    A(f"ds_read_u16 v10, v4 offset:{L_XN+8}")
    A(f"ds_read_u16 v9, v4 offset:{L_XN+16}")
    A("s_waitcnt lgkmcnt(0)")
    A("v_lshl_or_b32 v8, v10, 16, v8")
    A("s_waitcnt vmcnt(0)")
    stamp(1)
    sets = [10, 12]
    def qfrag(f):
        c = f >> 1; s = sets[f & 1]; sel = "s37" if f & 1 else "s36"
        A(f"v_perm_b32 v{s}, v{68+c}, v{64+c}, {sel}")
        if f & 1: A(f"v_lshrrev_b32 v{s+1}, 16, v{72+c}")
        else: A(f"v_and_b32 v{s+1}, 0xffff, v{72+c}")
    qfrag(0)
    for f in range(8):
        if f + 1 < 8: qfrag(f + 1)
        s = sets[f & 1]
        A(f"v_mfma_f32_16x16x16_bf16 v[{32+4*f}:{35+4*f}], v[8:9], v[{s}:{s+1}], 0")
    for b in range(2):
        for f in range(8): A(f"v_mov_b32 v{64+8*b+f}, v{32+4*f+b}")
    A("v_lshlrev_b32 v4, 5, v16")
    A("s_lshl_b32 s60, s31, 10"); A("v_add_u32 v4, s60, v4")
    A("s_mov_b64 exec, 0xffff")
    for b in range(2):
        A(f"ds_write_b128 v4, v[{64+8*b}:{67+8*b}] offset:{L_QP+512*b}")
        A(f"ds_write_b128 v4, v[{68+8*b}:{71+8*b}] offset:{L_QP+512*b+16}")
    A("s_mov_b64 exec, -1")
    arrive(C_QP, "s60")
    A("s_cmp_lg_u32 s60, 5")
    A("s_cbranch_scc1 L_vgu0")
    A("v_lshlrev_b32 v4, 4, v1")
    for w in range(6): A(f"ds_read_b128 v[{64+4*w}:{67+4*w}], v4 offset:{L_QP+1024*w}")
    A("v_lshrrev_b32 v5, 5, v1"); A("v_lshlrev_b32 v5, 13, v5")
    A("v_and_b32 v6, 31, v1"); A("v_lshl_add_u32 v5, v6, 4, v5")
    A("s_lshl_b32 s60, s38, 14"); A("s_lshr_b32 s61, s39, 1"); A("s_lshl_b32 s61, s61, 10"); A("s_add_u32 s60, s60, s61")
    A("s_and_b32 s61, s39, 1"); A("s_lshl_b32 s61, s61, 9"); A("s_add_u32 s60, s60, s61")
    A(f"s_add_u32 s60, s60, {WS_QS}")
    base_add(44, 26, "s60")
    A("s_waitcnt lgkmcnt(0)")
    for w in range(1, 6):
        for i in range(4): A(f"v_add_f32 v{64+i}, v{64+i}, v{64+4*w+i}")
    tagset(64)
    A("global_store_dwordx4 v5, v[64:67], s[44:45] sc1")
    stamp(2)
    A("s_branch L_vgu0")
    A.label("L_v67")
    A("s_sub_u32 s64, s31, 6"); A("s_mul_i32 s64, s64, 1152")
    A("v_lshlrev_b32 v4, 2, v1"); A("v_add_u32 v5, s64, v4")
    for i in range(10): A(f"v_mov_b32 v{64+i}, 0")
    A("s_waitcnt lgkmcnt(0)")
    A("s_load_dwordx2 s[28:29], s[26:27], 0")
    for t in range(4): A(f"global_load_dword v{64+t}, v5, s[4:5] offset:{256*t}")
    A("s_mov_b32 exec_hi, 0")
    A("global_load_dword v68, v5, s[4:5] offset:1024")
    A("s_mov_b64 exec, -1")
    lz = lab("noz")
    A("s_cmp_lg_u32 s31, 6"); A(f"s_cbranch_scc1 {lz}")
    A(f"ds_write_b32 v4, {VZ}"); A(f"ds_write_b32 v4, {VZ} offset:256")
    A(f"ds_write_b32 v4, {VZ} offset:{L_HA}")
    A(f"v_mov_b32 v8, {NEGBIG:#x}"); A("v_mov_b32 v9, 0"); A("v_lshlrev_b32 v10, 3, v1")
    A("s_mov_b64 exec, 0xffff")
    A(f"ds_write_b64 v10, v[8:9] offset:{L_ML}")
    A("s_mov_b64 exec, -1")
    A("s_waitcnt lgkmcnt(0)")
    A.label(lz)
    A("s_barrier")
    tags_from_epoch()
    lz = lab("noc")
    A("s_cmp_lg_u32 s31, 6"); A(f"s_cbranch_scc1 {lz}")
    A("s_cmp_lg_u32 s41, 0"); A(f"s_cbranch_scc1 {lz}")
    A("s_lshl_b32 s60, s29, 16"); A("v_mov_b32 v8, s60"); A("v_mov_b32 v9, s28")
    A("s_lshr_b32 s60, s2, 3"); A("s_lshl_b32 s60, s60, 8"); A(f"s_add_u32 s60, s60, {WS_CTR}"); A("v_mov_b32 v10, s60")
    A("s_mov_b64 exec, 1")
    A("global_store_dwordx2 v10, v[8:9], s[26:27] sc1")
    A("s_mov_b64 exec, -1")
    A.label(lz)
    A("s_waitcnt vmcnt(1)")
    lx = lab("xw")
    A("s_cmp_lg_u32 s31, 6"); A("s_cselect_b32 s60, 1, 0"); A("s_cmp_lg_u32 s41, 0"); A("s_cselect_b32 s60, 1, s60")
    A("s_cmp_eq_u32 s60, 0"); A(f"s_cbranch_scc1 {lx}")
    A("s_waitcnt vmcnt(0)")
    A.label(lx)
    stamp(1)
    X = [f"v{80+i}" for i in range(10)]
    for t in range(5):
        A(f"v_lshlrev_b32 {X[2*t]}, 16, v{64+t}")
        A(f"v_and_b32 {X[2*t+1]}, 0xffff0000, v{64+t}")
    def red64(dst):
        dpp("v_add_f32", [dst], "quad_perm:[1,0,3,2]")
        dpp("v_add_f32", [dst], "quad_perm:[2,3,0,1]")
        dpp("v_add_f32", [dst], "row_ror:4")
        dpp("v_add_f32", [dst], "row_ror:8")
        butterfly(16, "v_add_f32", [dst], ["v33"])
        butterfly(32, "v_add_f32", [dst], ["v33"])
    for i in range(5): A(f"v_add_f32 v{34+i}, {X[2*i]}, {X[2*i+1]}")
    A("v_add_f32 v34, v34, v35"); A("v_add_f32 v36, v36, v37"); A("v_add_f32 v34, v34, v38"); A("v_add_f32 v8, v34, v36")
    red64("v8")
    A("s_mov_b32 s60, 0x3ae38e39")
    A("v_mul_f32 v8, s60, v8")
    D = [f"v{100+i}" for i in range(10)]
    for i in range(8): A(f"v_sub_f32 {D[i]}, {X[i]}, v8")
    A(f"v_mov_b32 {D[8]}, 0"); A(f"v_mov_b32 {D[9]}, 0")
    A("s_mov_b32 exec_hi, 0")
    for i in (8, 9): A(f"v_sub_f32 {D[i]}, {X[i]}, v8")
    A("s_mov_b64 exec, -1")
    for i in range(5): A(f"v_mul_f32 v{34+i}, {D[2*i]}, {D[2*i]}")
    for i in range(5): A(f"v_fmac_f32 v{34+i}, {D[2*i+1]}, {D[2*i+1]}")
    A("v_add_f32 v34, v34, v35"); A("v_add_f32 v36, v36, v37"); A("v_add_f32 v34, v34, v38"); A("v_add_f32 v9, v34, v36")
    red64("v9")
    A("v_mul_f32 v9, s60, v9")
    def bf16r(r):
        A(f"v_cvt_pk_bf16_f32 {r}, {r}, {r}"); A(f"v_and_b32 {r}, 0xffff0000, {r}")
    bf16r("v8"); bf16r("v9")
    A("v_add_f32 v9, 0x3727c5ac, v9")
    bf16r("v9")
    A("v_sqrt_f32 v9, v9")
    bf16r("v9")
    A("v_rcp_f32 v10, v9")
    A("v_fma_f32 v11, -v9, v10, 1.0")
    A("v_fma_f32 v10, v10, v11, v10")
    for i in range(10): A(f"v_sub_f32 {D[i]}, {X[i]}, v8")
    for t in range(5): A(f"v_cvt_pk_bf16_f32 v{34+t}, {D[2*t]}, {D[2*t+1]}")
    for t in range(5):
        A(f"v_lshlrev_b32 {D[2*t]}, 16, v{34+t}"); A(f"v_and_b32 {D[2*t+1]}, 0xffff0000, v{34+t}")
    for i in range(10): A(f"v_mul_f32 {D[i]}, {D[i]}, v10")
    for t in range(5): A(f"v_cvt_pk_bf16_f32 v{34+t}, {D[2*t]}, {D[2*t+1]}")
    for t in range(4): A(f"ds_write_b32 v5, v{34+t} offset:{L_XN+256*t}")
    A("s_mov_b32 exec_hi, 0")
    A(f"ds_write_b32 v5, v38 offset:{L_XN+1024}")
    A("s_mov_b64 exec, -1")
    signal(C_XN)
    stamp(2)
    A.label("L_vgu0")
    A("s_mul_i32 s62, s2, 911"); A("s_lshr_b32 s62, s62, 16")
    A("s_mul_i32 s63, s62, 72"); A("s_sub_u32 s63, s2, s63")
    A("s_mul_i32 s64, s62, 192"); A("s_mul_i32 s65, s31, 24"); A("s_add_u32 s64, s64, s65")
    A("s_mul_i32 s65, s64, 9216"); A("s_lshl_b32 s66, s63, 7"); A("s_add_u32 s65, s65, s66")
    A("v_mul_u32_u24 v4, 55296, v17"); A("v_and_b32 v5, 7, v16"); A("v_lshl_add_u32 v4, v5, 4, v4"); A("v_add_u32 v4, s65, v4")
    A("s_mov_b32 s58, 0x00ff00ff"); A("s_mov_b32 s59, 0x00ff00ff")
    A("v_mov_b32 v8, s16"); A("v_mov_b32 v9, s17"); A("v_mov_b32 v10, s18"); A("v_mov_b32 v11, s19")
    A("v_cndmask_b32 v8, v10, v8, s[58:59]"); A("v_cndmask_b32 v9, v11, v9, s[58:59]")
    A("v_add_co_u32 v8, vcc, v8, v4"); A("v_addc_co_u32 v9, vcc, 0, v9, vcc")
    A("s_mov_b32 s46, 9216"); A("s_mov_b32 s47, 0")
    A("v_lshlrev_b32 v5, 4, v1")
    A("s_lshl_b32 s67, s41, 3"); A("s_lshl_b32 s61, s31, 1"); A("s_add_u32 s67, s67, s61")
    spin(C_KISS, 4, vt="v12", sleep=0)
    A("s_setprio 2")
    lng = lab("nogu")
    A(f"s_cmp_ge_u32 s2, {ngu}"); A(f"s_cbranch_scc1 {lng}")
    for j in range(6):
        A(f"global_load_dwordx4 v[{96+4*j}:{99+4*j}], v[8:9], off{NT}")
        if j < 5: A("v_lshl_add_u64 v[8:9], v[8:9], 0, s[46:47]")
    A.label(lng)
    signal(C_GISS)
    lns = lab("nost")
    A("s_cmp_ge_u32 s31, 4"); A(f"s_cbranch_scc1 {lns}")
    if VWAIT: spin(C_GISS, 8, vt="v12", sleep=0)
    tile_loads(64, "v5", 8, "s67")
    A.label(lns)
    A("s_setprio 3")
    stamp(3)
    lgd = lab("gud")
    A(f"s_cmp_ge_u32 s2, {ngu}"); A(f"s_cbranch_scc1 {lgd}")
    A("v_and_b32 v4, 1, v1"); A("v_mul_u32_u24 v4, 1152, v4"); A("v_mul_u32_u24 v6, 12, v17"); A("v_add_u32 v4, v4, v6")
    A("s_lshl_b32 s64, s64, 1"); A("v_add_u32 v4, s64, v4")
    spin(C_XN, 2, vt="v24", sleep=0)
    A(f"ds_read_b32 v24, v4 offset:{L_XN}"); A(f"ds_read_b32 v25, v4 offset:{L_XN+4}"); A(f"ds_read_b32 v26, v4 offset:{L_XN+8}")
    A("v_mov_b32 v27, 0"); A("v_mov_b32 v11, 0"); A("v_mov_b32 v15, 0")
    lw8 = lab("w8"); lw0 = lab("w0")
    A("s_cmp_ge_u32 s31, 4"); A(f"s_cbranch_scc1 {lw0}")
    A("s_waitcnt vmcnt(8) lgkmcnt(0)"); A(f"s_branch {lw8}")
    A.label(lw0); A("s_waitcnt vmcnt(0) lgkmcnt(0)")
    A.label(lw8)
    Lg = [96 + 4*j for j in range(6)]
    sets = [8, 12]
    perms(0, sets[0], Lg, 3)
    for f in range(8):
        if f + 1 < 8: perms(f+1, sets[(f+1) & 1], Lg, 3)
        s = sets[f & 1]
        A(f"v_mfma_f32_16x16x32_bf16 v[{32+4*f}:{35+4*f}], v[24:27], v[{s}:{s+3}], 0")
    for b in range(2):
        for f in range(8): A(f"v_mov_b32 v{96+8*b+f}, v{32+4*f+b}")
    A("v_lshlrev_b32 v4, 5, v16"); A("s_lshl_b32 s60, s31, 10"); A("v_add_u32 v4, s60, v4")
    A("s_mov_b64 exec, 0xffff")
    for b in range(2):
        A(f"ds_write_b128 v4, v[{96+8*b}:{99+8*b}] offset:{L_RG+512*b}")
        A(f"ds_write_b128 v4, v[{100+8*b}:{103+8*b}] offset:{L_RG+512*b+16}")
    A("s_mov_b64 exec, -1")
    arrive(C_RG, "s60")
    A("s_cmp_lg_u32 s60, 7"); A(f"s_cbranch_scc1 {lgd}")
    A("s_mul_i32 s60, s62, 73728"); A("s_lshl_b32 s61, s63, 8"); A("s_add_u32 s60, s60, s61"); A(f"s_add_u32 s60, s60, {WS_GS}")
    base_add(44, 26, "s60")
    A("v_mul_u32_u24 v7, 18432, v17"); A("v_lshl_add_u32 v7, v16, 4, v7")
    A("v_and_b32 v6, 1, v17"); A("v_lshlrev_b32 v6, 9, v6"); A("v_lshrrev_b32 v8, 1, v17"); A("v_lshl_add_u32 v6, v8, 8, v6")
    A("v_lshl_add_u32 v6, v16, 4, v6")
    for w in range(8): A(f"ds_read_b128 v[{96+4*w}:{99+4*w}], v6 offset:{L_RG+1024*w}")
    A("s_waitcnt lgkmcnt(0)")
    for w in range(1, 8):
        for i in range(4): A(f"v_add_f32 v{96+i}, v{96+i}, v{96+4*w+i}")
    tagset(96)
    A("global_store_dwordx4 v7, v[96:99], s[44:45] sc1")
    A("s_mov_b32 s48, 1")
    A("s_branch L_vpv0")
    A.label(lgd)
    A("s_mov_b32 s48, 0")
    A.label("L_vpv0")
    stamp(4)
    A("v_and_b32 v6, 1, v1"); A("v_lshlrev_b32 v6, 2, v6"); A("v_add_u32 v6, v6, v17"); A("v_lshlrev_b32 v6, 4, v6")
    A("s_lshl_b32 s60, s31, 8"); A("v_add_u32 v6, s60, v6")
    A("s_lshl_b32 s60, s31, 2"); A("v_mov_b32 v22, s60")
    A("s_lshl_b32 s60, s31, 4"); A("v_mov_b32 v23, s60")
    for i in range(32): A(f"v_mov_b32 v{32+i}, 0")
    A("s_mov_b32 s43, 0")
    A("s_cmp_ge_u32 s31, 4"); A("s_cbranch_scc1 L_vdyn0")
    A("s_add_u32 s67, s67, 1")
    A("s_setprio 2")
    tile_loads(96, "v5", 8, "s67")
    A("s_setprio 3")
    A("s_mov_b32 s65, 1")
    A("s_branch L_vloop")
    A.label("L_vdyn0")
    A("s_sub_u32 s60, s31, 4"); A("s_mul_i32 s60, s60, 72"); A("v_mov_b32 v18, s60")
    A.label("L_vnext")
    spin(L_TIDX, 0, vt="v12", sleep=0, vaddr="v18", sdst="s67", cmp="s_cmp_lg_u32")
    A("v_add_u32 v18, 4, v18")
    A(f"s_cmp_ge_u32 s67, 128"); A("s_cbranch_scc1 L_vfin")
    A("s_setprio 1")
    tile_loads(64, "v5", 8, "s67")
    A("s_setprio 3")
    A.label("L_vloop")
    lst = lab("vst"); lgo = lab("vgo")
    A("s_cmp_ge_u32 s31, 4"); A(f"s_cbranch_scc0 {lst}")
    A("s_waitcnt vmcnt(0)")
    A(f"s_branch {lgo}")
    A.label(lst)
    lw1 = lab("vw1")
    A("s_cmp_lg_u32 s43, 0"); A(f"s_cbranch_scc1 {lw1}")
    A("s_waitcnt vmcnt(8)"); A(f"s_branch {lgo}")
    A.label(lw1)
    A("s_waitcnt vmcnt(0)"); A("s_mov_b32 s65, 0")
    A.label(lgo)
    A("s_add_u32 s61, s43, 1")
    spin(L_PSEQ, "s61", vt="v12", sleep=0, vaddr="v22")
    A("s_and_b32 s60, s43, 1"); A("s_lshl_b32 s61, s60, 7"); A("v_add_u32 v12, s61, v6")
    A("s_lshl_b32 s61, s60, 3"); A("v_add_u32 v13, s61, v23")
    A(f"ds_read_b128 v[24:27], v12 offset:{L_P}")
    A(f"ds_read_b64 v[28:29], v13 offset:{L_AL}")
    A("s_waitcnt lgkmcnt(0)")
    A("s_mov_b64 exec, 1"); A(f"ds_add_u32 v22, {VONE} offset:{L_PCON}"); A("s_mov_b64 exec, -1")
    for f in range(8):
        A(f"v_mul_f32 v{32+4*f}, v{32+4*f}, v28"); A(f"v_mul_f32 v{33+4*f}, v{33+4*f}, v29")
    sets = [8, 12]
    def pv(buf):
        Lv = [buf + 4*j for j in range(8)]
        perms(0, sets[0], Lv, 4)
        for f in range(8):
            if f + 1 < 8: perms(f+1, sets[(f+1) & 1], Lv, 4)
            s = sets[f & 1]
            A(f"v_mfma_f32_16x16x32_bf16 v[{32+4*f}:{35+4*f}], v[24:27], v[{s}:{s+3}], v[{32+4*f}:{35+4*f}]")
    l1 = lab("pv1"); l2 = lab("pv2"); l0 = lab("pv0")
    A("s_cmp_ge_u32 s31, 4"); A(f"s_cbranch_scc1 {l0}")
    A("s_bitcmp1_b32 s43, 0"); A(f"s_cbranch_scc1 {l1}")
    A.label(l0)
    pv(64); A(f"s_branch {l2}")
    A.label(l1)
    pv(96)
    A.label(l2)
    stamp_once(5)
    A("s_add_u32 s43, s43, 1")
    A("s_cmp_ge_u32 s31, 4"); A("s_cbranch_scc1 L_vnext")
    A("s_cmp_lg_u32 s65, 0")
    A("s_cbranch_scc1 L_vloop")
    A.label("L_vfin")
    stamp(6)
    for h in range(2):
        for f in range(8): A(f"v_mov_b32 v{64+8*h+f}, v{32+4*f+h}")
    A("v_lshlrev_b32 v4, 5, v16"); A("s_lshl_b32 s60, s31, 10"); A("v_add_u32 v4, s60, v4")
    A("s_mov_b64 exec, 0xffff")
    for h in range(2):
        A(f"ds_write_b128 v4, v[{64+8*h}:{67+8*h}] offset:{L_RO+512*h}")
        A(f"ds_write_b128 v4, v[{68+8*h}:{71+8*h}] offset:{L_RO+512*h+16}")
    A("s_mov_b64 exec, -1")
    arrive(C_RO, "s60")
    A("s_cmp_lg_u32 s60, 7")
    A("s_cbranch_scc1 L_vrole")
    A("v_and_b32 v7, 7, v1"); A("v_lshlrev_b32 v7, 4, v7"); A("v_lshrrev_b32 v8, 5, v1"); A("v_lshl_add_u32 v7, v8, 3, v7")
    A(f"ds_read_b64 v[28:29], v7 offset:{L_ML}")
    A("v_lshlrev_b32 v4, 4, v1")
    for w in range(8): A(f"ds_read_b128 v[{64+4*w}:{67+4*w}], v4 offset:{L_RO+1024*w}")
    A("s_lshl_b32 s60, s38, 4"); A("s_add_u32 s60, s60, s39"); A("s_mul_i32 s60, s60, 1152"); A(f"s_add_u32 s60, s60, {WS_OS}")
    base_add(44, 26, "s60")
    A("s_waitcnt lgkmcnt(8)")
    A("v_mov_b32 v30, v28")
    dpp("v_max_f32", ["v30"], "quad_perm:[1,0,3,2]")
    dpp("v_max_f32", ["v30"], "quad_perm:[2,3,0,1]")
    dpp("v_max_f32", ["v30"], "row_half_mirror")
    A("v_and_b32 v30, 0xfffff000, v30")
    A("v_sub_f32 v31, v28, v30"); A(f"v_mul_f32 v31, {LOG2E:#x}, v31"); A("v_exp_f32 v31, v31")
    A("v_mul_f32 v29, v31, v29")
    dpp("v_add_f32", ["v29"], "quad_perm:[1,0,3,2]")
    dpp("v_add_f32", ["v29"], "quad_perm:[2,3,0,1]")
    dpp("v_add_f32", ["v29"], "row_half_mirror")
    A("s_waitcnt lgkmcnt(0)")
    for w in range(8):
        A(f"v_mov_b32_dpp v{8+(w&3)+0}, v31 row_newbcast:{w} row_mask:0xf bank_mask:0xf")
        if w == 0:
            for i in range(4): A(f"v_mul_f32 v{64+i}, v{64+i}, v8")
        else:
            for i in range(4): A(f"v_fmac_f32 v{64+i}, v{64+4*w+i}, v{8+(w&3)}")
    tagset(64)
    A("global_store_dwordx4 v4, v[64:67], s[44:45] sc1")
    A("v_mov_b32 v68, v30"); A("v_mov_b32 v69, v29"); A("v_mov_b32 v70, 0"); A("v_mov_b32 v71, 0")
    tagset(68)
    A("v_lshrrev_b32 v7, 5, v1"); A("v_lshlrev_b32 v7, 2, v7"); A("v_and_b32 v6, 3, v1"); A("v_add_u32 v7, v7, v6"); A("v_lshlrev_b32 v7, 4, v7")
    A("s_mov_b32 exec_lo, 0xf"); A("s_mov_b32 exec_hi, 0xf")
    A("global_store_dwordx4 v7, v[68:71], s[44:45] offset:1024 sc1")
    A("s_mov_b64 exec, -1")
    signal(F_OP)
    stamp(7)
    A("s_mul_i32 s60, s38, 18432"); A(f"s_add_u32 s60, s60, {WS_OS}")
    base_add(44, 26, "s60")
    A("v_lshrrev_b32 v5, 2, v1"); A("v_mul_u32_u24 v5, 1152, v5")
    A("s_lshl_b32 s60, s40, 6"); A("s_add_u32 s60, s60, 1024"); A("v_add_u32 v7, s60, v5")
    A("v_and_b32 v6, 3, v1"); A("v_lshl_add_u32 v5, v6, 4, v5"); A("s_lshl_b32 s60, s39, 6"); A("v_add_u32 v5, s60, v5")
    poll_pipe([("v5", "s[44:45]", ""), ("v7", "s[44:45]", "")], [64, 68], [96, 104, 112, 120])
    stamp(8)
    untag(64); untag(68, 2)
    A("v_mov_b32 v8, v68")
    dpp("v_max_f32", ["v8"], "row_ror:4"); dpp("v_max_f32", ["v8"], "row_ror:8")
    butterfly(16, "v_max_f32", ["v8"], ["v9"])
    A("v_sub_f32 v8, v68, v8"); A(f"v_mul_f32 v8, {LOG2E:#x}, v8"); A("v_exp_f32 v8, v8")
    A("v_mul_f32 v69, v8, v69")
    for i in range(4): A(f"v_mul_f32 v{64+i}, v8, v{64+i}")
    z = ["v64", "v65", "v66", "v67", "v69"]
    dpp("v_add_f32", z, "row_ror:4"); dpp("v_add_f32", z, "row_ror:8")
    butterfly(16, "v_add_f32", z, ["v8", "v9", "v10", "v11", "v12"])
    A("v_rcp_f32 v8, v69")
    A("v_fma_f32 v9, -v69, v8, 1.0"); A("v_fma_f32 v8, v8, v9, v8")
    for i in range(4): A(f"v_mul_f32 v{64+i}, v{64+i}, v8")
    A("v_cvt_pk_bf16_f32 v8, v64, v65"); A("v_cvt_pk_bf16_f32 v9, v66, v67")
    A("v_lshrrev_b32 v10, 5, v1"); A("v_lshlrev_b32 v10, 2, v10"); A("v_and_b32 v11, 3, v1"); A("v_add_u32 v10, v10, v11")
    A("v_lshlrev_b32 v10, 3, v10")
    A("s_mov_b32 exec_lo, 0xf"); A("s_mov_b32 exec_hi, 0xf")
    A(f"ds_write_b64 v10, v[8:9] offset:{L_ZA}")
    A("s_mov_b64 exec, -1")
    signal(F_Z)
    stamp(9)
    A.label("L_vrole")
    A("s_cmp_eq_u32 s31, 0"); A("s_cbranch_scc1 L_vwd")
    A("s_cmp_lg_u32 s31, 1"); A("s_cbranch_scc1 L_vfinal")
    A("s_mul_i32 s60, s2, 18"); A("s_and_b32 s64, s60, 3"); A("s_lshr_b32 s60, s60, 2"); A("s_lshl_b32 s60, s60, 4")
    A(f"s_add_u32 s60, s60, {WS_GS}")
    base_add(44, 26, "s60")
    A("v_lshrrev_b32 v5, 2, v1"); A("v_mul_u32_u24 v5, 18432, v5"); A("v_and_b32 v6, 3, v1"); A("v_lshl_add_u32 v5, v6, 4, v5")
    for i in range(8): A(f"v_mov_b32 v{64+i}, 0")
    lp = lab("gpoll"); ld = lab("gdone")
    A.label(lp)
    A("s_mov_b32 exec_hi, 0x0000ffff")
    A("global_load_dwordx4 v[64:67], v5, s[44:45] sc1")
    A("s_mov_b32 exec_lo, 0x11111111"); A("s_mov_b32 exec_hi, 0x00001111")
    A("global_load_dwordx4 v[68:71], v5, s[44:45] offset:64 sc1")
    A("s_waitcnt vmcnt(0)")
    tagcheck(68, "v8", "v9", "v10")
    A("s_mov_b64 s[62:63], vcc")
    A("s_mov_b32 exec_lo, -1"); A("s_mov_b32 exec_hi, 0x0000ffff")
    tagcheck(64, "v8", "v9", "v10")
    A("s_or_b64 vcc, vcc, s[62:63]")
    A("s_mov_b64 exec, -1")
    A(f"s_cbranch_vccz {ld}")
    A("s_sleep 8")
    A("s_sub_u32 s42, s42, 64")
    A(f"s_cbranch_scc0 {lp}")
    A.label(ld)
    untag(64, 8)
    gv = [f"v{64+i}" for i in range(8)]; tv = [f"v{72+i}" for i in range(8)]
    butterfly(16, "v_add_f32", gv, tv)
    butterfly(32, "v_add_f32", gv, tv)
    for p in range(4): A(f"v_cvt_pk_bf16_f32 v{72+p}, v{64+2*p}, v{65+2*p}")
    for p in range(4):
        A(f"v_lshlrev_b32 v{64+2*p}, 16, v{72+p}"); A(f"v_and_b32 v{65+2*p}, 0xffff0000, v{72+p}")
    for i in range(8):
        A(f"v_mul_f32_dpp v{72+i}, v{64+i}, v{64+i} row_ror:8 row_mask:0xf bank_mask:0xf")
    for p in range(4): A(f"v_cvt_pk_bf16_f32 v{64+p}, v{72+2*p}, v{73+2*p}")
    A("v_bfe_u32 v8, v1, 2, 1"); A("v_lshlrev_b32 v8, 6, v8")
    A("v_lshlrev_b32 v9, 2, v6"); A("v_subrev_u32 v9, s64, v9")
    A("s_mov_b64 exec, 0xff")
    for s_ in range(2):
        for i in range(4):
            A(f"v_add_u32 v10, {16*s_+i}, v9")
            A("v_and_b32 v11, 3, v10"); A("v_lshlrev_b32 v11, 4, v11")
            A("v_lshrrev_b32 v12, 2, v10"); A("v_lshl_add_u32 v11, v12, 1, v11"); A("v_add_u32 v11, v11, v8")
            A("v_cmp_gt_u32 vcc, 18, v10")
            if s_ == 1: A("s_and_b64 vcc, vcc, 0x11")
            A(f"v_mov_b32 v12, {L_DUMMY-L_HA}")
            A("v_cndmask_b32 v11, v12, v11, vcc")
            src = f"v{64 + 2*s_ + (i >> 1)}"
            if i & 1: A(f"ds_write_b16_d16_hi v11, {src} offset:{L_HA}")
            else: A(f"ds_write_b16 v11, {src} offset:{L_HA}")
    A("s_mov_b64 exec, -1")
    signal(F_H)
    stamp(13)
    A("s_branch L_vfinal")
    A.label("L_vwd")
    A("s_mov_b32 s43, 4")
    A("s_waitcnt vmcnt(0)")
    wd_setup("s43")
    if WD_AT == 9: spin(F_OP, 1, vt="v15")
    elif WD_AT == 8: spin(C_RO, 8, vt="v15")
    elif WD_AT: spin(C_END, WD_AT, vt="v15")
    A("s_setprio 0")
    A("s_mov_b32 exec_lo, 0x00ff00ff"); A("s_mov_b32 exec_hi, 0x00ff00ff")
    wd_loads("s43")
    A("s_setprio 3")
    wd_compute("s43", True)
    A.label("L_vfinal")
    NRED = 288 // FSP
    sh = {2: 1, 4: 2, 8: 3}[FSP]; per_row = 16 // FSP
    A(f"s_cmp_ge_u32 s2, {NRED}")
    A("s_cbranch_scc1 L_vend")
    lr = {8: 3, 4: 2, 2: 1}[per_row]
    A(f"s_lshr_b32 s64, s2, {lr+2}"); A(f"s_bfe_u32 s65, s2, {0x20000 | lr:#x}"); A(f"s_and_b32 s66, s2, {per_row-1}")
    A(f"s_bfe_u32 s67, s2, {0x20000 | (lr-1):#x}"); A(f"s_and_b32 s68, s2, {per_row//2-1}")
    A(f"s_cmp_ge_u32 s2, {16*per_row}")
    A("s_cselect_b32 s64, 4, s64"); A("s_cselect_b32 s65, s67, s65"); A("s_cselect_b32 s66, s68, s66")
    A(f"s_lshl_b32 s60, s2, {12+sh}"); A(f"s_lshl_b32 s61, s31, {9+sh}"); A("s_add_u32 s60, s60, s61"); A(f"s_add_u32 s60, s60, {WS_FS}")
    base_add(44, 26, "s60")
    A("v_lshlrev_b32 v5, 4, v1")
    A("s_and_b32 s60, s65, 1"); A("s_mul_i32 s60, s60, 1152"); A("s_lshl_b32 s61, s64, 8"); A("s_add_u32 s60, s60, s61")
    A(f"s_lshl_b32 s61, s66, {4+sh}"); A("s_add_u32 s60, s60, s61"); A("s_lshr_b32 s61, s65, 1"); A("s_lshl_b32 s61, s61, 3"); A("s_add_u32 s64, s60, s61")
    A(f"v_and_b32 v6, {FSP-1}, v1"); A("v_lshlrev_b32 v7, 4, v6"); A("v_add_u32 v6, s64, v7")
    A("global_load_dwordx2 v[30:31], v6, s[4:5]")
    spin(C_F, 5)
    stamp(10)
    if FSP == 2:
        poll_pipe([("v5", "s[44:45]", "")], [64], [96, 100, 104, 108])
    elif FSP == 4:
        poll_pipe([("v5", "s[44:45]", ""), ("v5", "s[44:45]", " offset:1024")], [64, 68], [96, 104, 112])
    else:
        poll_pipe([("v5", "s[44:45]", f" offset:{1024*i}") for i in range(4)], [64, 68, 72, 76], [96, 112])
    stamp(11)
    untag(64, 4 * (FSP // 2))
    z = ["v64", "v65", "v66", "v67"]
    if FSP == 8:
        for i in range(4): A(f"v_add_f32 v{64+i}, v{64+i}, v{68+i}"); A(f"v_add_f32 v{72+i}, v{72+i}, v{76+i}")
        for i in range(4): A(f"v_add_f32 v{64+i}, v{64+i}, v{72+i}")
    elif FSP == 4:
        for i in range(4): A(f"v_add_f32 v{64+i}, v{64+i}, v{68+i}")
        dpp("v_add_f32", z, "row_ror:4")
    else:
        dpp("v_add_f32", z, "quad_perm:[2,3,0,1]")
        dpp("v_add_f32", z, "row_ror:4")
    dpp("v_add_f32", z, "row_ror:8")
    butterfly(16, "v_add_f32", z, ["v8", "v9", "v10", "v11"])
    butterfly(32, "v_add_f32", z, ["v8", "v9", "v10", "v11"])
    A(f"s_lshl_b32 s60, s31, {4+sh}"); A("v_add_u32 v8, s60, v7")
    A(f"s_mov_b64 exec, {(1 << FSP) - 1}")
    A(f"ds_write_b128 v8, v[64:67] offset:{L_FR}")
    A("s_mov_b64 exec, -1")
    arrive(C_FR, "s60")
    A("s_cmp_lg_u32 s60, 7")
    A("s_cbranch_scc1 L_vend")
    for w in range(8): A(f"ds_read_b128 v[{64+4*w}:{67+4*w}], v7 offset:{L_FR+16*FSP*w}")
    A("s_waitcnt lgkmcnt(0)")
    for w in range(1, 8):
        for i in range(4): A(f"v_add_f32 v{64+i}, v{64+i}, v{64+4*w+i}")
    A("v_lshlrev_b32 v8, 16, v30"); A("v_and_b32 v9, 0xffff0000, v30")
    A("v_lshlrev_b32 v10, 16, v31"); A("v_and_b32 v11, 0xffff0000, v31")
    for i in range(4): A(f"v_add_f32 v{64+i}, v{64+i}, v{8+i}")
    A("v_cvt_pk_bf16_f32 v8, v64, v65"); A("v_cvt_pk_bf16_f32 v9, v66, v67")
    A(f"s_mov_b64 exec, {(1 << FSP) - 1}")
    A("global_store_dwordx2 v6, v[8:9], s[22:23]")
    A("s_cmp_lg_u32 s2, 0")
    A("s_cbranch_scc1 L_vend2")
    A("s_mov_b64 exec, 1")
    A("v_mov_b32 v8, s28")
    A(f"global_store_dword {VZ}, v8, s[26:27] sc1")
    A.label("L_vend2")
    A("s_mov_b64 exec, -1")
    stamp(12)
    A.label("L_vend")
    stamp_dump()
    A.label("L_end")
    A("s_endpgm")
    lines, nn = A.finish()
    hdr = open("cdna_kernels/" + NAME + ".s.ref").read().split("; Override launch geometry")[0]
    out = hdr
    out += f"; @launch grid=(256,1,1) block=(1024,1,1) lds={LDS_BYTES}\n"
    out += f""".amdgcn_target "amdgcn-amd-amdhsa--gfx950"
.text
.globl {NAME}_kernel
.p2align 8
.type {NAME}_kernel,@function
{NAME}_kernel:
"""
    out += "\n".join(("    " + l) if not l.endswith(":") else l for l in lines)
    out += f"""
.section .rodata,"a"
.p2align 6
.amdhsa_kernel {NAME}_kernel
  .amdhsa_next_free_vgpr 128
  .amdhsa_next_free_sgpr 102
  .amdhsa_accum_offset 128
  .amdhsa_group_segment_fixed_size 0
  .amdhsa_kernarg_size 96
  .amdhsa_user_sgpr_count 2
  .amdhsa_user_sgpr_kernarg_segment_ptr 1
  .amdhsa_system_sgpr_workgroup_id_x 1
.end_amdhsa_kernel
"""
    return out, nn

if __name__ == "__main__":
    o, nn = gen()
    open("k3.s", "w").write(o)
    print("nops inserted:", nn, "lines:", o.count("\n"))
    o, nn = gen(diag=True)
    open("k3d.s", "w").write(o)
    o, nn = gen(diag=True, FSP=8)
    open("k3d_f8.s", "w").write(o)
    o, nn = gen(diag=False, FSP=8)
    open("k3_f8.s", "w").write(o)
```

```python
import sys
from asmlib import Asm
NAME = "parallel_sum__gqa_block_cached__glu_gated_bilinear__decode"

WS_EPOCH = 0
WS_CTR = 0x2000
WS_QS = 0x10000
WS_OS = 0x50000
WS_GS = 0xA0000
WS_FS = 0x100000
WS_STAMP = 0x800000
(C_XN, C_QP, C_KISS, C_GISS, C_Q, C_RO, C_RG, F_Z, F_H, C_F, C_FR, C_END, F_OP, C_WISS) = [4 * i for i in range(14)]
L_PSEQ = 64
L_PCON = 96
L_TIDX = 128
L_MLSEQ = 416
ZERO_BYTES = 512
L_XN = 512
L_Q = 2816
L_P = 3328
L_AL = 5376
L_ML = 5504
L_ZA = 5632
L_HA = 5696
L_DUMMY = 5824
L_FR = 6144
L_QP = 8192
L_RO = 16384
L_RG = 24576
LDS_BYTES = 32768
LOG2E = 0x3FB8AA3B
SCALE = 0x3DB504F3
NEGBIG = 0xFF000000
NT = " nt"
MAXT = 16
NDYN = 64
TEND = 0xFFFF

def gen(diag=False, mimic=True, ngu=216, exp=None, QPOLL_AT=8, FIRST_AT=8, VWAIT=True, WD_AT=4, FSP=4, EARLYK=True, FASTQK=False, PREPERM=False, PRETOUCH=False, GATE=True, NS2=2):
    A = Asm()
    uid = [0]
    def lab(p):
        uid[0] += 1; return f"L_{p}_{uid[0]}"
    VZ, VONE, VMASK = "v2", "v3", "v19"
    def stamp(i):
        if not diag: return
        assert i < 16
        A(f"s_memrealtime s[{70+2*i}:{71+2*i}]")
    def stamp_once(i):
        if not diag: return
        l = lab("so")
        A(f"s_cmp_lg_u32 s{70+2*i}, 0"); A(f"s_cbranch_scc1 {l}"); A(f"s_memrealtime s[{70+2*i}:{71+2*i}]"); A("s_waitcnt lgkmcnt(0)"); A.label(l)
    def stamp_idx(base, n):
        if not diag: return
        for k in range(n):
            l = lab("si")
            A(f"s_cmp_lg_u32 s43, {k}"); A(f"s_cbranch_scc1 {l}"); A(f"s_memrealtime s[{70+2*(base+k)}:{71+2*(base+k)}]"); A("s_waitcnt lgkmcnt(0)"); A.label(l)
    def stamp_dump():
        if not diag: return
        A("s_waitcnt lgkmcnt(0)")
        A("s_mov_b64 exec, 1")
        A(f"s_lshl_b32 s60, s2, 12"); A("s_lshl_b32 s61, s30, 8"); A("s_add_u32 s60, s60, s61")
        A(f"s_add_u32 s60, s60, {WS_STAMP}")
        A("v_mov_b32 v4, s60")
        for i in range(16):
            A(f"v_mov_b32 v6, s{70+2*i}"); A(f"v_mov_b32 v7, s{71+2*i}")
            A(f"global_store_dwordx2 v4, v[6:7], s[26:27] offset:{8*i}")
            A("s_nop 1")
        A("s_mov_b64 exec, -1")
    def signal(cnt, vaddr=None, wait=True):
        if wait: A("s_waitcnt lgkmcnt(0)")
        A("s_mov_b64 exec, 1")
        A(f"ds_add_u32 {vaddr or VZ}, {VONE} offset:{cnt}")
        A("s_mov_b64 exec, -1")
    def arrive(cnt, sdst, vt="v4"):
        A("s_waitcnt lgkmcnt(0)")
        A("s_mov_b64 exec, 1")
        A(f"ds_add_rtn_u32 {vt}, {VZ}, {VONE} offset:{cnt}")
        A("s_mov_b64 exec, -1")
        A("s_waitcnt lgkmcnt(0)")
        A(f"v_readfirstlane_b32 {sdst}, {vt}")
    def spin(cnt, n, vt="v4", sleep=1, vaddr=None, sdst="s60", cmp="s_cmp_ge_u32"):
        l = lab("spin"); d = lab("spind")
        A.label(l)
        A(f"ds_read_b32 {vt}, {vaddr or VZ} offset:{cnt}")
        A("s_waitcnt lgkmcnt(0)")
        A(f"v_readfirstlane_b32 {sdst}, {vt}")
        A(f"{cmp} {sdst}, {n}")
        A(f"s_cbranch_scc1 {d}")
        A("s_sub_u32 s42, s42, 1")
        A(f"s_cbranch_scc1 {d}")
        if sleep: A(f"s_sleep {sleep}")
        A(f"s_branch {l}")
        A.label(d)
    def tagcheck(r, vt0, vt1, vt2):
        A(f"v_xor_b32 {vt0}, s32, v{r}")
        A(f"v_xor_b32 {vt1}, s33, v{r+1}")
        A(f"v_xor_b32 {vt2}, s34, v{r+2}")
        A(f"v_or3_b32 {vt0}, {vt0}, {vt1}, {vt2}")
        A(f"v_xor_b32 {vt1}, s35, v{r+3}")
        A(f"v_or_b32 {vt0}, {vt0}, {vt1}")
        A(f"v_and_b32 {vt0}, {VMASK}, {vt0}")
        A(f"v_cmp_ne_u32 vcc, 0, {vt0}")
    def tagbad(grans, t0, t1, t2):
        first = True
        for r in grans:
            A(f"v_xor_b32 {t1}, s32, v{r}"); A(f"v_xor_b32 {t2}, s33, v{r+1}")
            if first: A(f"v_or_b32 {t0}, {t1}, {t2}")
            else: A(f"v_or3_b32 {t0}, {t0}, {t1}, {t2}")
            A(f"v_xor_b32 {t1}, s34, v{r+2}"); A(f"v_xor_b32 {t2}, s35, v{r+3}")
            A(f"v_or3_b32 {t0}, {t0}, {t1}, {t2}")
            first = False
        A(f"v_and_b32 {t0}, {VMASK}, {t0}")
        A(f"v_cmp_ne_u32 vcc, 0, {t0}")
    def poll_pipe(loads, res, sets, mask_lo="-1", mask_hi="-1", temps=("v8", "v9", "v10")):
        nl = len(loads); NS = len(sets)
        def issue(k):
            for i, (va, sb, ex) in enumerate(loads):
                A(f"global_load_dwordx4 v[{sets[k]+4*i}:{sets[k]+4*i+3}], {va}, {sb}{ex} sc1")
        A(f"s_mov_b32 s62, {mask_lo}"); A(f"s_mov_b32 s63, {mask_hi}")
        A("s_mov_b64 exec, s[62:63]")
        for k in range(NS): issue(k)
        A("s_mov_b64 exec, -1")
        lp = lab("pp"); ld = lab("ppd")
        A.label(lp)
        for k in range(NS):
            A(f"s_waitcnt vmcnt({(NS-1)*nl})")
            tagbad([sets[k]+4*i for i in range(nl)], *temps)
            ls = lab("pps")
            A("s_andn2_b64 s[66:67], s[62:63], vcc")
            A(f"s_cbranch_scc0 {ls}")
            A("s_mov_b64 exec, s[66:67]")
            for i in range(nl):
                for j in range(4): A(f"v_mov_b32 v{res[i]+j}, v{sets[k]+4*i+j}")
            A("s_and_b64 s[62:63], s[62:63], vcc")
            A("s_mov_b64 exec, -1")
            A(f"s_cbranch_scc0 {ld}")
            A.label(ls)
            A("s_mov_b64 exec, s[62:63]")
            issue(k)
            A("s_mov_b64 exec, -1")
        A("s_sub_u32 s42, s42, 64")
        A(f"s_cbranch_scc0 {lp}")
        A.label(ld)
        A("s_mov_b64 exec, -1")
    def tagset(r):
        for i in range(4): A(f"v_bfi_b32 v{r+i}, {VMASK}, s{32+i}, v{r+i}")
    def untag(r, n=4):
        for i in range(n): A(f"v_and_b32 v{r+i}, 0xfffff000, v{r+i}")
    def tags_from_epoch():
        A("s_waitcnt lgkmcnt(0)")
        A("s_add_u32 s28, s28, 1")
        A("s_and_b32 s32, s28, 0xfff")
        A("s_bfe_u32 s33, s28, 0xc000c")
        A("s_lshr_b64 s[60:61], s[28:29], 24"); A("s_and_b32 s34, s60, 0xfff")
        A("s_lshr_b64 s[60:61], s[28:29], 36"); A("s_and_b32 s35, s60, 0xfff")
    def butterfly(kind, op, regs, tmp):
        for r, t in zip(regs, tmp): A(f"v_mov_b32 {t}, {r}")
        for r, t in zip(regs, tmp): A(f"v_permlane{kind}_swap_b32 {r}, {t}")
        for r, t in zip(regs, tmp): A(f"{op} {r}, {r}, {t}")
    def dpp(op, regs, ctrl):
        for r in regs: A(f"{op}_dpp {r}, {r}, {r} {ctrl} row_mask:0xf bank_mask:0xf")
    def base_add(dst, src, off):
        A(f"s_add_u32 s{dst}, s{src}, {off}")
        A(f"s_addc_u32 s{dst+1}, s{src+1}, 0")
    def perms(f, setreg, L, npairs):
        c = f >> 1; sel = "s37" if f & 1 else "s36"
        for i in range(npairs):
            A(f"v_perm_b32 v{setreg+i}, v{L[2*i+1]+c}, v{L[2*i]+c}, {sel}")
    def lds_write1(vaddr, vdata, off):
        A("s_mov_b64 exec, 1")
        A(f"ds_write_b32 {vaddr}, {vdata} offset:{off}")
        A("s_mov_b64 exec, -1")
    def tile_loads(buf, voff, base_src, s_tile):
        A(f"s_lshl_b32 s60, {s_tile}, 13"); A("s_add_u32 s60, s60, s3")
        base_add(44, base_src, "s60")
        for i in range(8):
            if i == 4: base_add(44, 44, 4096)
            A(f"global_load_dwordx4 v[{buf+4*i}:{buf+3+4*i}], {voff}, s[44:45] offset:{(i%4)*1024}{NT}")

    def ticket_req():
        A("s_mov_b32 s66, 1"); A("s_mov_b32 s67, 0")
        A("s_atomic_add_x2 s[66:67], s[50:51], 0 glc")
    def ticket_fin(sdst):
        lr = lab("tk"); lo = lab("tko"); le = lab("tke"); lx = lab("tkx")
        A(f"s_cmp_ge_u32 s49, {MAXT}"); A(f"s_cbranch_scc1 {le}")
        A.label(lr)
        A("s_waitcnt lgkmcnt(0)")
        A("s_lshr_b32 s68, s66, 16"); A("s_cmp_eq_u32 s67, s28"); A("s_cselect_b32 s69, 1, 0")
        A("s_and_b32 s61, s29, 0xffff"); A("s_cmp_eq_u32 s68, s61"); A("s_cselect_b32 s68, s69, 0")
        A("s_cmp_lg_u32 s68, 0"); A(f"s_cbranch_scc1 {lo}")
        A("s_sub_u32 s42, s42, 4096"); A(f"s_cbranch_scc1 {le}")
        ticket_req()
        A(f"s_branch {lr}")
        A.label(lo)
        A("s_and_b32 s66, s66, 0xffff")
        A(f"s_cmp_ge_u32 s66, {NDYN}"); A(f"s_cbranch_scc1 {le}")
        A(f"s_add_u32 {sdst}, s66, 64")
        A(f"s_branch {lx}")
        A.label(le)
        A(f"s_mov_b32 {sdst}, {TEND}")
        A.label(lx)
        A("s_add_u32 s49, s49, 1")
        A(f"v_mov_b32 v12, {sdst}")
        lds_write1("v18", "v12", L_TIDX)
        A("v_add_u32 v18, 4, v18")
    def ticket_req_if():
        l = lab("tq")
        A(f"s_cmp_ge_u32 s49, {MAXT}"); A(f"s_cbranch_scc1 {l}")
        ticket_req()
        A.label(l)
    A("s_cmp_ge_u32 s2, 256")
    A("s_cbranch_scc1 L_end")
    A("s_load_dwordx16 s[4:19], s[0:1], 0")
    A("s_load_dwordx8 s[20:27], s[0:1], 64")
    if diag:
        A("s_memrealtime s[70:71]")
        for i in range(72, 102): A(f"s_mov_b32 s{i}, 0")
        A("s_getreg_b32 s100, hwreg(HW_REG_XCC_ID)")
    A("v_lshrrev_b32 v4, 6, v0")
    A("v_and_b32 v1, 63, v0")
    A("v_readfirstlane_b32 s30, v4")
    A("s_lshr_b32 s40, s2, 7")
    A("s_bfe_u32 s38, s2, 0x40003")
    A("s_and_b32 s41, s2, 7")
    A("s_lshl_b32 s39, s40, 3")
    A("s_or_b32 s39, s39, s41")
    A("s_lshr_b32 s3, s2, 3"); A("s_lshl_b32 s3, s3, 20")
    A("s_mov_b32 s36, 0x05040100")
    A("s_mov_b32 s37, 0x07060302")
    A("s_mov_b32 s42, 0x200000")
    A(f"v_mov_b32 {VZ}, 0")
    A(f"v_mov_b32 {VONE}, 1")
    A(f"v_mov_b32 {VMASK}, 0xfff")
    A("s_and_b32 s31, s30, 7")
    A("v_and_b32 v16, 15, v1")
    A("v_lshrrev_b32 v17, 4, v1")
    A("s_cmp_ge_u32 s30, 8")
    A("s_cbranch_scc1 L_vwave")

    A("v_bfe_u32 v4, v1, 2, 2")
    A("v_lshlrev_b32 v5, 8, v4")
    A("v_lshl_or_b32 v5, v17, 6, v5")
    A("v_and_b32 v4, 3, v1")
    A("v_lshl_or_b32 v5, v4, 4, v5")
    A("s_lshl_b32 s64, s41, 3"); A("s_lshl_b32 s61, s31, 1"); A("s_add_u32 s64, s64, s61")
    A("s_waitcnt lgkmcnt(0)")
    A("s_load_dwordx2 s[28:29], s[26:27], 0")
    A("s_cmp_ge_u32 s31, 4")
    A("s_cbranch_scc1 L_kdyn00")
    A("s_setprio 2")
    if EARLYK: tile_loads(64, "v5", 6, "s64")
    A("s_barrier")
    if not EARLYK: tile_loads(64, "v5", 6, "s64")
    A("s_add_u32 s64, s64, 1")
    tile_loads(96, "v5", 6, "s64")
    signal(C_KISS)
    A("s_setprio 2")
    tags_from_epoch()
    A("v_lshrrev_b32 v6, 3, v1"); A("v_lshlrev_b32 v6, 10, v6")
    A("v_and_b32 v7, 7, v1"); A("v_lshl_or_b32 v6, v7, 4, v6")
    A("s_lshl_b32 s62, s31, 8"); A("v_add_u32 v6, s62, v6")
    A("s_lshl_b32 s60, s38, 1"); A("s_add_u32 s60, s60, s40"); A("s_lshl_b32 s60, s60, 13")
    A(f"s_add_u32 s60, s60, {WS_QS}")
    base_add(46, 26, "s60")
    if exp != "noq": spin(C_GISS, QPOLL_AT, vt="v8")
    stamp(1)
    A("s_setprio 3")
    lp = lab("qpoll"); ld = lab("qdone")
    A.label(lp)
    A("global_load_dwordx4 v[20:23], v6, s[46:47] sc1")
    A("global_load_dwordx4 v[24:27], v6, s[46:47] offset:128 sc1")
    A("s_waitcnt vmcnt(0)")
    tagcheck(20, "v8", "v9", "v10")
    A("s_mov_b64 s[62:63], vcc")
    tagcheck(24, "v8", "v9", "v10")
    A("s_or_b64 vcc, vcc, s[62:63]")
    if exp == "noq": A(f"s_branch {ld}")
    A(f"s_cbranch_vccz {ld}")
    A("s_sub_u32 s42, s42, 64")
    A(f"s_cbranch_scc0 {lp}")
    A.label(ld)
    untag(20, 8)
    q = [f"v{20+i}" for i in range(8)]
    tq = [f"v{32+i}" for i in range(8)]
    dpp("v_add_f32", q, "row_ror:8")
    butterfly(16, "v_add_f32", q, tq)
    butterfly(32, "v_add_f32", q, tq)
    for p in range(4): A(f"v_cvt_pk_bf16_f32 v{8+p}, v{20+2*p}, v{21+2*p}")
    A("v_lshlrev_b32 v12, 3, v7")
    A("s_lshl_b32 s60, s31, 7"); A("v_add_u32 v12, s60, v12")
    A("s_mov_b64 exec, 0xff")
    A(f"ds_write_b64 v12, v[8:9] offset:{L_Q}")
    A(f"ds_write_b64 v12, v[10:11] offset:{L_Q+64}")
    A("s_mov_b64 exec, -1")
    signal(C_Q)
    A("s_setprio 2")
    A("s_branch L_kq")
    A.label("L_kdyn00")
    A("s_barrier")
    tags_from_epoch()
    A("s_lshr_b32 s60, s2, 3"); A("s_lshl_b32 s60, s60, 8"); A(f"s_add_u32 s60, s60, {WS_CTR}")
    base_add(50, 26, "s60")
    A("s_sub_u32 s60, s31, 4"); A("s_mul_i32 s60, s60, 72"); A("v_mov_b32 v18, s60")
    A("s_mov_b32 s49, 0")
    spin(C_GISS, FIRST_AT, vt="v8")
    stamp(1)
    A("s_setprio 2")
    ticket_req()
    ticket_fin("s64")
    stamp(3)
    A("s_setprio 1")
    lnt = lab("qnt")
    A(f"s_cmp_eq_u32 s64, {TEND}"); A(f"s_cbranch_scc1 {lnt}")
    tile_loads(64, "v5", 6, "s64")
    A.label(lnt)
    A("s_setprio 2")
    A.label("L_kq")
    for (r, val) in ((52, 0x22222222), (54, 0x44444444), (56, 0x88888888)):
        A(f"s_mov_b32 s{r}, {val:#x}"); A(f"s_mov_b32 s{r+1}, {val:#x}")
    A("s_mov_b32 s58, 0x00ff00ff"); A("s_mov_b32 s59, 0x00ff00ff")
    A("v_bfe_u32 v8, v16, 2, 1"); A("v_lshlrev_b32 v8, 8, v8"); A("v_lshl_or_b32 v8, v17, 6, v8")
    A("v_and_b32 v9, 3, v16"); A("v_lshl_or_b32 v8, v9, 4, v8")
    A(f"v_mov_b32 v20, {NEGBIG:#x}")
    A("v_mov_b32 v21, 0")
    A("s_lshl_b32 s60, s31, 2"); A("v_mov_b32 v22, s60")
    A("v_lshrrev_b32 v23, 2, v1"); A("v_lshlrev_b32 v23, 4, v23"); A("s_lshl_b32 s60, s31, 8"); A("v_add_u32 v23, s60, v23")
    A("s_mov_b32 s43, 0")
    spin(C_Q, 4, vt="v10", sleep=0)
    A(f"ds_read_b128 v[12:15], v8 offset:{L_Q}")
    A("s_waitcnt lgkmcnt(0)")
    for i in range(4): A(f"v_cndmask_b32 v{24+i}, 0, v{12+i}, s[58:59]")
    for i in range(4): A(f"v_cndmask_b32 v{28+i}, v{12+i}, 0, s[58:59]")
    stamp(2)
    A("s_mov_b32 s65, 1")
    A("s_cmp_ge_u32 s31, 4")
    A("s_cbranch_scc0 L_kstatic")
    A(f"s_cmp_eq_u32 s64, {TEND}")
    A("s_cbranch_scc1 L_kfin_dyn")
    def qk(buf):
        S = ["v8", "v9", "v10", "v11"]
        for t in range(4):
            A(f"v_mfma_f32_16x16x32_bf16 v[{32+4*t}:{35+4*t}], v[24:27], v[{buf+8*t}:{buf+3+8*t}], 0")
        for t in range(4):
            A(f"v_mfma_f32_16x16x32_bf16 v[{32+4*t}:{35+4*t}], v[28:31], v[{buf+4+8*t}:{buf+7+8*t}], v[{32+4*t}:{35+4*t}]")
        for t in range(4): A(f"v_cndmask_b32 {S[t]}, v{32+4*t}, v{33+4*t}, s[52:53]")
        for t in range(4): A(f"v_cndmask_b32 {S[t]}, {S[t]}, v{34+4*t}, s[54:55]")
        for t in range(4): A(f"v_cndmask_b32 {S[t]}, {S[t]}, v{35+4*t}, s[56:57]")
        dpp("v_add_f32", S, "quad_perm:[1,0,3,2]")
        dpp("v_add_f32", S, "quad_perm:[2,3,0,1]")
        A(f"s_mov_b32 s60, {SCALE:#x}")
        if mimic:
            for p in range(2): A(f"v_cvt_pk_bf16_f32 v{48+p}, {S[2*p]}, {S[2*p+1]}")
            for p in range(2):
                A(f"v_lshlrev_b32 {S[2*p]}, 16, v{48+p}"); A(f"v_and_b32 {S[2*p+1]}, 0xffff0000, v{48+p}")
            for t in range(4): A(f"v_mul_f32 {S[t]}, s60, {S[t]}")
            for p in range(2): A(f"v_cvt_pk_bf16_f32 v{48+p}, {S[2*p]}, {S[2*p+1]}")
            for p in range(2):
                A(f"v_lshlrev_b32 {S[2*p]}, 16, v{48+p}"); A(f"v_and_b32 {S[2*p+1]}, 0xffff0000, v{48+p}")
        else:
            for t in range(4): A(f"v_mul_f32 {S[t]}, s60, {S[t]}")
        A(f"v_max3_f32 v48, {S[0]}, {S[1]}, {S[2]}")
        A(f"v_max3_f32 v48, v48, {S[3]}, v20")
        dpp("v_max_f32", ["v48"], "row_ror:4")
        dpp("v_max_f32", ["v48"], "row_ror:8")
        butterfly(32, "v_max_f32", ["v48"], ["v49"])
        A(f"s_mov_b32 s60, {LOG2E:#x}")
        A("v_sub_f32 v50, v20, v48"); A("v_mul_f32 v50, s60, v50")
        A("v_mul_f32 v49, s60, v48")
        for t in range(4): A(f"v_fma_f32 {S[t]}, {S[t]}, s60, -v49")
        A("v_exp_f32 v50, v50")
        for t in range(4): A(f"v_exp_f32 {S[t]}, {S[t]}")
        A("v_mov_b32 v20, v48")
        if FASTQK:
            for t in range(4): A(f"v_mov_b32 v{52+t}, {S[t]}")
            A(f"v_add_f32 v51, {S[0]}, {S[1]}"); A(f"v_add_f32 v60, {S[2]}, {S[3]}")
            for t in range(4): A(f"v_permlane32_swap_b32 {S[t]}, v{52+t}")
            for t in range(4): A(f"v_cvt_pk_bf16_f32 v{56+t}, {S[t]}, v{52+t}")
            A("v_add_f32 v51, v51, v60")
            A("v_fma_f32 v21, v21, v50, v51")
        else:
            A(f"v_add_f32 v51, {S[0]}, {S[1]}"); A(f"v_add_f32 v52, {S[2]}, {S[3]}"); A("v_add_f32 v51, v51, v52")
            dpp("v_add_f32", ["v51"], "row_ror:4")
            dpp("v_add_f32", ["v51"], "row_ror:8")
            butterfly(32, "v_add_f32", ["v51"], ["v52"])
            A("v_fma_f32 v21, v21, v50, v51")
            for t in range(4): A(f"v_mov_b32 v{52+t}, {S[t]}")
            for t in range(4): A(f"v_permlane32_swap_b32 {S[t]}, v{52+t}")
            for t in range(4): A(f"v_cvt_pk_bf16_f32 v{56+t}, {S[t]}, v{52+t}")
    A.label("L_kstatic")
    A.label("L_kloop")
    lst = lab("kst"); lgo = lab("kgo")
    A("s_cmp_ge_u32 s31, 4"); A(f"s_cbranch_scc0 {lst}")
    A("s_waitcnt vmcnt(0)")
    stamp_once(4)
    stamp_idx(7, 3)
    A(f"s_branch {lgo}")
    A.label(lst)
    lw1 = lab("kw1")
    A("s_cmp_lg_u32 s43, 0"); A(f"s_cbranch_scc1 {lw1}")
    A("s_waitcnt vmcnt(8)"); stamp_once(4); A(f"s_branch {lgo}")
    A.label(lw1)
    A("s_waitcnt vmcnt(0)"); A("s_mov_b32 s65, 0")
    A.label(lgo)
    lnw = lab("knw")
    A("s_cmp_lt_u32 s43, 2"); A(f"s_cbranch_scc1 {lnw}")
    A("s_sub_u32 s61, s43, 1")
    spin(L_PCON, "s61", vt="v12", sleep=0, vaddr="v22")
    A.label(lnw)
    lq1 = lab("kq1"); lq2 = lab("kq2")
    A("s_cmp_ge_u32 s31, 4"); A(f"s_cbranch_scc0 {lq1}")
    ticket_req_if()
    qk(64); A(f"s_branch {lq2}")
    A.label(lq1)
    lq3 = lab("kq3")
    A("s_bitcmp1_b32 s43, 0"); A(f"s_cbranch_scc1 {lq3}")
    qk(64); A(f"s_branch {lq2}")
    A.label(lq3)
    qk(96)
    A.label(lq2)
    A("s_and_b32 s60, s43, 1"); A("s_lshl_b32 s61, s60, 7"); A("v_add_u32 v12, s61, v23")
    A("s_mov_b32 exec_lo, 0x11111111"); A("s_mov_b32 exec_hi, 0")
    A(f"ds_write_b128 v12, v[56:59] offset:{L_P}")
    A("s_mov_b64 exec, 0x10001")
    A("v_lshrrev_b32 v13, 2, v1")
    A("s_lshl_b32 s61, s31, 4"); A("s_lshl_b32 s60, s60, 3"); A("s_add_u32 s60, s60, s61"); A("v_add_u32 v14, s60, v13")
    A(f"ds_write_b32 v14, v50 offset:{L_AL}")
    A("s_mov_b64 exec, -1")
    if FASTQK:
        signal(L_PSEQ, vaddr="v22", wait=False)
        A("v_mov_b32 v61, v21")
        dpp("v_add_f32", ["v61"], "row_ror:4")
        dpp("v_add_f32", ["v61"], "row_ror:8")
        butterfly(32, "v_add_f32", ["v61"], ["v62"])
        A("v_mov_b32 v60, v20")
        A("s_mov_b64 exec, 0x10001")
        A("v_lshrrev_b32 v13, 1, v1"); A("v_add_u32 v13, s61, v13")
        A(f"ds_write_b64 v13, v[60:61] offset:{L_ML}")
        A("s_mov_b64 exec, -1")
        signal(L_MLSEQ, vaddr="v22", wait=False)
    else:
        A("s_mov_b64 exec, 0x10001")
        A("v_lshlrev_b32 v13, 1, v13"); A("v_add_u32 v13, s61, v13")
        A(f"ds_write_b64 v13, v[20:21] offset:{L_ML}")
        A("s_mov_b64 exec, -1")
        signal(L_PSEQ, vaddr="v22")
        signal(L_MLSEQ, vaddr="v22")
    stamp_once(5)
    A("s_add_u32 s43, s43, 1")
    lsx = lab("ksx")
    A("s_cmp_ge_u32 s31, 4"); A(f"s_cbranch_scc0 {lsx}")
    if diag:
        A("s_sub_u32 s43, s43, 1"); stamp_idx(10, 3); A("s_add_u32 s43, s43, 1")
    ticket_fin("s64")
    A(f"s_cmp_eq_u32 s64, {TEND}"); A("s_cbranch_scc1 L_kfin_dyn")
    A("s_setprio 1")
    tile_loads(64, "v5", 6, "s64")
    A("s_setprio 2")
    A("s_branch L_kloop")
    A.label(lsx)
    A("s_cmp_lg_u32 s65, 0")
    A("s_cbranch_scc1 L_kloop")
    A("s_branch L_ktail")
    A.label("L_kfin_dyn")
    signal(C_END)
    stamp(6)
    if diag: A("s_mov_b32 s98, s43")
    A("s_branch L_kend")
    def fs_addr(sT, half):
        sh = {2: 1, 4: 2, 8: 3}[FSP]
        per_row = 16 // FSP
        A(f"v_lshrrev_b32 v7, {sh}, v16")
        if half: A(f"v_lshl_add_u32 v7, v17, {3-sh}, v7"); A(f"v_add_u32 v7, {16*per_row}, v7")
        else:
            A(f"v_lshl_add_u32 v7, v17, {4-sh}, v7"); A(f"s_mul_i32 s60, {sT}, {4*per_row}"); A("v_add_u32 v7, s60, v7")
        A(f"v_lshlrev_b32 v7, {12+sh}, v7")
        A(f"v_and_b32 v8, {FSP-1}, v16"); A("v_lshl_add_u32 v7, v8, 4, v7")
        A(f"s_lshl_b32 s60, s2, {4+sh}"); A(f"s_add_u32 s60, s60, {WS_FS}")
        base_add(44, 26, "s60")
    def fs_pretouch(sT, half):
        fs_addr(sT, half)
        A("s_xor_b32 s60, s32, 0xfff"); A("v_mov_b32 v8, s60"); A("v_mov_b32 v9, 0"); A("v_mov_b32 v10, 0"); A("v_mov_b32 v11, 0")
        if half: A("s_mov_b32 exec_lo, 0x00ff00ff"); A("s_mov_b32 exec_hi, 0x00ff00ff")
        A("global_store_dwordx4 v7, v[8:11], s[44:45] sc1")
        if half: A("s_mov_b64 exec, -1")
    def wd_loads(sT):
        for j in range(4):
            A(f"global_load_dwordx4 v[{88+4*j}:{91+4*j}], v13, s[48:49] offset:{1152*j}{NT}")
        for j in range(4):
            A(f"global_load_dwordx4 v[{104+4*j}:{107+4*j}], v14, s[50:51]{NT}")
            A("v_add_u32 v14, 4608, v14")
        A("s_mov_b32 exec_hi, 0")
        A("global_load_dwordx4 v[120:123], v14, s[50:51]" + NT)
        A("s_mov_b64 exec, -1")
        signal(C_WISS, wait=False) if "wait" in signal.__code__.co_varnames else signal(C_WISS)
    def wd_setup(sT):
        A("v_lshlrev_b32 v12, 4, v16"); A(f"s_lshl_b32 s66, {sT}, 8"); A("v_add_u32 v12, s66, v12")
        A("v_mul_u32_u24 v13, 4608, v17"); A("v_add_u32 v13, v13, v12")
        A("v_mul_u32_u24 v14, 1152, v17"); A("v_add_u32 v14, v14, v12")
        A("s_lshl_b32 s66, s38, 8"); A("s_lshl_b32 s67, s39, 4"); A("s_add_u32 s66, s66, s67"); A("s_mul_i32 s66, s66, 1152")
        base_add(48, 12, "s66")
        A("s_mul_i32 s66, s2, 20736")
        base_add(50, 20, "s66")
        for i in range(4): A(f"v_mov_b32 v{120+i}, 0")
    def wd_compute(sT, half):
        A("s_waitcnt vmcnt(0)")
        stamp(7)
        Lw = [88 + 4*j for j in range(4)]; Ld = [104 + 4*j for j in range(4)]
        for f in range(8):
            c = f >> 1; sel = "s37" if f & 1 else "s36"
            for i in range(2): A(f"v_perm_b32 v{32+2*f+i}, v{Lw[2*i+1]+c}, v{Lw[2*i]+c}, {sel}")
        for f in range(8):
            c = f >> 1; sel = "s37" if f & 1 else "s36"
            for i in range(2): A(f"v_perm_b32 v{48+4*f+i}, v{Ld[2*i+1]+c}, v{Ld[2*i]+c}, {sel}")
            if f & 1: A(f"v_lshrrev_b32 v{48+4*f+2}, 16, v{120+c}")
            else: A(f"v_and_b32 v{48+4*f+2}, 0xffff, v{120+c}")
            A(f"v_mov_b32 v{48+4*f+3}, 0")
        A("v_and_b32 v4, 1, v1"); A("v_lshlrev_b32 v4, 2, v4"); A("v_add_u32 v4, v4, v17")
        A("v_lshlrev_b32 v5, 3, v4"); A("v_lshlrev_b32 v6, 4, v4")
        fs_addr(sT, half)
        spin(F_H, 1, vt="v15", sleep=0)
        A(f"ds_read_b128 v[12:15], v6 offset:{L_HA}")
        A("s_waitcnt lgkmcnt(0)")
        for f in range(8):
            A(f"v_mfma_f32_16x16x32_bf16 v[{80+4*f}:{83+4*f}], v[12:15], v[{48+4*f}:{51+4*f}], 0")
        spin(F_Z, 1, vt="v10", sleep=0)
        stamp(8)
        A(f"ds_read_b64 v[8:9], v5 offset:{L_ZA}")
        A("s_waitcnt lgkmcnt(0)")
        for f in range(8):
            A(f"v_mfma_f32_16x16x16_bf16 v[{80+4*f}:{83+4*f}], v[8:9], v[{32+2*f}:{33+2*f}], v[{80+4*f}:{83+4*f}]")
        A("s_mov_b32 s60, 0xffff0000"); A("s_mov_b32 s61, 0xffff0000")
        A("s_mov_b32 s62, 0"); A("s_mov_b32 s63, -1")
        for i in range(4): A(f"v_cndmask_b32 v{32+i}, v{80+4*i}, v{81+4*i}, s[60:61]")
        for i in range(4): A(f"v_cndmask_b32 v{36+i}, v{96+4*i}, v{97+4*i}, s[60:61]")
        for i in range(4): A(f"v_cndmask_b32 v{32+i}, v{32+i}, v{36+i}, s[62:63]")
        tagset(32)
        if half: A("s_mov_b32 exec_lo, 0x00ff00ff"); A("s_mov_b32 exec_hi, 0x00ff00ff")
        A("global_store_dwordx4 v7, v[32:35], s[44:45] sc1")
        if half: A("s_mov_b64 exec, -1")
        signal(C_F)
        stamp(9)
    A.label("L_ktail")
    if PRETOUCH: fs_pretouch("s31", False)
    wd_setup("s31")
    if WD_AT == 9: spin(F_OP, 1, vt="v15")
    elif WD_AT == 8: spin(C_RO, 8, vt="v15")
    elif WD_AT: spin(C_END, WD_AT, vt="v15")
    A("s_setprio 0")
    wd_loads("s31")
    A("s_setprio 2")
    stamp(6)
    wd_compute("s31", False)
    A.label("L_kend")
    stamp_dump()
    A("s_endpgm")

    A.label("L_vwave")
    A("s_setprio 3")
    A("s_cmp_ge_u32 s31, 6")
    A("s_cbranch_scc1 L_v67")
    A("s_lshr_b32 s60, s39, 1"); A("s_mul_i32 s60, s60, 72"); A("s_mul_i32 s61, s31, 12"); A("s_add_u32 s64, s60, s61")
    A("s_lshl_b32 s60, s64, 13"); A("s_lshl_b32 s61, s38, 9"); A("s_add_u32 s60, s60, s61")
    A("s_and_b32 s61, s39, 1"); A("s_lshl_b32 s61, s61, 8"); A("s_add_u32 s60, s60, s61")
    A("v_lshlrev_b32 v4, 13, v17"); A("v_lshl_add_u32 v4, v16, 4, v4")
    A("s_waitcnt lgkmcnt(0)")
    A("s_load_dwordx2 s[28:29], s[26:27], 0")
    base_add(44, 10, "s60")
    for j in range(3):
        A(f"global_load_dwordx4 v[{64+4*j}:{67+4*j}], v4, s[44:45]{NT}")
        if j < 2: base_add(44, 44, 32768)
    A("s_barrier")
    A("v_and_b32 v4, 1, v1"); A("v_mul_u32_u24 v4, 1152, v4")
    A("v_lshl_add_u32 v4, v17, 1, v4")
    A("s_lshl_b32 s60, s64, 1"); A("v_add_u32 v4, s60, v4")
    tags_from_epoch()
    spin(C_XN, 2, vt="v5", sleep=0)
    A(f"ds_read_u16 v8, v4 offset:{L_XN}")
    A(f"ds_read_u16 v10, v4 offset:{L_XN+8}")
    A(f"ds_read_u16 v9, v4 offset:{L_XN+16}")
    A("s_waitcnt lgkmcnt(0)")
    A("v_lshl_or_b32 v8, v10, 16, v8")
    A("s_waitcnt vmcnt(0)")
    stamp(1)
    sets = [10, 12]
    def qfrag(f):
        c = f >> 1; s = sets[f & 1]; sel = "s37" if f & 1 else "s36"
        A(f"v_perm_b32 v{s}, v{68+c}, v{64+c}, {sel}")
        if f & 1: A(f"v_lshrrev_b32 v{s+1}, 16, v{72+c}")
        else: A(f"v_and_b32 v{s+1}, 0xffff, v{72+c}")
    qfrag(0)
    for f in range(8):
        if f + 1 < 8: qfrag(f + 1)
        s = sets[f & 1]
        A(f"v_mfma_f32_16x16x16_bf16 v[{32+4*f}:{35+4*f}], v[8:9], v[{s}:{s+1}], 0")
    for b in range(2):
        for f in range(8): A(f"v_mov_b32 v{64+8*b+f}, v{32+4*f+b}")
    A("v_lshlrev_b32 v4, 5, v16")
    A("s_lshl_b32 s60, s31, 10"); A("v_add_u32 v4, s60, v4")
    A("s_mov_b64 exec, 0xffff")
    for b in range(2):
        A(f"ds_write_b128 v4, v[{64+8*b}:{67+8*b}] offset:{L_QP+512*b}")
        A(f"ds_write_b128 v4, v[{68+8*b}:{71+8*b}] offset:{L_QP+512*b+16}")
    A("s_mov_b64 exec, -1")
    arrive(C_QP, "s60")
    A("s_cmp_lg_u32 s60, 5")
    A("s_cbranch_scc1 L_vgu0")
    A("v_lshlrev_b32 v4, 4, v1")
    for w in range(6): A(f"ds_read_b128 v[{64+4*w}:{67+4*w}], v4 offset:{L_QP+1024*w}")
    A("v_lshrrev_b32 v5, 5, v1"); A("v_lshlrev_b32 v5, 13, v5")
    A("v_and_b32 v6, 31, v1"); A("v_lshl_add_u32 v5, v6, 4, v5")
    A("s_lshl_b32 s60, s38, 14"); A("s_lshr_b32 s61, s39, 1"); A("s_lshl_b32 s61, s61, 10"); A("s_add_u32 s60, s60, s61")
    A("s_and_b32 s61, s39, 1"); A("s_lshl_b32 s61, s61, 9"); A("s_add_u32 s60, s60, s61")
    A(f"s_add_u32 s60, s60, {WS_QS}")
    base_add(44, 26, "s60")
    A("s_waitcnt lgkmcnt(0)")
    for w in range(1, 6):
        for i in range(4): A(f"v_add_f32 v{64+i}, v{64+i}, v{64+4*w+i}")
    tagset(64)
    A("global_store_dwordx4 v5, v[64:67], s[44:45] sc1")
    stamp(2)
    A("s_branch L_vgu0")
    A.label("L_v67")
    A("s_sub_u32 s64, s31, 6"); A("s_mul_i32 s64, s64, 1152")
    A("v_lshlrev_b32 v4, 2, v1"); A("v_add_u32 v5, s64, v4")
    for i in range(10): A(f"v_mov_b32 v{64+i}, 0")
    A("s_waitcnt lgkmcnt(0)")
    A("s_load_dwordx2 s[28:29], s[26:27], 0")
    for t in range(4): A(f"global_load_dword v{64+t}, v5, s[4:5] offset:{256*t}")
    A("s_mov_b32 exec_hi, 0")
    A("global_load_dword v68, v5, s[4:5] offset:1024")
    A("s_mov_b64 exec, -1")
    lz = lab("noz")
    A("s_cmp_lg_u32 s31, 6"); A(f"s_cbranch_scc1 {lz}")
    A(f"ds_write_b32 v4, {VZ}"); A(f"ds_write_b32 v4, {VZ} offset:256")
    A(f"ds_write_b32 v4, {VZ} offset:{L_HA}")
    A(f"v_mov_b32 v8, {NEGBIG:#x}"); A("v_mov_b32 v9, 0"); A("v_lshlrev_b32 v10, 3, v1")
    A("s_mov_b64 exec, 0xffff")
    A(f"ds_write_b64 v10, v[8:9] offset:{L_ML}")
    A("s_mov_b64 exec, -1")
    A("s_waitcnt lgkmcnt(0)")
    A.label(lz)
    A("s_barrier")
    tags_from_epoch()
    lz = lab("noc")
    A("s_cmp_lg_u32 s31, 6"); A(f"s_cbranch_scc1 {lz}")
    A("s_cmp_lg_u32 s41, 0"); A(f"s_cbranch_scc1 {lz}")
    A("s_lshl_b32 s60, s29, 16"); A("v_mov_b32 v8, s60"); A("v_mov_b32 v9, s28")
    A("s_lshr_b32 s60, s2, 3"); A("s_lshl_b32 s60, s60, 8"); A(f"s_add_u32 s60, s60, {WS_CTR}"); A("v_mov_b32 v10, s60")
    A("s_mov_b64 exec, 1")
    A("global_store_dwordx2 v10, v[8:9], s[26:27] sc1")
    A("s_mov_b64 exec, -1")
    A.label(lz)
    A("s_waitcnt vmcnt(1)")
    lx = lab("xw")
    A("s_cmp_lg_u32 s31, 6"); A("s_cselect_b32 s60, 1, 0"); A("s_cmp_lg_u32 s41, 0"); A("s_cselect_b32 s60, 1, s60")
    A("s_cmp_eq_u32 s60, 0"); A(f"s_cbranch_scc1 {lx}")
    A("s_waitcnt vmcnt(0)")
    A.label(lx)
    stamp(1)
    X = [f"v{80+i}" for i in range(10)]
    for t in range(5):
        A(f"v_lshlrev_b32 {X[2*t]}, 16, v{64+t}")
        A(f"v_and_b32 {X[2*t+1]}, 0xffff0000, v{64+t}")
    def red64(dst):
        dpp("v_add_f32", [dst], "quad_perm:[1,0,3,2]")
        dpp("v_add_f32", [dst], "quad_perm:[2,3,0,1]")
        dpp("v_add_f32", [dst], "row_ror:4")
        dpp("v_add_f32", [dst], "row_ror:8")
        butterfly(16, "v_add_f32", [dst], ["v33"])
        butterfly(32, "v_add_f32", [dst], ["v33"])
    for i in range(5): A(f"v_add_f32 v{34+i}, {X[2*i]}, {X[2*i+1]}")
    A("v_add_f32 v34, v34, v35"); A("v_add_f32 v36, v36, v37"); A("v_add_f32 v34, v34, v38"); A("v_add_f32 v8, v34, v36")
    red64("v8")
    A("s_mov_b32 s60, 0x3ae38e39")
    A("v_mul_f32 v8, s60, v8")
    D = [f"v{100+i}" for i in range(10)]
    for i in range(8): A(f"v_sub_f32 {D[i]}, {X[i]}, v8")
    A(f"v_mov_b32 {D[8]}, 0"); A(f"v_mov_b32 {D[9]}, 0")
    A("s_mov_b32 exec_hi, 0")
    for i in (8, 9): A(f"v_sub_f32 {D[i]}, {X[i]}, v8")
    A("s_mov_b64 exec, -1")
    for i in range(5): A(f"v_mul_f32 v{34+i}, {D[2*i]}, {D[2*i]}")
    for i in range(5): A(f"v_fmac_f32 v{34+i}, {D[2*i+1]}, {D[2*i+1]}")
    A("v_add_f32 v34, v34, v35"); A("v_add_f32 v36, v36, v37"); A("v_add_f32 v34, v34, v38"); A("v_add_f32 v9, v34, v36")
    red64("v9")
    A("v_mul_f32 v9, s60, v9")
    def bf16r(r):
        A(f"v_cvt_pk_bf16_f32 {r}, {r}, {r}"); A(f"v_and_b32 {r}, 0xffff0000, {r}")
    bf16r("v8"); bf16r("v9")
    A("v_add_f32 v9, 0x3727c5ac, v9")
    bf16r("v9")
    A("v_sqrt_f32 v9, v9")
    bf16r("v9")
    A("v_rcp_f32 v10, v9")
    A("v_fma_f32 v11, -v9, v10, 1.0")
    A("v_fma_f32 v10, v10, v11, v10")
    for i in range(10): A(f"v_sub_f32 {D[i]}, {X[i]}, v8")
    for t in range(5): A(f"v_cvt_pk_bf16_f32 v{34+t}, {D[2*t]}, {D[2*t+1]}")
    for t in range(5):
        A(f"v_lshlrev_b32 {D[2*t]}, 16, v{34+t}"); A(f"v_and_b32 {D[2*t+1]}, 0xffff0000, v{34+t}")
    for i in range(10): A(f"v_mul_f32 {D[i]}, {D[i]}, v10")
    for t in range(5): A(f"v_cvt_pk_bf16_f32 v{34+t}, {D[2*t]}, {D[2*t+1]}")
    for t in range(4): A(f"ds_write_b32 v5, v{34+t} offset:{L_XN+256*t}")
    A("s_mov_b32 exec_hi, 0")
    A(f"ds_write_b32 v5, v38 offset:{L_XN+1024}")
    A("s_mov_b64 exec, -1")
    signal(C_XN)
    stamp(2)
    A.label("L_vgu0")
    A("s_mul_i32 s62, s2, 911"); A("s_lshr_b32 s62, s62, 16")
    A("s_mul_i32 s63, s62, 72"); A("s_sub_u32 s63, s2, s63")
    A("s_mul_i32 s64, s62, 192"); A("s_mul_i32 s65, s31, 24"); A("s_add_u32 s64, s64, s65")
    A("s_mul_i32 s65, s64, 9216"); A("s_lshl_b32 s66, s63, 7"); A("s_add_u32 s65, s65, s66")
    A("v_mul_u32_u24 v4, 55296, v17"); A("v_and_b32 v5, 7, v16"); A("v_lshl_add_u32 v4, v5, 4, v4"); A("v_add_u32 v4, s65, v4")
    A("s_mov_b32 s58, 0x00ff00ff"); A("s_mov_b32 s59, 0x00ff00ff")
    A("v_mov_b32 v8, s16"); A("v_mov_b32 v9, s17"); A("v_mov_b32 v10, s18"); A("v_mov_b32 v11, s19")
    A("v_cndmask_b32 v8, v10, v8, s[58:59]"); A("v_cndmask_b32 v9, v11, v9, s[58:59]")
    A("v_add_co_u32 v8, vcc, v8, v4"); A("v_addc_co_u32 v9, vcc, 0, v9, vcc")
    if exp == "gu256":
        A("s_mul_i32 s60, s2, 1821"); A("s_lshr_b32 s60, s60, 16")
        A("s_mul_i32 s61, s60, 36"); A("s_sub_u32 s61, s2, s61")
        A("s_mul_i32 s60, s60, 96"); A("s_and_b32 s66, s31, 3"); A("s_mul_i32 s66, s66, 24"); A("s_add_u32 s60, s60, s66")
        A("s_mul_i32 s60, s60, 9216"); A("s_lshl_b32 s61, s61, 8"); A("s_add_u32 s60, s60, s61")
        A("v_mul_u32_u24 v4, 55296, v17"); A("v_lshl_add_u32 v4, v16, 4, v4"); A("v_add_u32 v4, s60, v4")
        A("s_cmp_ge_u32 s31, 4"); A("s_cselect_b32 s60, s18, s16"); A("s_cselect_b32 s61, s19, s17")
        A("v_mov_b32 v8, s60"); A("v_mov_b32 v9, s61")
        A("v_add_co_u32 v8, vcc, v8, v4"); A("v_addc_co_u32 v9, vcc, 0, v9, vcc")
    A("s_mov_b32 s46, 9216"); A("s_mov_b32 s47, 0")
    A("v_lshlrev_b32 v5, 4, v1")
    A("s_lshl_b32 s67, s41, 3"); A("s_lshl_b32 s61, s31, 1"); A("s_add_u32 s67, s67, s61")
    spin(C_KISS, 4, vt="v12", sleep=0)
    A("s_setprio 2")
    lng = lab("nogu")
    A(f"s_cmp_ge_u32 s2, {ngu}"); A(f"s_cbranch_scc1 {lng}")
    for j in range(6):
        A(f"global_load_dwordx4 v[{96+4*j}:{99+4*j}], v[8:9], off{NT}")
        if j < 5: A("v_lshl_add_u64 v[8:9], v[8:9], 0, s[46:47]")
    A.label(lng)
    signal(C_GISS)
    lns = lab("nost")
    A("s_cmp_ge_u32 s31, 4"); A(f"s_cbranch_scc1 {lns}")
    if VWAIT: spin(C_GISS, 8, vt="v12", sleep=0)
    tile_loads(64, "v5", 8, "s67")
    A.label(lns)
    A("s_setprio 3")
    stamp(3)
    lgd = lab("gud")
    A(f"s_cmp_ge_u32 s2, {ngu}"); A(f"s_cbranch_scc1 {lgd}")
    A("v_and_b32 v4, 1, v1"); A("v_mul_u32_u24 v4, 1152, v4"); A("v_mul_u32_u24 v6, 12, v17"); A("v_add_u32 v4, v4, v6")
    A("s_lshl_b32 s64, s64, 1"); A("v_add_u32 v4, s64, v4")
    spin(C_XN, 2, vt="v24", sleep=0)
    A(f"ds_read_b32 v24, v4 offset:{L_XN}"); A(f"ds_read_b32 v25, v4 offset:{L_XN+4}"); A(f"ds_read_b32 v26, v4 offset:{L_XN+8}")
    A("v_mov_b32 v27, 0"); A("v_mov_b32 v11, 0"); A("v_mov_b32 v15, 0")
    lw8 = lab("w8"); lw0 = lab("w0")
    A("s_cmp_ge_u32 s31, 4"); A(f"s_cbranch_scc1 {lw0}")
    A("s_waitcnt vmcnt(8) lgkmcnt(0)"); A(f"s_branch {lw8}")
    A.label(lw0); A("s_waitcnt vmcnt(0) lgkmcnt(0)")
    A.label(lw8)
    Lg = [96 + 4*j for j in range(6)]
    sets = [8, 12]
    perms(0, sets[0], Lg, 3)
    for f in range(8):
        if f + 1 < 8: perms(f+1, sets[(f+1) & 1], Lg, 3)
        s = sets[f & 1]
        A(f"v_mfma_f32_16x16x32_bf16 v[{32+4*f}:{35+4*f}], v[24:27], v[{s}:{s+3}], 0")
    for b in range(2):
        for f in range(8): A(f"v_mov_b32 v{96+8*b+f}, v{32+4*f+b}")
    A("v_lshlrev_b32 v4, 5, v16"); A("s_lshl_b32 s60, s31, 10"); A("v_add_u32 v4, s60, v4")
    A("s_mov_b64 exec, 0xffff")
    for b in range(2):
        A(f"ds_write_b128 v4, v[{96+8*b}:{99+8*b}] offset:{L_RG+512*b}")
        A(f"ds_write_b128 v4, v[{100+8*b}:{103+8*b}] offset:{L_RG+512*b+16}")
    A("s_mov_b64 exec, -1")
    arrive(C_RG, "s60")
    A("s_cmp_lg_u32 s60, 7"); A(f"s_cbranch_scc1 {lgd}")
    A("s_mul_i32 s60, s62, 73728"); A("s_lshl_b32 s61, s63, 8"); A("s_add_u32 s60, s60, s61"); A(f"s_add_u32 s60, s60, {WS_GS}")
    base_add(44, 26, "s60")
    A("v_mul_u32_u24 v7, 18432, v17"); A("v_lshl_add_u32 v7, v16, 4, v7")
    A("v_and_b32 v6, 1, v17"); A("v_lshlrev_b32 v6, 9, v6"); A("v_lshrrev_b32 v8, 1, v17"); A("v_lshl_add_u32 v6, v8, 8, v6")
    A("v_lshl_add_u32 v6, v16, 4, v6")
    for w in range(8): A(f"ds_read_b128 v[{96+4*w}:{99+4*w}], v6 offset:{L_RG+1024*w}")
    A("s_waitcnt lgkmcnt(0)")
    for w in range(1, 8):
        for i in range(4): A(f"v_add_f32 v{96+i}, v{96+i}, v{96+4*w+i}")
    tagset(96)
    A("global_store_dwordx4 v7, v[96:99], s[44:45] sc1")
    A("s_mov_b32 s48, 1")
    A("s_branch L_vpv0")
    A.label(lgd)
    A("s_mov_b32 s48, 0")
    A.label("L_vpv0")
    stamp(4)
    A("v_and_b32 v6, 1, v1"); A("v_lshlrev_b32 v6, 2, v6"); A("v_add_u32 v6, v6, v17"); A("v_lshlrev_b32 v6, 4, v6")
    A("s_lshl_b32 s60, s31, 8"); A("v_add_u32 v6, s60, v6")
    A("s_lshl_b32 s60, s31, 2"); A("v_mov_b32 v22, s60")
    A("s_lshl_b32 s60, s31, 4"); A("v_mov_b32 v23, s60")
    for i in range(32): A(f"v_mov_b32 v{32+i}, 0")
    A("s_mov_b32 s43, 0")
    A("s_cmp_ge_u32 s31, 4"); A("s_cbranch_scc1 L_vdyn0")
    A("s_add_u32 s67, s67, 1")
    A("s_setprio 2")
    tile_loads(96, "v5", 8, "s67")
    A("s_setprio 3")
    A("s_mov_b32 s65, 1")
    A("s_branch L_vloop")
    A.label("L_vdyn0")
    A("s_sub_u32 s60, s31, 4"); A("s_mul_i32 s60, s60, 72"); A("v_mov_b32 v18, s60")
    A.label("L_vnext")
    spin(L_TIDX, 0, vt="v12", sleep=0, vaddr="v18", sdst="s67", cmp="s_cmp_lg_u32")
    A("v_add_u32 v18, 4, v18")
    A(f"s_cmp_ge_u32 s67, 128"); A("s_cbranch_scc1 L_vfin")
    A("s_setprio 1")
    tile_loads(64, "v5", 8, "s67")
    A("s_setprio 3")
    A.label("L_vloop")
    lst = lab("vst"); lgo = lab("vgo")
    A("s_cmp_ge_u32 s31, 4"); A(f"s_cbranch_scc0 {lst}")
    A("s_waitcnt vmcnt(0)")
    A(f"s_branch {lgo}")
    A.label(lst)
    lw1 = lab("vw1")
    A("s_cmp_lg_u32 s43, 0"); A(f"s_cbranch_scc1 {lw1}")
    A("s_waitcnt vmcnt(8)"); A(f"s_branch {lgo}")
    A.label(lw1)
    A("s_waitcnt vmcnt(0)"); A("s_mov_b32 s65, 0")
    A.label(lgo)
    sets = [8, 12]
    if PREPERM:
        lpp = lab("npp")
        A("s_cmp_ge_u32 s31, 4"); A(f"s_cbranch_scc0 {lpp}")
        Lv = [64 + 4*j for j in range(8)]
        for f in range(8): perms(f, 96 + 4*f, Lv, 4)
        A.label(lpp)
    A("s_add_u32 s61, s43, 1")
    spin(L_PSEQ, "s61", vt="v12", sleep=0, vaddr="v22")
    A("s_and_b32 s60, s43, 1"); A("s_lshl_b32 s61, s60, 7"); A("v_add_u32 v12, s61, v6")
    A("s_lshl_b32 s61, s60, 3"); A("v_add_u32 v13, s61, v23")
    A(f"ds_read_b128 v[24:27], v12 offset:{L_P}")
    A(f"ds_read_b64 v[28:29], v13 offset:{L_AL}")
    A("s_waitcnt lgkmcnt(0)")
    A("s_mov_b64 exec, 1"); A(f"ds_add_u32 v22, {VONE} offset:{L_PCON}"); A("s_mov_b64 exec, -1")
    for f in range(8):
        A(f"v_mul_f32 v{32+4*f}, v{32+4*f}, v28"); A(f"v_mul_f32 v{33+4*f}, v{33+4*f}, v29")
    def pv(buf):
        Lv = [buf + 4*j for j in range(8)]
        perms(0, sets[0], Lv, 4)
        for f in range(8):
            if f + 1 < 8: perms(f+1, sets[(f+1) & 1], Lv, 4)
            s = sets[f & 1]
            A(f"v_mfma_f32_16x16x32_bf16 v[{32+4*f}:{35+4*f}], v[24:27], v[{s}:{s+3}], v[{32+4*f}:{35+4*f}]")
    l1 = lab("pv1"); l2 = lab("pv2"); l0 = lab("pv0")
    A("s_cmp_ge_u32 s31, 4"); A(f"s_cbranch_scc1 {l0}")
    A("s_bitcmp1_b32 s43, 0"); A(f"s_cbranch_scc1 {l1}")
    pv(64); A(f"s_branch {l2}")
    A.label(l0)
    if PREPERM:
        for f in range(8):
            A(f"v_mfma_f32_16x16x32_bf16 v[{32+4*f}:{35+4*f}], v[24:27], v[{96+4*f}:{99+4*f}], v[{32+4*f}:{35+4*f}]")
    else:
        pv(64)
    A(f"s_branch {l2}")
    A.label(l1)
    pv(96)
    A.label(l2)
    stamp_once(5)
    A("s_add_u32 s43, s43, 1")
    A("s_cmp_ge_u32 s31, 4"); A("s_cbranch_scc1 L_vnext")
    A("s_cmp_lg_u32 s65, 0")
    A("s_cbranch_scc1 L_vloop")
    A.label("L_vfin")
    stamp(6)
    spin(L_MLSEQ, "s43", vt="v12", sleep=0, vaddr="v22")
    for h in range(2):
        for f in range(8): A(f"v_mov_b32 v{64+8*h+f}, v{32+4*f+h}")
    A("v_lshlrev_b32 v4, 5, v16"); A("s_lshl_b32 s60, s31, 10"); A("v_add_u32 v4, s60, v4")
    A("s_mov_b64 exec, 0xffff")
    for h in range(2):
        A(f"ds_write_b128 v4, v[{64+8*h}:{67+8*h}] offset:{L_RO+512*h}")
        A(f"ds_write_b128 v4, v[{68+8*h}:{71+8*h}] offset:{L_RO+512*h+16}")
    A("s_mov_b64 exec, -1")
    arrive(C_RO, "s60")
    A("s_cmp_lg_u32 s60, 7")
    A("s_cbranch_scc1 L_vrole")
    A("v_and_b32 v7, 7, v1"); A("v_lshlrev_b32 v7, 4, v7"); A("v_lshrrev_b32 v8, 5, v1"); A("v_lshl_add_u32 v7, v8, 3, v7")
    A(f"ds_read_b64 v[28:29], v7 offset:{L_ML}")
    A("v_lshlrev_b32 v4, 4, v1")
    for w in range(8): A(f"ds_read_b128 v[{64+4*w}:{67+4*w}], v4 offset:{L_RO+1024*w}")
    A("s_lshl_b32 s60, s38, 4"); A("s_add_u32 s60, s60, s39"); A("s_mul_i32 s60, s60, 1152"); A(f"s_add_u32 s60, s60, {WS_OS}")
    base_add(44, 26, "s60")
    A("s_waitcnt lgkmcnt(8)")
    A("v_mov_b32 v30, v28")
    dpp("v_max_f32", ["v30"], "quad_perm:[1,0,3,2]")
    dpp("v_max_f32", ["v30"], "quad_perm:[2,3,0,1]")
    dpp("v_max_f32", ["v30"], "row_half_mirror")
    A("v_and_b32 v30, 0xfffff000, v30")
    A("v_sub_f32 v31, v28, v30"); A(f"v_mul_f32 v31, {LOG2E:#x}, v31"); A("v_exp_f32 v31, v31")
    A("v_mul_f32 v29, v31, v29")
    dpp("v_add_f32", ["v29"], "quad_perm:[1,0,3,2]")
    dpp("v_add_f32", ["v29"], "quad_perm:[2,3,0,1]")
    dpp("v_add_f32", ["v29"], "row_half_mirror")
    A("s_waitcnt lgkmcnt(0)")
    for w in range(8):
        A(f"v_mov_b32_dpp v{8+(w&3)+0}, v31 row_newbcast:{w} row_mask:0xf bank_mask:0xf")
        if w == 0:
            for i in range(4): A(f"v_mul_f32 v{64+i}, v{64+i}, v8")
        else:
            for i in range(4): A(f"v_fmac_f32 v{64+i}, v{64+4*w+i}, v{8+(w&3)}")
    tagset(64)
    A("global_store_dwordx4 v4, v[64:67], s[44:45] sc1")
    A("v_mov_b32 v68, v30"); A("v_mov_b32 v69, v29"); A("v_mov_b32 v70, 0"); A("v_mov_b32 v71, 0")
    tagset(68)
    A("v_lshrrev_b32 v7, 5, v1"); A("v_lshlrev_b32 v7, 2, v7"); A("v_and_b32 v6, 3, v1"); A("v_add_u32 v7, v7, v6"); A("v_lshlrev_b32 v7, 4, v7")
    A("s_mov_b32 exec_lo, 0xf"); A("s_mov_b32 exec_hi, 0xf")
    A("global_store_dwordx4 v7, v[68:71], s[44:45] offset:1024 sc1")
    A("s_mov_b64 exec, -1")
    signal(F_OP)
    stamp(7)
    A("s_mul_i32 s60, s38, 18432"); A(f"s_add_u32 s60, s60, {WS_OS}")
    base_add(44, 26, "s60")
    A("v_lshrrev_b32 v5, 2, v1"); A("v_mul_u32_u24 v5, 1152, v5")
    A("s_lshl_b32 s60, s40, 6"); A("s_add_u32 s60, s60, 1024"); A("v_add_u32 v7, s60, v5")
    A("v_and_b32 v6, 3, v1"); A("v_lshl_add_u32 v5, v6, 4, v5"); A("s_lshl_b32 s60, s39, 6"); A("v_add_u32 v5, s60, v5")
    if GATE:
        lg = lab("gate")
        A("s_cmp_eq_u32 s31, 0"); A(f"s_cbranch_scc1 {lg}")
        spin(C_WISS, 5, vt="v8", sleep=1)
        A.label(lg)
    poll_pipe([("v5", "s[44:45]", ""), ("v7", "s[44:45]", "")], [64, 68], [96, 104, 112, 120][:NS2])
    stamp(8)
    untag(64); untag(68, 2)
    A("v_mov_b32 v8, v68")
    dpp("v_max_f32", ["v8"], "row_ror:4"); dpp("v_max_f32", ["v8"], "row_ror:8")
    butterfly(16, "v_max_f32", ["v8"], ["v9"])
    A("v_sub_f32 v8, v68, v8"); A(f"v_mul_f32 v8, {LOG2E:#x}, v8"); A("v_exp_f32 v8, v8")
    A("v_mul_f32 v69, v8, v69")
    for i in range(4): A(f"v_mul_f32 v{64+i}, v8, v{64+i}")
    z = ["v64", "v65", "v66", "v67", "v69"]
    dpp("v_add_f32", z, "row_ror:4"); dpp("v_add_f32", z, "row_ror:8")
    butterfly(16, "v_add_f32", z, ["v8", "v9", "v10", "v11", "v12"])
    A("v_rcp_f32 v8, v69")
    A("v_fma_f32 v9, -v69, v8, 1.0"); A("v_fma_f32 v8, v8, v9, v8")
    for i in range(4): A(f"v_mul_f32 v{64+i}, v{64+i}, v8")
    A("v_cvt_pk_bf16_f32 v8, v64, v65"); A("v_cvt_pk_bf16_f32 v9, v66, v67")
    A("v_lshrrev_b32 v10, 5, v1"); A("v_lshlrev_b32 v10, 2, v10"); A("v_and_b32 v11, 3, v1"); A("v_add_u32 v10, v10, v11")
    A("v_lshlrev_b32 v10, 3, v10")
    A("s_mov_b32 exec_lo, 0xf"); A("s_mov_b32 exec_hi, 0xf")
    A(f"ds_write_b64 v10, v[8:9] offset:{L_ZA}")
    A("s_mov_b64 exec, -1")
    signal(F_Z)
    stamp(9)
    A.label("L_vrole")
    A("s_cmp_eq_u32 s31, 0"); A("s_cbranch_scc1 L_vwd")
    A("s_cmp_lg_u32 s31, 1"); A("s_cbranch_scc1 L_vfinal")
    A("s_mul_i32 s60, s2, 18"); A("s_and_b32 s64, s60, 3"); A("s_lshr_b32 s60, s60, 2"); A("s_lshl_b32 s60, s60, 4")
    A(f"s_add_u32 s60, s60, {WS_GS}")
    base_add(44, 26, "s60")
    A("v_lshrrev_b32 v5, 2, v1"); A("v_mul_u32_u24 v5, 18432, v5"); A("v_and_b32 v6, 3, v1"); A("v_lshl_add_u32 v5, v6, 4, v5")
    for i in range(8): A(f"v_mov_b32 v{64+i}, 0")
    lp = lab("gpoll"); ld = lab("gdone")
    A.label(lp)
    A("s_mov_b32 exec_hi, 0x0000ffff")
    A("global_load_dwordx4 v[64:67], v5, s[44:45] sc1")
    A("s_mov_b32 exec_lo, 0x11111111"); A("s_mov_b32 exec_hi, 0x00001111")
    A("global_load_dwordx4 v[68:71], v5, s[44:45] offset:64 sc1")
    A("s_waitcnt vmcnt(0)")
    tagcheck(68, "v8", "v9", "v10")
    A("s_mov_b64 s[62:63], vcc")
    A("s_mov_b32 exec_lo, -1"); A("s_mov_b32 exec_hi, 0x0000ffff")
    tagcheck(64, "v8", "v9", "v10")
    A("s_or_b64 vcc, vcc, s[62:63]")
    A("s_mov_b64 exec, -1")
    A(f"s_cbranch_vccz {ld}")
    A("s_sleep 8")
    A("s_sub_u32 s42, s42, 64")
    A(f"s_cbranch_scc0 {lp}")
    A.label(ld)
    untag(64, 8)
    gv = [f"v{64+i}" for i in range(8)]; tv = [f"v{72+i}" for i in range(8)]
    butterfly(16, "v_add_f32", gv, tv)
    butterfly(32, "v_add_f32", gv, tv)
    for p in range(4): A(f"v_cvt_pk_bf16_f32 v{72+p}, v{64+2*p}, v{65+2*p}")
    for p in range(4):
        A(f"v_lshlrev_b32 v{64+2*p}, 16, v{72+p}"); A(f"v_and_b32 v{65+2*p}, 0xffff0000, v{72+p}")
    for i in range(8):
        A(f"v_mul_f32_dpp v{72+i}, v{64+i}, v{64+i} row_ror:8 row_mask:0xf bank_mask:0xf")
    for p in range(4): A(f"v_cvt_pk_bf16_f32 v{64+p}, v{72+2*p}, v{73+2*p}")
    A("v_bfe_u32 v8, v1, 2, 1"); A("v_lshlrev_b32 v8, 6, v8")
    A("v_lshlrev_b32 v9, 2, v6"); A("v_subrev_u32 v9, s64, v9")
    A("s_mov_b64 exec, 0xff")
    for s_ in range(2):
        for i in range(4):
            A(f"v_add_u32 v10, {16*s_+i}, v9")
            A("v_and_b32 v11, 3, v10"); A("v_lshlrev_b32 v11, 4, v11")
            A("v_lshrrev_b32 v12, 2, v10"); A("v_lshl_add_u32 v11, v12, 1, v11"); A("v_add_u32 v11, v11, v8")
            A("v_cmp_gt_u32 vcc, 18, v10")
            if s_ == 1: A("s_and_b64 vcc, vcc, 0x11")
            A(f"v_mov_b32 v12, {L_DUMMY-L_HA}")
            A("v_cndmask_b32 v11, v12, v11, vcc")
            src = f"v{64 + 2*s_ + (i >> 1)}"
            if i & 1: A(f"ds_write_b16_d16_hi v11, {src} offset:{L_HA}")
            else: A(f"ds_write_b16 v11, {src} offset:{L_HA}")
    A("s_mov_b64 exec, -1")
    signal(F_H)
    stamp(13)
    A("s_branch L_vfinal")
    A.label("L_vwd")
    A("s_mov_b32 s43, 4")
    A("s_waitcnt vmcnt(0)")
    if PRETOUCH: fs_pretouch("s43", True)
    wd_setup("s43")
    if WD_AT == 9: spin(F_OP, 1, vt="v15")
    elif WD_AT == 8: spin(C_RO, 8, vt="v15")
    elif WD_AT: spin(C_END, WD_AT, vt="v15")
    A("s_setprio 0")
    A("s_mov_b32 exec_lo, 0x00ff00ff"); A("s_mov_b32 exec_hi, 0x00ff00ff")
    wd_loads("s43")
    A("s_setprio 3")
    wd_compute("s43", True)
    A.label("L_vfinal")
    NRED = 288 // FSP
    sh = {2: 1, 4: 2, 8: 3}[FSP]; per_row = 16 // FSP
    A(f"s_cmp_ge_u32 s2, {NRED}")
    A("s_cbranch_scc1 L_vend")
    lr = {8: 3, 4: 2, 2: 1}[per_row]
    A(f"s_lshr_b32 s64, s2, {lr+2}"); A(f"s_bfe_u32 s65, s2, {0x20000 | lr:#x}"); A(f"s_and_b32 s66, s2, {per_row-1}")
    A(f"s_bfe_u32 s67, s2, {0x20000 | (lr-1):#x}"); A(f"s_and_b32 s68, s2, {per_row//2-1}")
    A(f"s_cmp_ge_u32 s2, {16*per_row}")
    A("s_cselect_b32 s64, 4, s64"); A("s_cselect_b32 s65, s67, s65"); A("s_cselect_b32 s66, s68, s66")
    A(f"s_lshl_b32 s60, s2, {12+sh}"); A(f"s_lshl_b32 s61, s31, {9+sh}"); A("s_add_u32 s60, s60, s61"); A(f"s_add_u32 s60, s60, {WS_FS}")
    base_add(44, 26, "s60")
    A("v_lshlrev_b32 v5, 4, v1")
    A("s_and_b32 s60, s65, 1"); A("s_mul_i32 s60, s60, 1152"); A("s_lshl_b32 s61, s64, 8"); A("s_add_u32 s60, s60, s61")
    A(f"s_lshl_b32 s61, s66, {4+sh}"); A("s_add_u32 s60, s60, s61"); A("s_lshr_b32 s61, s65, 1"); A("s_lshl_b32 s61, s61, 3"); A("s_add_u32 s64, s60, s61")
    A(f"v_and_b32 v6, {FSP-1}, v1"); A("v_lshlrev_b32 v7, 4, v6"); A("v_add_u32 v6, s64, v7")
    A("global_load_dwordx2 v[30:31], v6, s[4:5]")
    spin(C_F, 5)
    stamp(10)
    if FSP == 2:
        poll_pipe([("v5", "s[44:45]", "")], [64], [96, 100, 104, 108])
    elif FSP == 4:
        poll_pipe([("v5", "s[44:45]", ""), ("v5", "s[44:45]", " offset:1024")], [64, 68], [96, 104, 112])
    else:
        poll_pipe([("v5", "s[44:45]", f" offset:{1024*i}") for i in range(4)], [64, 68, 72, 76], [96, 112])
    stamp(11)
    untag(64, 4 * (FSP // 2))
    z = ["v64", "v65", "v66", "v67"]
    if FSP == 8:
        for i in range(4): A(f"v_add_f32 v{64+i}, v{64+i}, v{68+i}"); A(f"v_add_f32 v{72+i}, v{72+i}, v{76+i}")
        for i in range(4): A(f"v_add_f32 v{64+i}, v{64+i}, v{72+i}")
    elif FSP == 4:
        for i in range(4): A(f"v_add_f32 v{64+i}, v{64+i}, v{68+i}")
        dpp("v_add_f32", z, "row_ror:4")
    else:
        dpp("v_add_f32", z, "quad_perm:[2,3,0,1]")
        dpp("v_add_f32", z, "row_ror:4")
    dpp("v_add_f32", z, "row_ror:8")
    butterfly(16, "v_add_f32", z, ["v8", "v9", "v10", "v11"])
    butterfly(32, "v_add_f32", z, ["v8", "v9", "v10", "v11"])
    A(f"s_lshl_b32 s60, s31, {4+sh}"); A("v_add_u32 v8, s60, v7")
    A(f"s_mov_b64 exec, {(1 << FSP) - 1}")
    A(f"ds_write_b128 v8, v[64:67] offset:{L_FR}")
    A("s_mov_b64 exec, -1")
    arrive(C_FR, "s60")
    A("s_cmp_lg_u32 s60, 7")
    A("s_cbranch_scc1 L_vend")
    for w in range(8): A(f"ds_read_b128 v[{64+4*w}:{67+4*w}], v7 offset:{L_FR+16*FSP*w}")
    A("s_waitcnt lgkmcnt(0)")
    for w in range(1, 8):
        for i in range(4): A(f"v_add_f32 v{64+i}, v{64+i}, v{64+4*w+i}")
    A("v_lshlrev_b32 v8, 16, v30"); A("v_and_b32 v9, 0xffff0000, v30")
    A("v_lshlrev_b32 v10, 16, v31"); A("v_and_b32 v11, 0xffff0000, v31")
    for i in range(4): A(f"v_add_f32 v{64+i}, v{64+i}, v{8+i}")
    A("v_cvt_pk_bf16_f32 v8, v64, v65"); A("v_cvt_pk_bf16_f32 v9, v66, v67")
    A(f"s_mov_b64 exec, {(1 << FSP) - 1}")
    A("global_store_dwordx2 v6, v[8:9], s[22:23]")
    A("s_cmp_lg_u32 s2, 0")
    A("s_cbranch_scc1 L_vend2")
    A("s_mov_b64 exec, 1")
    A("v_mov_b32 v8, s28")
    A(f"global_store_dword {VZ}, v8, s[26:27] sc1")
    A.label("L_vend2")
    A("s_mov_b64 exec, -1")
    stamp(12)
    A.label("L_vend")
    stamp_dump()
    A.label("L_end")
    A("s_endpgm")
    lines, nn = A.finish()
    hdr = open("cdna_kernels/" + NAME + ".s.ref").read().split("; Override launch geometry")[0]
    out = hdr
    out += f"; @launch grid=(256,1,1) block=(1024,1,1) lds={LDS_BYTES}\n"
    out += f""".amdgcn_target "amdgcn-amd-amdhsa--gfx950"
.text
.globl {NAME}_kernel
.p2align 8
.type {NAME}_kernel,@function
{NAME}_kernel:
"""
    out += "\n".join(("    " + l) if not l.endswith(":") else l for l in lines)
    out += f"""
.section .rodata,"a"
.p2align 6
.amdhsa_kernel {NAME}_kernel
  .amdhsa_next_free_vgpr 128
  .amdhsa_next_free_sgpr 102
  .amdhsa_accum_offset 128
  .amdhsa_group_segment_fixed_size 0
  .amdhsa_kernarg_size 96
  .amdhsa_user_sgpr_count 2
  .amdhsa_user_sgpr_kernarg_segment_ptr 1
  .amdhsa_system_sgpr_workgroup_id_x 1
.end_amdhsa_kernel
"""
    return out, nn

if __name__ == "__main__":
    o, nn = gen()
    open("k5.s", "w").write(o)
    print("nops inserted:", nn, "lines:", o.count("\n"))
    o, nn = gen(diag=True)
    open("k5d.s", "w").write(o)
    for nm, kw in (("ng", dict(GATE=False, NS2=4)), ("g2", dict(NS2=2)), ("ng1", dict(GATE=False, NS2=1))):
        o, nn = gen(**kw)
        open(f"k5_{nm}.s", "w").write(o)
```

```python
import sys
from asmlib import Asm
NAME = "parallel_sum__gqa_block_cached__glu_gated_bilinear__decode"

WS_EPOCH = 0
WS_CTR = 0x2000
WS_QS = 0x10000
WS_OS = 0x50000
WS_GS = 0xA0000
WS_FS = 0x100000
WS_STAMP = 0x800000
(C_XN, C_QP, C_KISS, C_GISS, C_Q, C_RO, C_RG, F_Z, F_H, C_F, C_FR, C_END, F_OP, C_WISS) = [4 * i for i in range(14)]
L_PSEQ = 64
L_PCON = 96
L_TIDX = 128
L_MLSEQ = 416
ZERO_BYTES = 512
L_XN = 512
L_Q = 2816
L_P = 3328
L_AL = 5376
L_ML = 5504
L_ZA = 5632
L_HA = 5696
L_DUMMY = 5824
L_FR = 6144
L_QP = 8192
L_RO = 16384
L_RG = 24576
LDS_BYTES = 32768
LOG2E = 0x3FB8AA3B
SCALE = 0x3DB504F3
NEGBIG = 0xFF000000
NT = " nt"
MAXT = 16
NDYN = 64
TEND = 0xFFFF

def gen(diag=False, mimic=True, ngu=216, exp=None, QPOLL_AT=8, FIRST_AT=8, VWAIT=True, WD_AT=4, FSP=4, EARLYK=True, FASTQK=False, PREPERM=False, PRETOUCH=False, GATE=True, NS2=2, DYNP=1, FINALADD=False, RELAYOUT=True):
    A = Asm()
    uid = [0]
    def lab(p):
        uid[0] += 1; return f"L_{p}_{uid[0]}"
    VZ, VONE, VMASK = "v2", "v3", "v19"
    def stamp(i):
        if not diag: return
        assert i < 16
        A(f"s_memrealtime s[{70+2*i}:{71+2*i}]")
    def stamp_once(i):
        if not diag: return
        l = lab("so")
        A(f"s_cmp_lg_u32 s{70+2*i}, 0"); A(f"s_cbranch_scc1 {l}"); A(f"s_memrealtime s[{70+2*i}:{71+2*i}]"); A("s_waitcnt lgkmcnt(0)"); A.label(l)
    def stamp_idx(base, n):
        if not diag: return
        for k in range(n):
            l = lab("si")
            A(f"s_cmp_lg_u32 s43, {k}"); A(f"s_cbranch_scc1 {l}"); A(f"s_memrealtime s[{70+2*(base+k)}:{71+2*(base+k)}]"); A("s_waitcnt lgkmcnt(0)"); A.label(l)
    def stamp_dump():
        if not diag: return
        A("s_waitcnt lgkmcnt(0)")
        A("s_mov_b64 exec, 1")
        A(f"s_lshl_b32 s60, s2, 12"); A("s_lshl_b32 s61, s30, 8"); A("s_add_u32 s60, s60, s61")
        A(f"s_add_u32 s60, s60, {WS_STAMP}")
        A("v_mov_b32 v4, s60")
        for i in range(16):
            A(f"v_mov_b32 v6, s{70+2*i}"); A(f"v_mov_b32 v7, s{71+2*i}")
            A(f"global_store_dwordx2 v4, v[6:7], s[26:27] offset:{8*i}")
            A("s_nop 1")
        A("s_mov_b64 exec, -1")
    def signal(cnt, vaddr=None, wait=True):
        if wait: A("s_waitcnt lgkmcnt(0)")
        A("s_mov_b64 exec, 1")
        A(f"ds_add_u32 {vaddr or VZ}, {VONE} offset:{cnt}")
        A("s_mov_b64 exec, -1")
    def arrive(cnt, sdst, vt="v4"):
        A("s_waitcnt lgkmcnt(0)")
        A("s_mov_b64 exec, 1")
        A(f"ds_add_rtn_u32 {vt}, {VZ}, {VONE} offset:{cnt}")
        A("s_mov_b64 exec, -1")
        A("s_waitcnt lgkmcnt(0)")
        A(f"v_readfirstlane_b32 {sdst}, {vt}")
    def spin(cnt, n, vt="v4", sleep=1, vaddr=None, sdst="s60", cmp="s_cmp_ge_u32"):
        l = lab("spin"); d = lab("spind")
        A.label(l)
        A(f"ds_read_b32 {vt}, {vaddr or VZ} offset:{cnt}")
        A("s_waitcnt lgkmcnt(0)")
        A(f"v_readfirstlane_b32 {sdst}, {vt}")
        A(f"{cmp} {sdst}, {n}")
        A(f"s_cbranch_scc1 {d}")
        A("s_sub_u32 s42, s42, 1")
        A(f"s_cbranch_scc1 {d}")
        if sleep: A(f"s_sleep {sleep}")
        A(f"s_branch {l}")
        A.label(d)
    def tagcheck(r, vt0, vt1, vt2):
        A(f"v_xor_b32 {vt0}, s32, v{r}")
        A(f"v_xor_b32 {vt1}, s33, v{r+1}")
        A(f"v_xor_b32 {vt2}, s34, v{r+2}")
        A(f"v_or3_b32 {vt0}, {vt0}, {vt1}, {vt2}")
        A(f"v_xor_b32 {vt1}, s35, v{r+3}")
        A(f"v_or_b32 {vt0}, {vt0}, {vt1}")
        A(f"v_and_b32 {vt0}, {VMASK}, {vt0}")
        A(f"v_cmp_ne_u32 vcc, 0, {vt0}")
    def tagbad(grans, t0, t1, t2):
        first = True
        for r in grans:
            A(f"v_xor_b32 {t1}, s32, v{r}"); A(f"v_xor_b32 {t2}, s33, v{r+1}")
            if first: A(f"v_or_b32 {t0}, {t1}, {t2}")
            else: A(f"v_or3_b32 {t0}, {t0}, {t1}, {t2}")
            A(f"v_xor_b32 {t1}, s34, v{r+2}"); A(f"v_xor_b32 {t2}, s35, v{r+3}")
            A(f"v_or3_b32 {t0}, {t0}, {t1}, {t2}")
            first = False
        A(f"v_and_b32 {t0}, {VMASK}, {t0}")
        A(f"v_cmp_ne_u32 vcc, 0, {t0}")
    def poll_pipe(loads, res, sets, mask_lo="-1", mask_hi="-1", temps=("v8", "v9", "v10")):
        nl = len(loads); NS = len(sets)
        def issue(k):
            for i, (va, sb, ex) in enumerate(loads):
                A(f"global_load_dwordx4 v[{sets[k]+4*i}:{sets[k]+4*i+3}], {va}, {sb}{ex} sc1")
        A(f"s_mov_b32 s62, {mask_lo}"); A(f"s_mov_b32 s63, {mask_hi}")
        A("s_mov_b64 exec, s[62:63]")
        for k in range(NS): issue(k)
        A("s_mov_b64 exec, -1")
        lp = lab("pp"); ld = lab("ppd")
        A.label(lp)
        for k in range(NS):
            A(f"s_waitcnt vmcnt({(NS-1)*nl})")
            tagbad([sets[k]+4*i for i in range(nl)], *temps)
            ls = lab("pps")
            A("s_andn2_b64 s[66:67], s[62:63], vcc")
            A(f"s_cbranch_scc0 {ls}")
            A("s_mov_b64 exec, s[66:67]")
            for i in range(nl):
                for j in range(4): A(f"v_mov_b32 v{res[i]+j}, v{sets[k]+4*i+j}")
            A("s_and_b64 s[62:63], s[62:63], vcc")
            A("s_mov_b64 exec, -1")
            A(f"s_cbranch_scc0 {ld}")
            A.label(ls)
            A("s_mov_b64 exec, s[62:63]")
            issue(k)
            A("s_mov_b64 exec, -1")
        A("s_sub_u32 s42, s42, 64")
        A(f"s_cbranch_scc0 {lp}")
        A.label(ld)
        A("s_mov_b64 exec, -1")
    def tagset(r):
        for i in range(4): A(f"v_bfi_b32 v{r+i}, {VMASK}, s{32+i}, v{r+i}")
    def untag(r, n=4):
        for i in range(n): A(f"v_and_b32 v{r+i}, 0xfffff000, v{r+i}")
    def tags_from_epoch():
        A("s_waitcnt lgkmcnt(0)")
        A("s_add_u32 s28, s28, 1")
        A("s_and_b32 s32, s28, 0xfff")
        A("s_bfe_u32 s33, s28, 0xc000c")
        A("s_lshr_b64 s[60:61], s[28:29], 24"); A("s_and_b32 s34, s60, 0xfff")
        A("s_lshr_b64 s[60:61], s[28:29], 36"); A("s_and_b32 s35, s60, 0xfff")
    def butterfly(kind, op, regs, tmp):
        for r, t in zip(regs, tmp): A(f"v_mov_b32 {t}, {r}")
        for r, t in zip(regs, tmp): A(f"v_permlane{kind}_swap_b32 {r}, {t}")
        for r, t in zip(regs, tmp): A(f"{op} {r}, {r}, {t}")
    def dpp(op, regs, ctrl):
        for r in regs: A(f"{op}_dpp {r}, {r}, {r} {ctrl} row_mask:0xf bank_mask:0xf")
    def base_add(dst, src, off):
        A(f"s_add_u32 s{dst}, s{src}, {off}")
        A(f"s_addc_u32 s{dst+1}, s{src+1}, 0")
    def perms(f, setreg, L, npairs):
        c = f >> 1; sel = "s37" if f & 1 else "s36"
        for i in range(npairs):
            A(f"v_perm_b32 v{setreg+i}, v{L[2*i+1]+c}, v{L[2*i]+c}, {sel}")
    def lds_write1(vaddr, vdata, off):
        A("s_mov_b64 exec, 1")
        A(f"ds_write_b32 {vaddr}, {vdata} offset:{off}")
        A("s_mov_b64 exec, -1")
    def tile_loads(buf, voff, base_src, s_tile):
        A(f"s_lshl_b32 s60, {s_tile}, 13"); A("s_add_u32 s60, s60, s3")
        base_add(44, base_src, "s60")
        for i in range(8):
            if i == 4: base_add(44, 44, 4096)
            A(f"global_load_dwordx4 v[{buf+4*i}:{buf+3+4*i}], {voff}, s[44:45] offset:{(i%4)*1024}{NT}")

    def ticket_req():
        A("s_mov_b32 s66, 1"); A("s_mov_b32 s67, 0")
        A("s_atomic_add_x2 s[66:67], s[50:51], 0 glc")
    def ticket_fin(sdst):
        lr = lab("tk"); lo = lab("tko"); le = lab("tke"); lx = lab("tkx")
        A(f"s_cmp_ge_u32 s49, {MAXT}"); A(f"s_cbranch_scc1 {le}")
        A.label(lr)
        A("s_waitcnt lgkmcnt(0)")
        A("s_lshr_b32 s68, s66, 16"); A("s_cmp_eq_u32 s67, s28"); A("s_cselect_b32 s69, 1, 0")
        A("s_and_b32 s61, s29, 0xffff"); A("s_cmp_eq_u32 s68, s61"); A("s_cselect_b32 s68, s69, 0")
        A("s_cmp_lg_u32 s68, 0"); A(f"s_cbranch_scc1 {lo}")
        A("s_sub_u32 s42, s42, 4096"); A(f"s_cbranch_scc1 {le}")
        ticket_req()
        A(f"s_branch {lr}")
        A.label(lo)
        A("s_and_b32 s66, s66, 0xffff")
        A(f"s_cmp_ge_u32 s66, {NDYN}"); A(f"s_cbranch_scc1 {le}")
        A(f"s_add_u32 {sdst}, s66, 64")
        A(f"s_branch {lx}")
        A.label(le)
        A(f"s_mov_b32 {sdst}, {TEND}")
        A.label(lx)
        A("s_add_u32 s49, s49, 1")
        A(f"v_mov_b32 v12, {sdst}")
        lds_write1("v18", "v12", L_TIDX)
        A("v_add_u32 v18, 4, v18")
    def ticket_req_if():
        l = lab("tq")
        A(f"s_cmp_ge_u32 s49, {MAXT}"); A(f"s_cbranch_scc1 {l}")
        ticket_req()
        A.label(l)
    A("s_cmp_ge_u32 s2, 256")
    A("s_cbranch_scc1 L_end")
    A("s_load_dwordx16 s[4:19], s[0:1], 0")
    A("s_load_dwordx8 s[20:27], s[0:1], 64")
    if diag:
        A("s_memrealtime s[70:71]")
        for i in range(72, 102): A(f"s_mov_b32 s{i}, 0")
        A("s_getreg_b32 s100, hwreg(HW_REG_XCC_ID)")
    A("v_lshrrev_b32 v4, 6, v0")
    A("v_and_b32 v1, 63, v0")
    A("v_readfirstlane_b32 s30, v4")
    A("s_lshr_b32 s40, s2, 7")
    A("s_bfe_u32 s38, s2, 0x40003")
    A("s_and_b32 s41, s2, 7")
    A("s_lshl_b32 s39, s40, 3")
    A("s_or_b32 s39, s39, s41")
    A("s_lshr_b32 s3, s2, 3"); A("s_lshl_b32 s3, s3, 20")
    A("s_mov_b32 s36, 0x05040100")
    A("s_mov_b32 s37, 0x07060302")
    A("s_mov_b32 s42, 0x200000")
    A(f"v_mov_b32 {VZ}, 0")
    A(f"v_mov_b32 {VONE}, 1")
    A(f"v_mov_b32 {VMASK}, 0xfff")
    A("s_and_b32 s31, s30, 7")
    A("v_and_b32 v16, 15, v1")
    A("v_lshrrev_b32 v17, 4, v1")
    A("s_cmp_ge_u32 s30, 8")
    A("s_cbranch_scc1 L_vwave")

    A("v_bfe_u32 v4, v1, 2, 2")
    A("v_lshlrev_b32 v5, 8, v4")
    A("v_lshl_or_b32 v5, v17, 6, v5")
    A("v_and_b32 v4, 3, v1")
    A("v_lshl_or_b32 v5, v4, 4, v5")
    A("s_lshl_b32 s64, s41, 3"); A("s_lshl_b32 s61, s31, 1"); A("s_add_u32 s64, s64, s61")
    A("s_waitcnt lgkmcnt(0)")
    A("s_load_dwordx2 s[28:29], s[26:27], 0")
    A("s_cmp_ge_u32 s31, 4")
    A("s_cbranch_scc1 L_kdb" if RELAYOUT else "s_cbranch_scc1 L_kdyn00")
    A("s_setprio 2")
    if EARLYK: tile_loads(64, "v5", 6, "s64")
    A("s_barrier")
    if not EARLYK: tile_loads(64, "v5", 6, "s64")
    A("s_add_u32 s64, s64, 1")
    tile_loads(96, "v5", 6, "s64")
    signal(C_KISS)
    A.c("MARK_K2")
    A("s_setprio 2")
    tags_from_epoch()
    A("v_lshrrev_b32 v6, 3, v1"); A("v_lshlrev_b32 v6, 10, v6")
    A("v_and_b32 v7, 7, v1"); A("v_lshl_or_b32 v6, v7, 4, v6")
    A("s_lshl_b32 s62, s31, 8"); A("v_add_u32 v6, s62, v6")
    A("s_lshl_b32 s60, s38, 1"); A("s_add_u32 s60, s60, s40"); A("s_lshl_b32 s60, s60, 13")
    A(f"s_add_u32 s60, s60, {WS_QS}")
    base_add(46, 26, "s60")
    if exp != "noq": spin(C_GISS, QPOLL_AT, vt="v8")
    stamp(1)
    A("s_setprio 3")
    lp = lab("qpoll"); ld = lab("qdone")
    A.label(lp)
    A("global_load_dwordx4 v[20:23], v6, s[46:47] sc1")
    A("global_load_dwordx4 v[24:27], v6, s[46:47] offset:128 sc1")
    A("s_waitcnt vmcnt(0)")
    tagcheck(20, "v8", "v9", "v10")
    A("s_mov_b64 s[62:63], vcc")
    tagcheck(24, "v8", "v9", "v10")
    A("s_or_b64 vcc, vcc, s[62:63]")
    if exp == "noq": A(f"s_branch {ld}")
    A(f"s_cbranch_vccz {ld}")
    A("s_sub_u32 s42, s42, 64")
    A(f"s_cbranch_scc0 {lp}")
    A.label(ld)
    untag(20, 8)
    q = [f"v{20+i}" for i in range(8)]
    tq = [f"v{32+i}" for i in range(8)]
    dpp("v_add_f32", q, "row_ror:8")
    butterfly(16, "v_add_f32", q, tq)
    butterfly(32, "v_add_f32", q, tq)
    for p in range(4): A(f"v_cvt_pk_bf16_f32 v{8+p}, v{20+2*p}, v{21+2*p}")
    A("v_lshlrev_b32 v12, 3, v7")
    A("s_lshl_b32 s60, s31, 7"); A("v_add_u32 v12, s60, v12")
    A("s_mov_b64 exec, 0xff")
    A(f"ds_write_b64 v12, v[8:9] offset:{L_Q}")
    A(f"ds_write_b64 v12, v[10:11] offset:{L_Q+64}")
    A("s_mov_b64 exec, -1")
    signal(C_Q)
    A("s_setprio 2")
    A("s_branch L_kq")
    A.label("L_kdyn00")
    if not RELAYOUT: A("s_barrier")
    tags_from_epoch()
    A("s_lshr_b32 s60, s2, 3"); A("s_lshl_b32 s60, s60, 8"); A(f"s_add_u32 s60, s60, {WS_CTR}")
    base_add(50, 26, "s60")
    A("s_sub_u32 s60, s31, 4"); A("s_mul_i32 s60, s60, 72"); A("v_mov_b32 v18, s60")
    A("s_mov_b32 s49, 0")
    spin(C_GISS, FIRST_AT, vt="v8")
    stamp(1)
    A("s_setprio 2")
    ticket_req()
    ticket_fin("s64")
    stamp(3)
    A("s_setprio 1")
    lnt = lab("qnt")
    A(f"s_cmp_eq_u32 s64, {TEND}"); A(f"s_cbranch_scc1 {lnt}")
    tile_loads(64, "v5", 6, "s64")
    A.label(lnt)
    A("s_setprio 2")
    A.label("L_kq")
    for (r, val) in ((52, 0x22222222), (54, 0x44444444), (56, 0x88888888)):
        A(f"s_mov_b32 s{r}, {val:#x}"); A(f"s_mov_b32 s{r+1}, {val:#x}")
    A("s_mov_b32 s58, 0x00ff00ff"); A("s_mov_b32 s59, 0x00ff00ff")
    A("v_bfe_u32 v8, v16, 2, 1"); A("v_lshlrev_b32 v8, 8, v8"); A("v_lshl_or_b32 v8, v17, 6, v8")
    A("v_and_b32 v9, 3, v16"); A("v_lshl_or_b32 v8, v9, 4, v8")
    A(f"v_mov_b32 v20, {NEGBIG:#x}")
    A("v_mov_b32 v21, 0")
    A("s_lshl_b32 s60, s31, 2"); A("v_mov_b32 v22, s60")
    A("v_lshrrev_b32 v23, 2, v1"); A("v_lshlrev_b32 v23, 4, v23"); A("s_lshl_b32 s60, s31, 8"); A("v_add_u32 v23, s60, v23")
    A("s_mov_b32 s43, 0")
    spin(C_Q, 4, vt="v10", sleep=0)
    A(f"ds_read_b128 v[12:15], v8 offset:{L_Q}")
    A("s_waitcnt lgkmcnt(0)")
    for i in range(4): A(f"v_cndmask_b32 v{24+i}, 0, v{12+i}, s[58:59]")
    for i in range(4): A(f"v_cndmask_b32 v{28+i}, v{12+i}, 0, s[58:59]")
    stamp(2)
    A("s_mov_b32 s65, 1")
    A("s_cmp_ge_u32 s31, 4")
    A("s_cbranch_scc0 L_kstatic")
    A(f"s_cmp_eq_u32 s64, {TEND}")
    A("s_cbranch_scc1 L_kfin_dyn")
    def qk(buf):
        S = ["v8", "v9", "v10", "v11"]
        for t in range(4):
            A(f"v_mfma_f32_16x16x32_bf16 v[{32+4*t}:{35+4*t}], v[24:27], v[{buf+8*t}:{buf+3+8*t}], 0")
        for t in range(4):
            A(f"v_mfma_f32_16x16x32_bf16 v[{32+4*t}:{35+4*t}], v[28:31], v[{buf+4+8*t}:{buf+7+8*t}], v[{32+4*t}:{35+4*t}]")
        for t in range(4): A(f"v_cndmask_b32 {S[t]}, v{32+4*t}, v{33+4*t}, s[52:53]")
        for t in range(4): A(f"v_cndmask_b32 {S[t]}, {S[t]}, v{34+4*t}, s[54:55]")
        for t in range(4): A(f"v_cndmask_b32 {S[t]}, {S[t]}, v{35+4*t}, s[56:57]")
        dpp("v_add_f32", S, "quad_perm:[1,0,3,2]")
        dpp("v_add_f32", S, "quad_perm:[2,3,0,1]")
        A(f"s_mov_b32 s60, {SCALE:#x}")
        if mimic:
            for p in range(2): A(f"v_cvt_pk_bf16_f32 v{48+p}, {S[2*p]}, {S[2*p+1]}")
            for p in range(2):
                A(f"v_lshlrev_b32 {S[2*p]}, 16, v{48+p}"); A(f"v_and_b32 {S[2*p+1]}, 0xffff0000, v{48+p}")
            for t in range(4): A(f"v_mul_f32 {S[t]}, s60, {S[t]}")
            for p in range(2): A(f"v_cvt_pk_bf16_f32 v{48+p}, {S[2*p]}, {S[2*p+1]}")
            for p in range(2):
                A(f"v_lshlrev_b32 {S[2*p]}, 16, v{48+p}"); A(f"v_and_b32 {S[2*p+1]}, 0xffff0000, v{48+p}")
        else:
            for t in range(4): A(f"v_mul_f32 {S[t]}, s60, {S[t]}")
        A(f"v_max3_f32 v48, {S[0]}, {S[1]}, {S[2]}")
        A(f"v_max3_f32 v48, v48, {S[3]}, v20")
        dpp("v_max_f32", ["v48"], "row_ror:4")
        dpp("v_max_f32", ["v48"], "row_ror:8")
        butterfly(32, "v_max_f32", ["v48"], ["v49"])
        A(f"s_mov_b32 s60, {LOG2E:#x}")
        A("v_sub_f32 v50, v20, v48"); A("v_mul_f32 v50, s60, v50")
        A("v_mul_f32 v49, s60, v48")
        for t in range(4): A(f"v_fma_f32 {S[t]}, {S[t]}, s60, -v49")
        A("v_exp_f32 v50, v50")
        for t in range(4): A(f"v_exp_f32 {S[t]}, {S[t]}")
        A("v_mov_b32 v20, v48")
        if FASTQK:
            for t in range(4): A(f"v_mov_b32 v{52+t}, {S[t]}")
            A(f"v_add_f32 v51, {S[0]}, {S[1]}"); A(f"v_add_f32 v60, {S[2]}, {S[3]}")
            for t in range(4): A(f"v_permlane32_swap_b32 {S[t]}, v{52+t}")
            for t in range(4): A(f"v_cvt_pk_bf16_f32 v{56+t}, {S[t]}, v{52+t}")
            A("v_add_f32 v51, v51, v60")
            A("v_fma_f32 v21, v21, v50, v51")
        else:
            A(f"v_add_f32 v51, {S[0]}, {S[1]}"); A(f"v_add_f32 v52, {S[2]}, {S[3]}"); A("v_add_f32 v51, v51, v52")
            dpp("v_add_f32", ["v51"], "row_ror:4")
            dpp("v_add_f32", ["v51"], "row_ror:8")
            butterfly(32, "v_add_f32", ["v51"], ["v52"])
            A("v_fma_f32 v21, v21, v50, v51")
            for t in range(4): A(f"v_mov_b32 v{52+t}, {S[t]}")
            for t in range(4): A(f"v_permlane32_swap_b32 {S[t]}, v{52+t}")
            for t in range(4): A(f"v_cvt_pk_bf16_f32 v{56+t}, {S[t]}, v{52+t}")
    A.label("L_kstatic")
    A.label("L_kloop")
    lst = lab("kst"); lgo = lab("kgo")
    A("s_cmp_ge_u32 s31, 4"); A(f"s_cbranch_scc0 {lst}")
    A("s_waitcnt vmcnt(0)")
    stamp_once(4)
    stamp_idx(7, 3)
    A(f"s_branch {lgo}")
    A.label(lst)
    lw1 = lab("kw1")
    A("s_cmp_lg_u32 s43, 0"); A(f"s_cbranch_scc1 {lw1}")
    A("s_waitcnt vmcnt(8)"); stamp_once(4); A(f"s_branch {lgo}")
    A.label(lw1)
    A("s_waitcnt vmcnt(0)"); A("s_mov_b32 s65, 0")
    A.label(lgo)
    lnw = lab("knw")
    A("s_cmp_lt_u32 s43, 2"); A(f"s_cbranch_scc1 {lnw}")
    A("s_sub_u32 s61, s43, 1")
    spin(L_PCON, "s61", vt="v12", sleep=0, vaddr="v22")
    A.label(lnw)
    lq1 = lab("kq1"); lq2 = lab("kq2")
    A("s_cmp_ge_u32 s31, 4"); A(f"s_cbranch_scc0 {lq1}")
    ticket_req_if()
    qk(64); A(f"s_branch {lq2}")
    A.label(lq1)
    lq3 = lab("kq3")
    A("s_bitcmp1_b32 s43, 0"); A(f"s_cbranch_scc1 {lq3}")
    qk(64); A(f"s_branch {lq2}")
    A.label(lq3)
    qk(96)
    A.label(lq2)
    A("s_and_b32 s60, s43, 1"); A("s_lshl_b32 s61, s60, 7"); A("v_add_u32 v12, s61, v23")
    A("s_mov_b32 exec_lo, 0x11111111"); A("s_mov_b32 exec_hi, 0")
    A(f"ds_write_b128 v12, v[56:59] offset:{L_P}")
    A("s_mov_b64 exec, 0x10001")
    A("v_lshrrev_b32 v13, 2, v1")
    A("s_lshl_b32 s61, s31, 4"); A("s_lshl_b32 s60, s60, 3"); A("s_add_u32 s60, s60, s61"); A("v_add_u32 v14, s60, v13")
    A(f"ds_write_b32 v14, v50 offset:{L_AL}")
    A("s_mov_b64 exec, -1")
    if FASTQK:
        signal(L_PSEQ, vaddr="v22", wait=False)
        A("v_mov_b32 v61, v21")
        dpp("v_add_f32", ["v61"], "row_ror:4")
        dpp("v_add_f32", ["v61"], "row_ror:8")
        butterfly(32, "v_add_f32", ["v61"], ["v62"])
        A("v_mov_b32 v60, v20")
        A("s_mov_b64 exec, 0x10001")
        A("v_lshrrev_b32 v13, 1, v1"); A("v_add_u32 v13, s61, v13")
        A(f"ds_write_b64 v13, v[60:61] offset:{L_ML}")
        A("s_mov_b64 exec, -1")
        signal(L_MLSEQ, vaddr="v22", wait=False)
    else:
        A("s_mov_b64 exec, 0x10001")
        A("v_lshlrev_b32 v13, 1, v13"); A("v_add_u32 v13, s61, v13")
        A(f"ds_write_b64 v13, v[20:21] offset:{L_ML}")
        A("s_mov_b64 exec, -1")
        signal(L_PSEQ, vaddr="v22")
        signal(L_MLSEQ, vaddr="v22")
    stamp_once(5)
    A("s_add_u32 s43, s43, 1")
    lsx = lab("ksx")
    A("s_cmp_ge_u32 s31, 4"); A(f"s_cbranch_scc0 {lsx}")
    if diag:
        A("s_sub_u32 s43, s43, 1"); stamp_idx(10, 3); A("s_add_u32 s43, s43, 1")
    ticket_fin("s64")
    A(f"s_cmp_eq_u32 s64, {TEND}"); A("s_cbranch_scc1 L_kfin_dyn")
    A(f"s_setprio {DYNP}")
    tile_loads(64, "v5", 6, "s64")
    A("s_setprio 2")
    A("s_branch L_kloop")
    A.label(lsx)
    A("s_cmp_lg_u32 s65, 0")
    A("s_cbranch_scc1 L_kloop")
    A("s_branch L_ktail")
    A.label("L_kfin_dyn")
    signal(C_END)
    stamp(6)
    if diag: A("s_mov_b32 s98, s43")
    A("s_branch L_kend")
    def fs_addr(sT, half):
        sh = {2: 1, 4: 2, 8: 3}[FSP]
        per_row = 16 // FSP
        A(f"v_lshrrev_b32 v7, {sh}, v16")
        if half: A(f"v_lshl_add_u32 v7, v17, {3-sh}, v7"); A(f"v_add_u32 v7, {16*per_row}, v7")
        else:
            A(f"v_lshl_add_u32 v7, v17, {4-sh}, v7"); A(f"s_mul_i32 s60, {sT}, {4*per_row}"); A("v_add_u32 v7, s60, v7")
        A(f"v_lshlrev_b32 v7, {12+sh}, v7")
        A(f"v_and_b32 v8, {FSP-1}, v16"); A("v_lshl_add_u32 v7, v8, 4, v7")
        A(f"s_lshl_b32 s60, s2, {4+sh}"); A(f"s_add_u32 s60, s60, {WS_FS}")
        base_add(44, 26, "s60")
    def fs_pretouch(sT, half):
        fs_addr(sT, half)
        A("s_xor_b32 s60, s32, 0xfff"); A("v_mov_b32 v8, s60"); A("v_mov_b32 v9, 0"); A("v_mov_b32 v10, 0"); A("v_mov_b32 v11, 0")
        if half: A("s_mov_b32 exec_lo, 0x00ff00ff"); A("s_mov_b32 exec_hi, 0x00ff00ff")
        A("global_store_dwordx4 v7, v[8:11], s[44:45] sc1")
        if half: A("s_mov_b64 exec, -1")
    def wd_loads(sT):
        for j in range(4):
            A(f"global_load_dwordx4 v[{88+4*j}:{91+4*j}], v13, s[48:49] offset:{1152*j}{NT}")
        for j in range(4):
            A(f"global_load_dwordx4 v[{104+4*j}:{107+4*j}], v14, s[50:51]{NT}")
            A("v_add_u32 v14, 4608, v14")
        A("s_mov_b32 exec_hi, 0")
        A("global_load_dwordx4 v[120:123], v14, s[50:51]" + NT)
        A("s_mov_b64 exec, -1")
        signal(C_WISS, wait=False) if "wait" in signal.__code__.co_varnames else signal(C_WISS)
    def wd_setup(sT):
        A("v_lshlrev_b32 v12, 4, v16"); A(f"s_lshl_b32 s66, {sT}, 8"); A("v_add_u32 v12, s66, v12")
        A("v_mul_u32_u24 v13, 4608, v17"); A("v_add_u32 v13, v13, v12")
        A("v_mul_u32_u24 v14, 1152, v17"); A("v_add_u32 v14, v14, v12")
        A("s_lshl_b32 s66, s38, 8"); A("s_lshl_b32 s67, s39, 4"); A("s_add_u32 s66, s66, s67"); A("s_mul_i32 s66, s66, 1152")
        base_add(48, 12, "s66")
        A("s_mul_i32 s66, s2, 20736")
        base_add(50, 20, "s66")
        for i in range(4): A(f"v_mov_b32 v{120+i}, 0")
    def wd_compute(sT, half):
        A("s_waitcnt vmcnt(0)")
        stamp(7)
        Lw = [88 + 4*j for j in range(4)]; Ld = [104 + 4*j for j in range(4)]
        for f in range(8):
            c = f >> 1; sel = "s37" if f & 1 else "s36"
            for i in range(2): A(f"v_perm_b32 v{32+2*f+i}, v{Lw[2*i+1]+c}, v{Lw[2*i]+c}, {sel}")
        for f in range(8):
            c = f >> 1; sel = "s37" if f & 1 else "s36"
            for i in range(2): A(f"v_perm_b32 v{48+4*f+i}, v{Ld[2*i+1]+c}, v{Ld[2*i]+c}, {sel}")
            if f & 1: A(f"v_lshrrev_b32 v{48+4*f+2}, 16, v{120+c}")
            else: A(f"v_and_b32 v{48+4*f+2}, 0xffff, v{120+c}")
            A(f"v_mov_b32 v{48+4*f+3}, 0")
        A("v_and_b32 v4, 1, v1"); A("v_lshlrev_b32 v4, 2, v4"); A("v_add_u32 v4, v4, v17")
        A("v_lshlrev_b32 v5, 3, v4"); A("v_lshlrev_b32 v6, 4, v4")
        fs_addr(sT, half)
        spin(F_H, 1, vt="v15", sleep=0)
        A(f"ds_read_b128 v[12:15], v6 offset:{L_HA}")
        A("s_waitcnt lgkmcnt(0)")
        for f in range(8):
            A(f"v_mfma_f32_16x16x32_bf16 v[{80+4*f}:{83+4*f}], v[12:15], v[{48+4*f}:{51+4*f}], 0")
        spin(F_Z, 1, vt="v10", sleep=0)
        stamp(8)
        A(f"ds_read_b64 v[8:9], v5 offset:{L_ZA}")
        A("s_waitcnt lgkmcnt(0)")
        for f in range(8):
            A(f"v_mfma_f32_16x16x16_bf16 v[{80+4*f}:{83+4*f}], v[8:9], v[{32+2*f}:{33+2*f}], v[{80+4*f}:{83+4*f}]")
        A("s_mov_b32 s60, 0xffff0000"); A("s_mov_b32 s61, 0xffff0000")
        A("s_mov_b32 s62, 0"); A("s_mov_b32 s63, -1")
        for i in range(4): A(f"v_cndmask_b32 v{32+i}, v{80+4*i}, v{81+4*i}, s[60:61]")
        for i in range(4): A(f"v_cndmask_b32 v{36+i}, v{96+4*i}, v{97+4*i}, s[60:61]")
        for i in range(4): A(f"v_cndmask_b32 v{32+i}, v{32+i}, v{36+i}, s[62:63]")
        tagset(32)
        if half: A("s_mov_b32 exec_lo, 0x00ff00ff"); A("s_mov_b32 exec_hi, 0x00ff00ff")
        A("global_store_dwordx4 v7, v[32:35], s[44:45] sc1")
        if half: A("s_mov_b64 exec, -1")
        signal(C_F)
        stamp(9)
    A.label("L_ktail")
    if PRETOUCH: fs_pretouch("s31", False)
    wd_setup("s31")
    if WD_AT == 9: spin(F_OP, 1, vt="v15")
    elif WD_AT == 8: spin(C_RO, 8, vt="v15")
    elif WD_AT: spin(C_END, WD_AT, vt="v15")
    A("s_setprio 0")
    wd_loads("s31")
    A("s_setprio 2")
    stamp(6)
    wd_compute("s31", False)
    A.label("L_kend")
    stamp_dump()
    A("s_endpgm")

    A.c("MARK_V0")
    A.label("L_vwave")
    A("s_setprio 3")
    A("s_cmp_ge_u32 s31, 6")
    A("s_cbranch_scc1 L_v67")
    A("s_lshr_b32 s60, s39, 1"); A("s_mul_i32 s60, s60, 72"); A("s_mul_i32 s61, s31, 12"); A("s_add_u32 s64, s60, s61")
    A("s_lshl_b32 s60, s64, 13"); A("s_lshl_b32 s61, s38, 9"); A("s_add_u32 s60, s60, s61")
    A("s_and_b32 s61, s39, 1"); A("s_lshl_b32 s61, s61, 8"); A("s_add_u32 s60, s60, s61")
    A("v_lshlrev_b32 v4, 13, v17"); A("v_lshl_add_u32 v4, v16, 4, v4")
    A("s_waitcnt lgkmcnt(0)")
    A("s_load_dwordx2 s[28:29], s[26:27], 0")
    base_add(44, 10, "s60")
    for j in range(3):
        A(f"global_load_dwordx4 v[{64+4*j}:{67+4*j}], v4, s[44:45]{NT}")
        if j < 2: base_add(44, 44, 32768)
    A("s_barrier")
    A("v_and_b32 v4, 1, v1"); A("v_mul_u32_u24 v4, 1152, v4")
    A("v_lshl_add_u32 v4, v17, 1, v4")
    A("s_lshl_b32 s60, s64, 1"); A("v_add_u32 v4, s60, v4")
    tags_from_epoch()
    spin(C_XN, 2, vt="v5", sleep=0)
    A(f"ds_read_u16 v8, v4 offset:{L_XN}")
    A(f"ds_read_u16 v10, v4 offset:{L_XN+8}")
    A(f"ds_read_u16 v9, v4 offset:{L_XN+16}")
    A("s_waitcnt lgkmcnt(0)")
    A("v_lshl_or_b32 v8, v10, 16, v8")
    A("s_waitcnt vmcnt(0)")
    stamp(1)
    sets = [10, 12]
    def qfrag(f):
        c = f >> 1; s = sets[f & 1]; sel = "s37" if f & 1 else "s36"
        A(f"v_perm_b32 v{s}, v{68+c}, v{64+c}, {sel}")
        if f & 1: A(f"v_lshrrev_b32 v{s+1}, 16, v{72+c}")
        else: A(f"v_and_b32 v{s+1}, 0xffff, v{72+c}")
    qfrag(0)
    for f in range(8):
        if f + 1 < 8: qfrag(f + 1)
        s = sets[f & 1]
        A(f"v_mfma_f32_16x16x16_bf16 v[{32+4*f}:{35+4*f}], v[8:9], v[{s}:{s+1}], 0")
    for b in range(2):
        for f in range(8): A(f"v_mov_b32 v{64+8*b+f}, v{32+4*f+b}")
    A("v_lshlrev_b32 v4, 5, v16")
    A("s_lshl_b32 s60, s31, 10"); A("v_add_u32 v4, s60, v4")
    A("s_mov_b64 exec, 0xffff")
    for b in range(2):
        A(f"ds_write_b128 v4, v[{64+8*b}:{67+8*b}] offset:{L_QP+512*b}")
        A(f"ds_write_b128 v4, v[{68+8*b}:{71+8*b}] offset:{L_QP+512*b+16}")
    A("s_mov_b64 exec, -1")
    arrive(C_QP, "s60")
    A("s_cmp_lg_u32 s60, 5")
    A("s_cbranch_scc1 L_vgu0")
    A("v_lshlrev_b32 v4, 4, v1")
    for w in range(6): A(f"ds_read_b128 v[{64+4*w}:{67+4*w}], v4 offset:{L_QP+1024*w}")
    A("v_lshrrev_b32 v5, 5, v1"); A("v_lshlrev_b32 v5, 13, v5")
    A("v_and_b32 v6, 31, v1"); A("v_lshl_add_u32 v5, v6, 4, v5")
    A("s_lshl_b32 s60, s38, 14"); A("s_lshr_b32 s61, s39, 1"); A("s_lshl_b32 s61, s61, 10"); A("s_add_u32 s60, s60, s61")
    A("s_and_b32 s61, s39, 1"); A("s_lshl_b32 s61, s61, 9"); A("s_add_u32 s60, s60, s61")
    A(f"s_add_u32 s60, s60, {WS_QS}")
    base_add(44, 26, "s60")
    A("s_waitcnt lgkmcnt(0)")
    for w in range(1, 6):
        for i in range(4): A(f"v_add_f32 v{64+i}, v{64+i}, v{64+4*w+i}")
    tagset(64)
    A("global_store_dwordx4 v5, v[64:67], s[44:45] sc1")
    stamp(2)
    A("s_branch L_vgu0")
    A.label("L_v67")
    A("s_sub_u32 s64, s31, 6"); A("s_mul_i32 s64, s64, 1152")
    A("v_lshlrev_b32 v4, 2, v1"); A("v_add_u32 v5, s64, v4")
    for i in range(10): A(f"v_mov_b32 v{64+i}, 0")
    A("s_waitcnt lgkmcnt(0)")
    A("s_load_dwordx2 s[28:29], s[26:27], 0")
    for t in range(4): A(f"global_load_dword v{64+t}, v5, s[4:5] offset:{256*t}")
    A("s_mov_b32 exec_hi, 0")
    A("global_load_dword v68, v5, s[4:5] offset:1024")
    A("s_mov_b64 exec, -1")
    lz = lab("noz")
    A("s_cmp_lg_u32 s31, 6"); A(f"s_cbranch_scc1 {lz}")
    A(f"ds_write_b32 v4, {VZ}"); A(f"ds_write_b32 v4, {VZ} offset:256")
    A(f"ds_write_b32 v4, {VZ} offset:{L_HA}")
    A(f"ds_write_b32 v4, {VZ} offset:{L_FR}")
    A(f"v_mov_b32 v8, {NEGBIG:#x}"); A("v_mov_b32 v9, 0"); A("v_lshlrev_b32 v10, 3, v1")
    A("s_mov_b64 exec, 0xffff")
    A(f"ds_write_b64 v10, v[8:9] offset:{L_ML}")
    A("s_mov_b64 exec, -1")
    A("s_waitcnt lgkmcnt(0)")
    A.label(lz)
    A("s_barrier")
    tags_from_epoch()
    lz = lab("noc")
    A("s_cmp_lg_u32 s31, 6"); A(f"s_cbranch_scc1 {lz}")
    A("s_cmp_lg_u32 s41, 0"); A(f"s_cbranch_scc1 {lz}")
    A("s_lshl_b32 s60, s29, 16"); A("v_mov_b32 v8, s60"); A("v_mov_b32 v9, s28")
    A("s_lshr_b32 s60, s2, 3"); A("s_lshl_b32 s60, s60, 8"); A(f"s_add_u32 s60, s60, {WS_CTR}"); A("v_mov_b32 v10, s60")
    A("s_mov_b64 exec, 1")
    A("global_store_dwordx2 v10, v[8:9], s[26:27] sc1")
    A("s_mov_b64 exec, -1")
    A.label(lz)
    A("s_waitcnt vmcnt(1)")
    lx = lab("xw")
    A("s_cmp_lg_u32 s31, 6"); A("s_cselect_b32 s60, 1, 0"); A("s_cmp_lg_u32 s41, 0"); A("s_cselect_b32 s60, 1, s60")
    A("s_cmp_eq_u32 s60, 0"); A(f"s_cbranch_scc1 {lx}")
    A("s_waitcnt vmcnt(0)")
    A.label(lx)
    stamp(1)
    X = [f"v{80+i}" for i in range(10)]
    for t in range(5):
        A(f"v_lshlrev_b32 {X[2*t]}, 16, v{64+t}")
        A(f"v_and_b32 {X[2*t+1]}, 0xffff0000, v{64+t}")
    def red64(dst):
        dpp("v_add_f32", [dst], "quad_perm:[1,0,3,2]")
        dpp("v_add_f32", [dst], "quad_perm:[2,3,0,1]")
        dpp("v_add_f32", [dst], "row_ror:4")
        dpp("v_add_f32", [dst], "row_ror:8")
        butterfly(16, "v_add_f32", [dst], ["v33"])
        butterfly(32, "v_add_f32", [dst], ["v33"])
    for i in range(5): A(f"v_add_f32 v{34+i}, {X[2*i]}, {X[2*i+1]}")
    A("v_add_f32 v34, v34, v35"); A("v_add_f32 v36, v36, v37"); A("v_add_f32 v34, v34, v38"); A("v_add_f32 v8, v34, v36")
    red64("v8")
    A("s_mov_b32 s60, 0x3ae38e39")
    A("v_mul_f32 v8, s60, v8")
    D = [f"v{100+i}" for i in range(10)]
    for i in range(8): A(f"v_sub_f32 {D[i]}, {X[i]}, v8")
    A(f"v_mov_b32 {D[8]}, 0"); A(f"v_mov_b32 {D[9]}, 0")
    A("s_mov_b32 exec_hi, 0")
    for i in (8, 9): A(f"v_sub_f32 {D[i]}, {X[i]}, v8")
    A("s_mov_b64 exec, -1")
    for i in range(5): A(f"v_mul_f32 v{34+i}, {D[2*i]}, {D[2*i]}")
    for i in range(5): A(f"v_fmac_f32 v{34+i}, {D[2*i+1]}, {D[2*i+1]}")
    A("v_add_f32 v34, v34, v35"); A("v_add_f32 v36, v36, v37"); A("v_add_f32 v34, v34, v38"); A("v_add_f32 v9, v34, v36")
    red64("v9")
    A("v_mul_f32 v9, s60, v9")
    def bf16r(r):
        A(f"v_cvt_pk_bf16_f32 {r}, {r}, {r}"); A(f"v_and_b32 {r}, 0xffff0000, {r}")
    bf16r("v8"); bf16r("v9")
    A("v_add_f32 v9, 0x3727c5ac, v9")
    bf16r("v9")
    A("v_sqrt_f32 v9, v9")
    bf16r("v9")
    A("v_rcp_f32 v10, v9")
    A("v_fma_f32 v11, -v9, v10, 1.0")
    A("v_fma_f32 v10, v10, v11, v10")
    for i in range(10): A(f"v_sub_f32 {D[i]}, {X[i]}, v8")
    for t in range(5): A(f"v_cvt_pk_bf16_f32 v{34+t}, {D[2*t]}, {D[2*t+1]}")
    for t in range(5):
        A(f"v_lshlrev_b32 {D[2*t]}, 16, v{34+t}"); A(f"v_and_b32 {D[2*t+1]}, 0xffff0000, v{34+t}")
    for i in range(10): A(f"v_mul_f32 {D[i]}, {D[i]}, v10")
    for t in range(5): A(f"v_cvt_pk_bf16_f32 v{34+t}, {D[2*t]}, {D[2*t+1]}")
    for t in range(4): A(f"ds_write_b32 v5, v{34+t} offset:{L_XN+256*t}")
    A("s_mov_b32 exec_hi, 0")
    A(f"ds_write_b32 v5, v38 offset:{L_XN+1024}")
    A("s_mov_b64 exec, -1")
    signal(C_XN)
    stamp(2)
    A.c("MARK_V1")
    A.label("L_vgu0")
    A("s_mul_i32 s62, s2, 911"); A("s_lshr_b32 s62, s62, 16")
    A("s_mul_i32 s63, s62, 72"); A("s_sub_u32 s63, s2, s63")
    A("s_mul_i32 s64, s62, 192"); A("s_mul_i32 s65, s31, 24"); A("s_add_u32 s64, s64, s65")
    A("s_mul_i32 s65, s64, 9216"); A("s_lshl_b32 s66, s63, 7"); A("s_add_u32 s65, s65, s66")
    A("v_mul_u32_u24 v4, 55296, v17"); A("v_and_b32 v5, 7, v16"); A("v_lshl_add_u32 v4, v5, 4, v4"); A("v_add_u32 v4, s65, v4")
    A("s_mov_b32 s58, 0x00ff00ff"); A("s_mov_b32 s59, 0x00ff00ff")
    A("v_mov_b32 v8, s16"); A("v_mov_b32 v9, s17"); A("v_mov_b32 v10, s18"); A("v_mov_b32 v11, s19")
    A("v_cndmask_b32 v8, v10, v8, s[58:59]"); A("v_cndmask_b32 v9, v11, v9, s[58:59]")
    A("v_add_co_u32 v8, vcc, v8, v4"); A("v_addc_co_u32 v9, vcc, 0, v9, vcc")
    if exp == "gu256":
        A("s_mul_i32 s60, s2, 1821"); A("s_lshr_b32 s60, s60, 16")
        A("s_mul_i32 s61, s60, 36"); A("s_sub_u32 s61, s2, s61")
        A("s_mul_i32 s60, s60, 96"); A("s_and_b32 s66, s31, 3"); A("s_mul_i32 s66, s66, 24"); A("s_add_u32 s60, s60, s66")
        A("s_mul_i32 s60, s60, 9216"); A("s_lshl_b32 s61, s61, 8"); A("s_add_u32 s60, s60, s61")
        A("v_mul_u32_u24 v4, 55296, v17"); A("v_lshl_add_u32 v4, v16, 4, v4"); A("v_add_u32 v4, s60, v4")
        A("s_cmp_ge_u32 s31, 4"); A("s_cselect_b32 s60, s18, s16"); A("s_cselect_b32 s61, s19, s17")
        A("v_mov_b32 v8, s60"); A("v_mov_b32 v9, s61")
        A("v_add_co_u32 v8, vcc, v8, v4"); A("v_addc_co_u32 v9, vcc, 0, v9, vcc")
    A("s_mov_b32 s46, 9216"); A("s_mov_b32 s47, 0")
    A("v_lshlrev_b32 v5, 4, v1")
    A("s_lshl_b32 s67, s41, 3"); A("s_lshl_b32 s61, s31, 1"); A("s_add_u32 s67, s67, s61")
    spin(C_KISS, 4, vt="v12", sleep=0)
    A("s_setprio 2")
    lng = lab("nogu")
    A(f"s_cmp_ge_u32 s2, {ngu}"); A(f"s_cbranch_scc1 {lng}")
    for j in range(6):
        A(f"global_load_dwordx4 v[{96+4*j}:{99+4*j}], v[8:9], off{NT}")
        if j < 5: A("v_lshl_add_u64 v[8:9], v[8:9], 0, s[46:47]")
    A.label(lng)
    signal(C_GISS)
    lns = lab("nost")
    A("s_cmp_ge_u32 s31, 4"); A(f"s_cbranch_scc1 {lns}")
    if VWAIT: spin(C_GISS, 8, vt="v12", sleep=0)
    tile_loads(64, "v5", 8, "s67")
    A.label(lns)
    A("s_setprio 3")
    stamp(3)
    lgd = lab("gud")
    A(f"s_cmp_ge_u32 s2, {ngu}"); A(f"s_cbranch_scc1 {lgd}")
    A("v_and_b32 v4, 1, v1"); A("v_mul_u32_u24 v4, 1152, v4"); A("v_mul_u32_u24 v6, 12, v17"); A("v_add_u32 v4, v4, v6")
    A("s_lshl_b32 s64, s64, 1"); A("v_add_u32 v4, s64, v4")
    spin(C_XN, 2, vt="v24", sleep=0)
    A(f"ds_read_b32 v24, v4 offset:{L_XN}"); A(f"ds_read_b32 v25, v4 offset:{L_XN+4}"); A(f"ds_read_b32 v26, v4 offset:{L_XN+8}")
    A("v_mov_b32 v27, 0"); A("v_mov_b32 v11, 0"); A("v_mov_b32 v15, 0")
    lw8 = lab("w8"); lw0 = lab("w0")
    A("s_cmp_ge_u32 s31, 4"); A(f"s_cbranch_scc1 {lw0}")
    A("s_waitcnt vmcnt(8) lgkmcnt(0)"); A(f"s_branch {lw8}")
    A.label(lw0); A("s_waitcnt vmcnt(0) lgkmcnt(0)")
    A.label(lw8)
    Lg = [96 + 4*j for j in range(6)]
    sets = [8, 12]
    perms(0, sets[0], Lg, 3)
    for f in range(8):
        if f + 1 < 8: perms(f+1, sets[(f+1) & 1], Lg, 3)
        s = sets[f & 1]
        A(f"v_mfma_f32_16x16x32_bf16 v[{32+4*f}:{35+4*f}], v[24:27], v[{s}:{s+3}], 0")
    for b in range(2):
        for f in range(8): A(f"v_mov_b32 v{96+8*b+f}, v{32+4*f+b}")
    A("v_lshlrev_b32 v4, 5, v16"); A("s_lshl_b32 s60, s31, 10"); A("v_add_u32 v4, s60, v4")
    A("s_mov_b64 exec, 0xffff")
    for b in range(2):
        A(f"ds_write_b128 v4, v[{96+8*b}:{99+8*b}] offset:{L_RG+512*b}")
        A(f"ds_write_b128 v4, v[{100+8*b}:{103+8*b}] offset:{L_RG+512*b+16}")
    A("s_mov_b64 exec, -1")
    arrive(C_RG, "s60")
    A("s_cmp_lg_u32 s60, 7"); A(f"s_cbranch_scc1 {lgd}")
    A("s_mul_i32 s60, s62, 73728"); A("s_lshl_b32 s61, s63, 8"); A("s_add_u32 s60, s60, s61"); A(f"s_add_u32 s60, s60, {WS_GS}")
    base_add(44, 26, "s60")
    A("v_mul_u32_u24 v7, 18432, v17"); A("v_lshl_add_u32 v7, v16, 4, v7")
    A("v_and_b32 v6, 1, v17"); A("v_lshlrev_b32 v6, 9, v6"); A("v_lshrrev_b32 v8, 1, v17"); A("v_lshl_add_u32 v6, v8, 8, v6")
    A("v_lshl_add_u32 v6, v16, 4, v6")
    for w in range(8): A(f"ds_read_b128 v[{96+4*w}:{99+4*w}], v6 offset:{L_RG+1024*w}")
    A("s_waitcnt lgkmcnt(0)")
    for w in range(1, 8):
        for i in range(4): A(f"v_add_f32 v{96+i}, v{96+i}, v{96+4*w+i}")
    tagset(96)
    A("global_store_dwordx4 v7, v[96:99], s[44:45] sc1")
    A("s_mov_b32 s48, 1")
    A("s_branch L_vpv0")
    A.label(lgd)
    A("s_mov_b32 s48, 0")
    A.label("L_vpv0")
    stamp(4)
    A("v_and_b32 v6, 1, v1"); A("v_lshlrev_b32 v6, 2, v6"); A("v_add_u32 v6, v6, v17"); A("v_lshlrev_b32 v6, 4, v6")
    A("s_lshl_b32 s60, s31, 8"); A("v_add_u32 v6, s60, v6")
    A("s_lshl_b32 s60, s31, 2"); A("v_mov_b32 v22, s60")
    A("s_lshl_b32 s60, s31, 4"); A("v_mov_b32 v23, s60")
    for i in range(32): A(f"v_mov_b32 v{32+i}, 0")
    A("s_mov_b32 s43, 0")
    A("s_cmp_ge_u32 s31, 4"); A("s_cbranch_scc1 L_vdyn0")
    A("s_add_u32 s67, s67, 1")
    A("s_setprio 2")
    tile_loads(96, "v5", 8, "s67")
    A("s_setprio 3")
    A("s_mov_b32 s65, 1")
    A("s_branch L_vloop")
    A.label("L_vdyn0")
    A("s_sub_u32 s60, s31, 4"); A("s_mul_i32 s60, s60, 72"); A("v_mov_b32 v18, s60")
    A.label("L_vnext")
    spin(L_TIDX, 0, vt="v12", sleep=0, vaddr="v18", sdst="s67", cmp="s_cmp_lg_u32")
    A("v_add_u32 v18, 4, v18")
    A(f"s_cmp_ge_u32 s67, 128"); A("s_cbranch_scc1 L_vfin")
    lp1 = lab("vp1"); lp2 = lab("vp2")
    A("s_cmp_eq_u32 s43, 0"); A(f"s_cbranch_scc1 {lp1}")
    A(f"s_setprio {DYNP}"); A(f"s_branch {lp2}")
    A.label(lp1); A("s_setprio 1")
    A.label(lp2)
    tile_loads(64, "v5", 8, "s67")
    A("s_setprio 3")
    A.label("L_vloop")
    lst = lab("vst"); lgo = lab("vgo")
    A("s_cmp_ge_u32 s31, 4"); A(f"s_cbranch_scc0 {lst}")
    A("s_waitcnt vmcnt(0)")
    A(f"s_branch {lgo}")
    A.label(lst)
    lw1 = lab("vw1")
    A("s_cmp_lg_u32 s43, 0"); A(f"s_cbranch_scc1 {lw1}")
    A("s_waitcnt vmcnt(8)"); A(f"s_branch {lgo}")
    A.label(lw1)
    A("s_waitcnt vmcnt(0)"); A("s_mov_b32 s65, 0")
    A.label(lgo)
    sets = [8, 12]
    if PREPERM:
        lpp = lab("npp")
        A("s_cmp_ge_u32 s31, 4"); A(f"s_cbranch_scc0 {lpp}")
        Lv = [64 + 4*j for j in range(8)]
        for f in range(8): perms(f, 96 + 4*f, Lv, 4)
        A.label(lpp)
    A("s_add_u32 s61, s43, 1")
    spin(L_PSEQ, "s61", vt="v12", sleep=0, vaddr="v22")
    A("s_and_b32 s60, s43, 1"); A("s_lshl_b32 s61, s60, 7"); A("v_add_u32 v12, s61, v6")
    A("s_lshl_b32 s61, s60, 3"); A("v_add_u32 v13, s61, v23")
    A(f"ds_read_b128 v[24:27], v12 offset:{L_P}")
    A(f"ds_read_b64 v[28:29], v13 offset:{L_AL}")
    A("s_waitcnt lgkmcnt(0)")
    A("s_mov_b64 exec, 1"); A(f"ds_add_u32 v22, {VONE} offset:{L_PCON}"); A("s_mov_b64 exec, -1")
    for f in range(8):
        A(f"v_mul_f32 v{32+4*f}, v{32+4*f}, v28"); A(f"v_mul_f32 v{33+4*f}, v{33+4*f}, v29")
    def pv(buf):
        Lv = [buf + 4*j for j in range(8)]
        perms(0, sets[0], Lv, 4)
        for f in range(8):
            if f + 1 < 8: perms(f+1, sets[(f+1) & 1], Lv, 4)
            s = sets[f & 1]
            A(f"v_mfma_f32_16x16x32_bf16 v[{32+4*f}:{35+4*f}], v[24:27], v[{s}:{s+3}], v[{32+4*f}:{35+4*f}]")
    l1 = lab("pv1"); l2 = lab("pv2"); l0 = lab("pv0")
    A("s_cmp_ge_u32 s31, 4"); A(f"s_cbranch_scc1 {l0}")
    A("s_bitcmp1_b32 s43, 0"); A(f"s_cbranch_scc1 {l1}")
    pv(64); A(f"s_branch {l2}")
    A.label(l0)
    if PREPERM:
        for f in range(8):
            A(f"v_mfma_f32_16x16x32_bf16 v[{32+4*f}:{35+4*f}], v[24:27], v[{96+4*f}:{99+4*f}], v[{32+4*f}:{35+4*f}]")
    else:
        pv(64)
    A(f"s_branch {l2}")
    A.label(l1)
    pv(96)
    A.label(l2)
    stamp_once(5)
    A("s_add_u32 s43, s43, 1")
    A("s_cmp_ge_u32 s31, 4"); A("s_cbranch_scc1 L_vnext")
    A("s_cmp_lg_u32 s65, 0")
    A("s_cbranch_scc1 L_vloop")
    A.label("L_vfin")
    stamp(6)
    spin(L_MLSEQ, "s43", vt="v12", sleep=0, vaddr="v22")
    for h in range(2):
        for f in range(8): A(f"v_mov_b32 v{64+8*h+f}, v{32+4*f+h}")
    A("v_lshlrev_b32 v4, 5, v16"); A("s_lshl_b32 s60, s31, 10"); A("v_add_u32 v4, s60, v4")
    A("s_mov_b64 exec, 0xffff")
    for h in range(2):
        A(f"ds_write_b128 v4, v[{64+8*h}:{67+8*h}] offset:{L_RO+512*h}")
        A(f"ds_write_b128 v4, v[{68+8*h}:{71+8*h}] offset:{L_RO+512*h+16}")
    A("s_mov_b64 exec, -1")
    arrive(C_RO, "s60")
    A("s_cmp_lg_u32 s60, 7")
    A("s_cbranch_scc1 L_vrole")
    A("v_and_b32 v7, 7, v1"); A("v_lshlrev_b32 v7, 4, v7"); A("v_lshrrev_b32 v8, 5, v1"); A("v_lshl_add_u32 v7, v8, 3, v7")
    A(f"ds_read_b64 v[28:29], v7 offset:{L_ML}")
    A("v_lshlrev_b32 v4, 4, v1")
    for w in range(8): A(f"ds_read_b128 v[{64+4*w}:{67+4*w}], v4 offset:{L_RO+1024*w}")
    A("s_lshl_b32 s60, s38, 4"); A("s_add_u32 s60, s60, s39"); A("s_mul_i32 s60, s60, 1152"); A(f"s_add_u32 s60, s60, {WS_OS}")
    base_add(44, 26, "s60")
    A("s_waitcnt lgkmcnt(8)")
    A("v_mov_b32 v30, v28")
    dpp("v_max_f32", ["v30"], "quad_perm:[1,0,3,2]")
    dpp("v_max_f32", ["v30"], "quad_perm:[2,3,0,1]")
    dpp("v_max_f32", ["v30"], "row_half_mirror")
    A("v_and_b32 v30, 0xfffff000, v30")
    A("v_sub_f32 v31, v28, v30"); A(f"v_mul_f32 v31, {LOG2E:#x}, v31"); A("v_exp_f32 v31, v31")
    A("v_mul_f32 v29, v31, v29")
    dpp("v_add_f32", ["v29"], "quad_perm:[1,0,3,2]")
    dpp("v_add_f32", ["v29"], "quad_perm:[2,3,0,1]")
    dpp("v_add_f32", ["v29"], "row_half_mirror")
    A("s_waitcnt lgkmcnt(0)")
    for w in range(8):
        A(f"v_mov_b32_dpp v{8+(w&3)+0}, v31 row_newbcast:{w} row_mask:0xf bank_mask:0xf")
        if w == 0:
            for i in range(4): A(f"v_mul_f32 v{64+i}, v{64+i}, v8")
        else:
            for i in range(4): A(f"v_fmac_f32 v{64+i}, v{64+4*w+i}, v{8+(w&3)}")
    tagset(64)
    A("global_store_dwordx4 v4, v[64:67], s[44:45] sc1")
    A("v_mov_b32 v68, v30"); A("v_mov_b32 v69, v29"); A("v_mov_b32 v70, 0"); A("v_mov_b32 v71, 0")
    tagset(68)
    A("v_lshrrev_b32 v7, 5, v1"); A("v_lshlrev_b32 v7, 2, v7"); A("v_and_b32 v6, 3, v1"); A("v_add_u32 v7, v7, v6"); A("v_lshlrev_b32 v7, 4, v7")
    A("s_mov_b32 exec_lo, 0xf"); A("s_mov_b32 exec_hi, 0xf")
    A("global_store_dwordx4 v7, v[68:71], s[44:45] offset:1024 sc1")
    A("s_mov_b64 exec, -1")
    signal(F_OP)
    stamp(7)
    A("s_mul_i32 s60, s38, 18432"); A(f"s_add_u32 s60, s60, {WS_OS}")
    base_add(44, 26, "s60")
    A("v_lshrrev_b32 v5, 2, v1"); A("v_mul_u32_u24 v5, 1152, v5")
    A("s_lshl_b32 s60, s40, 6"); A("s_add_u32 s60, s60, 1024"); A("v_add_u32 v7, s60, v5")
    A("v_and_b32 v6, 3, v1"); A("v_lshl_add_u32 v5, v6, 4, v5"); A("s_lshl_b32 s60, s39, 6"); A("v_add_u32 v5, s60, v5")
    if GATE:
        lg = lab("gate")
        A("s_cmp_eq_u32 s31, 0"); A(f"s_cbranch_scc1 {lg}")
        spin(C_WISS, 5, vt="v8", sleep=1)
        A.label(lg)
    poll_pipe([("v5", "s[44:45]", ""), ("v7", "s[44:45]", "")], [64, 68], [96, 104, 112, 120][:NS2])
    stamp(8)
    untag(64); untag(68, 2)
    A("v_mov_b32 v8, v68")
    dpp("v_max_f32", ["v8"], "row_ror:4"); dpp("v_max_f32", ["v8"], "row_ror:8")
    butterfly(16, "v_max_f32", ["v8"], ["v9"])
    A("v_sub_f32 v8, v68, v8"); A(f"v_mul_f32 v8, {LOG2E:#x}, v8"); A("v_exp_f32 v8, v8")
    A("v_mul_f32 v69, v8, v69")
    for i in range(4): A(f"v_mul_f32 v{64+i}, v8, v{64+i}")
    z = ["v64", "v65", "v66", "v67", "v69"]
    dpp("v_add_f32", z, "row_ror:4"); dpp("v_add_f32", z, "row_ror:8")
    butterfly(16, "v_add_f32", z, ["v8", "v9", "v10", "v11", "v12"])
    A("v_rcp_f32 v8, v69")
    A("v_fma_f32 v9, -v69, v8, 1.0"); A("v_fma_f32 v8, v8, v9, v8")
    for i in range(4): A(f"v_mul_f32 v{64+i}, v{64+i}, v8")
    A("v_cvt_pk_bf16_f32 v8, v64, v65"); A("v_cvt_pk_bf16_f32 v9, v66, v67")
    A("v_lshrrev_b32 v10, 5, v1"); A("v_lshlrev_b32 v10, 2, v10"); A("v_and_b32 v11, 3, v1"); A("v_add_u32 v10, v10, v11")
    A("v_lshlrev_b32 v10, 3, v10")
    A("s_mov_b32 exec_lo, 0xf"); A("s_mov_b32 exec_hi, 0xf")
    A(f"ds_write_b64 v10, v[8:9] offset:{L_ZA}")
    A("s_mov_b64 exec, -1")
    signal(F_Z)
    stamp(9)
    A.label("L_vrole")
    A("s_cmp_eq_u32 s31, 0"); A("s_cbranch_scc1 L_vwd")
    A("s_cmp_lg_u32 s31, 1"); A("s_cbranch_scc1 L_vfinal")
    A("s_mul_i32 s60, s2, 18"); A("s_and_b32 s64, s60, 3"); A("s_lshr_b32 s60, s60, 2"); A("s_lshl_b32 s60, s60, 4")
    A(f"s_add_u32 s60, s60, {WS_GS}")
    base_add(44, 26, "s60")
    A("v_lshrrev_b32 v5, 2, v1"); A("v_mul_u32_u24 v5, 18432, v5"); A("v_and_b32 v6, 3, v1"); A("v_lshl_add_u32 v5, v6, 4, v5")
    for i in range(8): A(f"v_mov_b32 v{64+i}, 0")
    lp = lab("gpoll"); ld = lab("gdone")
    A.label(lp)
    A("s_mov_b32 exec_hi, 0x0000ffff")
    A("global_load_dwordx4 v[64:67], v5, s[44:45] sc1")
    A("s_mov_b32 exec_lo, 0x11111111"); A("s_mov_b32 exec_hi, 0x00001111")
    A("global_load_dwordx4 v[68:71], v5, s[44:45] offset:64 sc1")
    A("s_waitcnt vmcnt(0)")
    tagcheck(68, "v8", "v9", "v10")
    A("s_mov_b64 s[62:63], vcc")
    A("s_mov_b32 exec_lo, -1"); A("s_mov_b32 exec_hi, 0x0000ffff")
    tagcheck(64, "v8", "v9", "v10")
    A("s_or_b64 vcc, vcc, s[62:63]")
    A("s_mov_b64 exec, -1")
    A(f"s_cbranch_vccz {ld}")
    A("s_sleep 8")
    A("s_sub_u32 s42, s42, 64")
    A(f"s_cbranch_scc0 {lp}")
    A.label(ld)
    untag(64, 8)
    gv = [f"v{64+i}" for i in range(8)]; tv = [f"v{72+i}" for i in range(8)]
    butterfly(16, "v_add_f32", gv, tv)
    butterfly(32, "v_add_f32", gv, tv)
    for p in range(4): A(f"v_cvt_pk_bf16_f32 v{72+p}, v{64+2*p}, v{65+2*p}")
    for p in range(4):
        A(f"v_lshlrev_b32 v{64+2*p}, 16, v{72+p}"); A(f"v_and_b32 v{65+2*p}, 0xffff0000, v{72+p}")
    for i in range(8):
        A(f"v_mul_f32_dpp v{72+i}, v{64+i}, v{64+i} row_ror:8 row_mask:0xf bank_mask:0xf")
    for p in range(4): A(f"v_cvt_pk_bf16_f32 v{64+p}, v{72+2*p}, v{73+2*p}")
    A("v_bfe_u32 v8, v1, 2, 1"); A("v_lshlrev_b32 v8, 6, v8")
    A("v_lshlrev_b32 v9, 2, v6"); A("v_subrev_u32 v9, s64, v9")
    A("s_mov_b64 exec, 0xff")
    for s_ in range(2):
        for i in range(4):
            A(f"v_add_u32 v10, {16*s_+i}, v9")
            A("v_and_b32 v11, 3, v10"); A("v_lshlrev_b32 v11, 4, v11")
            A("v_lshrrev_b32 v12, 2, v10"); A("v_lshl_add_u32 v11, v12, 1, v11"); A("v_add_u32 v11, v11, v8")
            A("v_cmp_gt_u32 vcc, 18, v10")
            if s_ == 1: A("s_and_b64 vcc, vcc, 0x11")
            A(f"v_mov_b32 v12, {L_DUMMY-L_HA}")
            A("v_cndmask_b32 v11, v12, v11, vcc")
            src = f"v{64 + 2*s_ + (i >> 1)}"
            if i & 1: A(f"ds_write_b16_d16_hi v11, {src} offset:{L_HA}")
            else: A(f"ds_write_b16 v11, {src} offset:{L_HA}")
    A("s_mov_b64 exec, -1")
    signal(F_H)
    stamp(13)
    A("s_branch L_vfinal")
    A.label("L_vwd")
    A("s_mov_b32 s43, 4")
    A("s_waitcnt vmcnt(0)")
    if PRETOUCH: fs_pretouch("s43", True)
    wd_setup("s43")
    if WD_AT == 9: spin(F_OP, 1, vt="v15")
    elif WD_AT == 8: spin(C_RO, 8, vt="v15")
    elif WD_AT: spin(C_END, WD_AT, vt="v15")
    A("s_setprio 0")
    A("s_mov_b32 exec_lo, 0x00ff00ff"); A("s_mov_b32 exec_hi, 0x00ff00ff")
    wd_loads("s43")
    A("s_setprio 3")
    wd_compute("s43", True)
    A.label("L_vfinal")
    NRED = 288 // FSP
    sh = {2: 1, 4: 2, 8: 3}[FSP]; per_row = 16 // FSP
    A(f"s_cmp_ge_u32 s2, {NRED}")
    A("s_cbranch_scc1 L_vend")
    lr = {8: 3, 4: 2, 2: 1}[per_row]
    A(f"s_lshr_b32 s64, s2, {lr+2}"); A(f"s_bfe_u32 s65, s2, {0x20000 | lr:#x}"); A(f"s_and_b32 s66, s2, {per_row-1}")
    A(f"s_bfe_u32 s67, s2, {0x20000 | (lr-1):#x}"); A(f"s_and_b32 s68, s2, {per_row//2-1}")
    A(f"s_cmp_ge_u32 s2, {16*per_row}")
    A("s_cselect_b32 s64, 4, s64"); A("s_cselect_b32 s65, s67, s65"); A("s_cselect_b32 s66, s68, s66")
    A(f"s_lshl_b32 s60, s2, {12+sh}"); A(f"s_lshl_b32 s61, s31, {9+sh}"); A("s_add_u32 s60, s60, s61"); A(f"s_add_u32 s60, s60, {WS_FS}")
    base_add(44, 26, "s60")
    A("v_lshlrev_b32 v5, 4, v1")
    A("s_and_b32 s60, s65, 1"); A("s_mul_i32 s60, s60, 1152"); A("s_lshl_b32 s61, s64, 8"); A("s_add_u32 s60, s60, s61")
    A(f"s_lshl_b32 s61, s66, {4+sh}"); A("s_add_u32 s60, s60, s61"); A("s_lshr_b32 s61, s65, 1"); A("s_lshl_b32 s61, s61, 3"); A("s_add_u32 s64, s60, s61")
    A(f"v_and_b32 v6, {FSP-1}, v1"); A("v_lshlrev_b32 v7, 4, v6"); A("v_add_u32 v6, s64, v7")
    A("global_load_dwordx2 v[30:31], v6, s[4:5]")
    spin(C_F, 5)
    stamp(10)
    if FSP == 2:
        poll_pipe([("v5", "s[44:45]", "")], [64], [96, 100, 104, 108])
    elif FSP == 4:
        poll_pipe([("v5", "s[44:45]", ""), ("v5", "s[44:45]", " offset:1024")], [64, 68], [96, 104, 112])
    else:
        poll_pipe([("v5", "s[44:45]", f" offset:{1024*i}") for i in range(4)], [64, 68, 72, 76], [96, 112])
    stamp(11)
    untag(64, 4 * (FSP // 2))
    z = ["v64", "v65", "v66", "v67"]
    if FSP == 8:
        for i in range(4): A(f"v_add_f32 v{64+i}, v{64+i}, v{68+i}"); A(f"v_add_f32 v{72+i}, v{72+i}, v{76+i}")
        for i in range(4): A(f"v_add_f32 v{64+i}, v{64+i}, v{72+i}")
    elif FSP == 4:
        for i in range(4): A(f"v_add_f32 v{64+i}, v{64+i}, v{68+i}")
        dpp("v_add_f32", z, "row_ror:4")
    else:
        dpp("v_add_f32", z, "quad_perm:[2,3,0,1]")
        dpp("v_add_f32", z, "row_ror:4")
    dpp("v_add_f32", z, "row_ror:8")
    butterfly(16, "v_add_f32", z, ["v8", "v9", "v10", "v11"])
    butterfly(32, "v_add_f32", z, ["v8", "v9", "v10", "v11"])
    if FINALADD:
        A(f"s_mov_b64 exec, {(1 << FSP) - 1}")
        for i in range(4): A(f"ds_add_f32 v7, v{64+i} offset:{L_FR+4*i}")
        A("s_mov_b64 exec, -1")
        arrive(C_FR, "s60")
        A("s_cmp_lg_u32 s60, 7")
        A("s_cbranch_scc1 L_vend")
        A(f"ds_read_b128 v[64:67], v7 offset:{L_FR}")
        A("s_waitcnt lgkmcnt(0)")
    else:
        A(f"s_lshl_b32 s60, s31, {4+sh}"); A("v_add_u32 v8, s60, v7")
        A(f"s_mov_b64 exec, {(1 << FSP) - 1}")
        A(f"ds_write_b128 v8, v[64:67] offset:{L_FR}")
        A("s_mov_b64 exec, -1")
        arrive(C_FR, "s60")
        A("s_cmp_lg_u32 s60, 7")
        A("s_cbranch_scc1 L_vend")
        for w in range(8): A(f"ds_read_b128 v[{64+4*w}:{67+4*w}], v7 offset:{L_FR+16*FSP*w}")
        A("s_waitcnt lgkmcnt(0)")
        for w in range(1, 8):
            for i in range(4): A(f"v_add_f32 v{64+i}, v{64+i}, v{64+4*w+i}")
    A("v_lshlrev_b32 v8, 16, v30"); A("v_and_b32 v9, 0xffff0000, v30")
    A("v_lshlrev_b32 v10, 16, v31"); A("v_and_b32 v11, 0xffff0000, v31")
    for i in range(4): A(f"v_add_f32 v{64+i}, v{64+i}, v{8+i}")
    A("v_cvt_pk_bf16_f32 v8, v64, v65"); A("v_cvt_pk_bf16_f32 v9, v66, v67")
    A(f"s_mov_b64 exec, {(1 << FSP) - 1}")
    A("global_store_dwordx2 v6, v[8:9], s[22:23]")
    A("s_cmp_lg_u32 s2, 0")
    A("s_cbranch_scc1 L_vend2")
    A("s_mov_b64 exec, 1")
    A("v_mov_b32 v8, s28")
    A(f"global_store_dword {VZ}, v8, s[26:27] sc1")
    A.label("L_vend2")
    A("s_mov_b64 exec, -1")
    stamp(12)
    A.label("L_vend")
    stamp_dump()
    A.label("L_end")
    A("s_endpgm")
    if RELAYOUT:
        L = A.lines
        k2 = L.index("; MARK_K2"); v0 = L.index("; MARK_V0"); v1 = L.index("; MARK_V1")
        vblock = L[v0:v1] + ["s_branch L_vgu0"]
        A.lines = L[:k2] + ["s_branch L_k2", "L_kdb:", "s_barrier", "s_branch L_kdyn00"] + vblock + ["L_k2:"] + L[k2:v0] + L[v1:]
    lines, nn = A.finish()
    hdr = open("cdna_kernels/" + NAME + ".s.ref").read().split("; Override launch geometry")[0]
    out = hdr
    out += f"; @launch grid=(256,1,1) block=(1024,1,1) lds={LDS_BYTES}\n"
    out += f""".amdgcn_target "amdgcn-amd-amdhsa--gfx950"
.text
.globl {NAME}_kernel
.p2align 8
.type {NAME}_kernel,@function
{NAME}_kernel:
"""
    out += "\n".join(("    " + l) if not l.endswith(":") else l for l in lines)
    out += f"""
.section .rodata,"a"
.p2align 6
.amdhsa_kernel {NAME}_kernel
  .amdhsa_next_free_vgpr 128
  .amdhsa_next_free_sgpr 102
  .amdhsa_accum_offset 128
  .amdhsa_group_segment_fixed_size 0
  .amdhsa_kernarg_size 96
  .amdhsa_user_sgpr_count 2
  .amdhsa_user_sgpr_kernarg_segment_ptr 1
  .amdhsa_system_sgpr_workgroup_id_x 1
.end_amdhsa_kernel
"""
    return out, nn

if __name__ == "__main__":
    o, nn = gen()
    open("k5.s", "w").write(o)
    print("nops inserted:", nn, "lines:", o.count("\n"))
    o, nn = gen(diag=True)
    open("k5d.s", "w").write(o)
    for nm, kw in (("nol", dict(RELAYOUT=False)),):
        o, nn = gen(**kw)
        open(f"k5_{nm}.s", "w").write(o)
        o, nn = gen(diag=True, **kw)
        open(f"k5d_{nm}.s", "w").write(o)
```
